```python
import torch

def _softmax(x, axis=-1):
    return torch.softmax(x, dim=axis)
def _gelu(x):
    return torch.nn.functional.gelu(x, approximate="tanh")
def _silu(x):
    return torch.nn.functional.silu(x)
def _sigmoid(x):
    return torch.sigmoid(x)
def _layernorm(x, axis=-1, eps=1e-5):
    m = x.mean(dim=axis, keepdim=True)
    v = x.var(dim=axis, keepdim=True, unbiased=False)
    return (x - m) / torch.sqrt(v + eps)
def _scatter_add(tgt, idx, src, axis=0):
    return tgt.clone().index_add_(axis, idx, src)
def _segment_sum(src, seg, n):
    out = torch.zeros((n,) + src.shape[1:], dtype=src.dtype)
    return out.index_add_(0, seg, src)
def _pad(x, pw):
    flat = tuple(v for pair in reversed(pw) for v in pair)
    return torch.nn.functional.pad(x, flat)

kernel_name = 'interleave_layers__grouped_kv_mqa__mixer_token_mlp__prompt'

def setup_inputs():

    _w = (lambda a: (lambda t: t.to(torch.bfloat16) if t.is_floating_point() else t)(torch.as_tensor(a)))
    def _A_setup():
        B, S, D, H = 1, 2048, 640, 32
        Dh = D // H
        return {
            "x": _w((lambda *s: torch.randn(*s, dtype=torch.bfloat16) * 0.05)(B, S, D)),
            "wq": _w((lambda *s: torch.randn(*s, dtype=torch.bfloat16) * 0.05)(D, H * Dh)),
            "wk": _w((lambda *s: torch.randn(*s, dtype=torch.bfloat16) * 0.05)(D, Dh)),
            "wv": _w((lambda *s: torch.randn(*s, dtype=torch.bfloat16) * 0.05)(D, Dh)),
            "wo": _w((lambda *s: torch.randn(*s, dtype=torch.bfloat16) * 0.05)(H * Dh, D)),
        }
    _A_in = _A_setup()

    def _B_setup():
        B, S, D, F = 1, 2048, 640, 1728
        return {
            "x": _w((lambda *s: torch.randn(*s, dtype=torch.bfloat16) * 0.05)(B, S, D)),
            "w1": _w((lambda *s: torch.randn(*s, dtype=torch.bfloat16) * 0.4)(S, F) * (S ** -0.5)),
            "b1": _w((lambda *s: torch.randn(*s, dtype=torch.bfloat16) * 0.4)(F) * 0.02),
            "w2": _w((lambda *s: torch.randn(*s, dtype=torch.bfloat16) * 0.4)(F, S) * (F ** -0.5)),
            "b2": _w((lambda *s: torch.randn(*s, dtype=torch.bfloat16) * 0.4)(S) * 0.02),
        }
    _B_in = _B_setup()

    return {
        "A_x": _A_in["x"],
        "A_wq": _A_in["wq"],
        "A_wk": _A_in["wk"],
        "A_wv": _A_in["wv"],
        "A_wo": _A_in["wo"],
        "B_x": _B_in["x"],
        "B_w1": _B_in["w1"],
        "B_b1": _B_in["b1"],
        "B_w2": _B_in["w2"],
        "B_b2": _B_in["b2"],
    }

def reference(A_x, A_wq, A_wk, A_wv, A_wo, B_x, B_w1, B_b1, B_w2, B_b2):
    def _A_ref(x, wq, wk, wv, wo):
        B, S, D = x.shape
        H = 32
        Dh = D // H
        q = (lambda x, *d: x.permute(*d))((x @ wq).reshape(B, S, H, Dh), 0, 2, 1, 3)
        k = x @ wk
        v = x @ wv
        scores = torch.einsum("bhqd,bkd->bhqk", q, k) * (Dh ** -0.5)
        p = _softmax(scores, axis=-1)
        o = torch.einsum("bhqk,bkd->bhqd", p, v)
        return (lambda x, *d: x.permute(*d))(o, 0, 2, 1, 3).reshape(B, S, H * Dh) @ wo

    def _B_ref(x, w1, b1, w2, b2):
        B, S, D = x.shape
        h = _layernorm(x, axis=-1)
        u = torch.einsum("bsd,sf->bdf", h, w1) + b1
        u = _gelu(u)
        y = torch.einsum("bdf,fs->bds", u, w2) + b2
        return (lambda x, *d: x.permute(*d))(y, 0, 2, 1)

    x = A_x
    x = x + _A_ref(_layernorm(x, axis=-1), A_wq, A_wk, A_wv, A_wo)
    x = x + _B_ref(_layernorm(x, axis=-1), B_w1, B_b1, B_w2, B_b2)
    x = x + _A_ref(_layernorm(x, axis=-1), A_wq, A_wk, A_wv, A_wo)
    x = x + _B_ref(_layernorm(x, axis=-1), B_w1, B_b1, B_w2, B_b2)
    return x
```

```python
import struct, sys, math

def f2u(x): return struct.unpack("<I", struct.pack("<f", x))[0]

QT_OFF   = 0
KV_OFF   = 0x300000
OF_OFF   = 0x400000
X1T_OFF  = 0x700000
ST_OFF   = 0xA00000
GF_OFF   = 0xB00000
X2_OFF   = 0xE00000
WS_SIZE  = 0x10000000
KVT = 2624
XBYTES = 2048 * 640 * 2

class Asm:
    def __init__(self): self.l = []
    def __call__(self, s):
        for x in s.strip("\n").split("\n"):
            self.l.append("    " + x.strip())
    def label(self, n): self.l.append(n + ":")
    def raw(self, s): self.l.append(s)
    def text(self): return "\n".join(self.l) + "\n"

def vr(b, n=1): return f"v{b}" if n == 1 else f"v[{b}:{b+n-1}]"
def sr(b, n=1): return f"s{b}" if n == 1 else f"s[{b}:{b+n-1}]"

def srd(a, d, lo, hi, nbytes):
    a(f"s_mov_b32 s{d}, s{lo}")
    a(f"s_and_b32 s{d+1}, s{hi}, 0xffff")
    a(f"s_mov_b32 s{d+2}, {hex(nbytes)}")
    a(f"s_mov_b32 s{d+3}, 0x00020000")

def header(a, name):
    a.raw(f".globl {name}\n.p2align 8\n.type {name},@function\n{name}:")

def kd(name, nv, ns=102):
    acc = (nv + 3) // 4 * 4
    return f""".p2align 6
.amdhsa_kernel {name}
  .amdhsa_next_free_vgpr {nv}
  .amdhsa_next_free_sgpr {ns}
  .amdhsa_accum_offset {acc}
  .amdhsa_group_segment_fixed_size 0
  .amdhsa_kernarg_size 104
  .amdhsa_user_sgpr_count 2
  .amdhsa_user_sgpr_kernarg_segment_ptr 1
  .amdhsa_system_sgpr_workgroup_id_x 1
.end_amdhsa_kernel
"""

def mfma16(a, d, x, y, c=None):
    c = vr(d, 4) if c is None else c
    a(f"v_mfma_f32_16x16x32_bf16 {vr(d,4)}, {vr(x,4)}, {vr(y,4)}, {c}")

def gen_qkv(layer):
    name = f"qkv{layer}_kernel"
    a = Asm(); header(a, name)
    WB = 0; WST = 20480
    XB = 61440; XST = 16384
    WKV = 110592
    MISC = 136192
    LDS = MISC + 512
    a(f"s_cmp_ge_u32 s2, 256")
    a(f"s_cbranch_scc1 L_{name}_end")
    a(f"s_load_dwordx2 s[4:5], s[0:1], 0")
    a(f"s_load_dwordx4 s[8:11], s[0:1], 16")
    a(f"s_load_dwordx2 s[6:7], s[0:1], 8")
    a(f"s_load_dwordx2 s[12:13], s[0:1], 96")
    a("v_lshrrev_b32 v1, 6, v0")
    a("v_and_b32 v0, 63, v0")
    a("v_readfirstlane_b32 s32, v1")
    a("s_and_b32 s33, s2, 7")
    a("s_lshl_b32 s33, s33, 2")
    a("s_lshr_b32 s34, s2, 3")
    a("s_and_b32 s34, s34, 3")
    a("s_add_u32 s33, s33, s34")
    a("s_lshr_b32 s34, s2, 5")
    a("s_waitcnt lgkmcnt(0)")
    if layer == 1:
        a(f"s_add_u32 s4, s12, {hex(X2_OFF)}")
        a(f"s_addc_u32 s5, s13, 0")
    srd(a, 16, 4, 5, XBYTES)
    srd(a, 20, 6, 7, 819200)
    a("s_cmp_eq_u32 s34, 0")
    a("s_cselect_b32 s14, s8, s10")
    a("s_cselect_b32 s15, s9, s11")
    srd(a, 24, 14, 15, 25600)
    srd(a, 28, 12, 13, WS_SIZE)
    a("v_and_b32 v1, 15, v0")
    a("v_lshrrev_b32 v2, 4, v0")
    a("s_mul_i32 s35, s32, 320")
    a("s_mul_i32 s36, s34, 160")
    a("s_mov_b32 s37, 6554")
    a("s_movk_i32 s38, 1280")
    for jj in range(5):
        a(f"v_add_u32 v10, s35, v0")
        if jj: a(f"v_add_u32 v10, {64*jj}, v10")
        a("v_mul_lo_u32 v11, v10, s37")
        a("v_lshrrev_b32 v11, 16, v11")
        a("v_mul_u32_u24 v12, 10, v11")
        a("v_sub_u32 v12, v10, v12")
        a("v_mul_lo_u32 v11, v11, s38")
        a("v_lshl_add_u32 v11, v12, 4, v11")
        a(f"v_add_u32 v{4+jj}, s36, v11")
    a("v_lshrrev_b32 v10, 3, v0")
    a("v_and_b32 v11, 7, v0")
    a("s_lshl_b32 s39, s32, 4")
    for rh, dst in ((0, 9), (1, 3)):
        a(f"v_add_u32 v12, {8*rh}, v10")
        a("v_lshrrev_b32 v13, 1, v12")
        a("v_and_b32 v13, 7, v13")
        a("v_xor_b32 v13, v13, v11")
        a("v_add_u32 v12, s39, v12")
        a("v_mul_lo_u32 v12, v12, s38")
        a(f"v_lshl_add_u32 v{dst}, v13, 4, v12")
    a("v_lshlrev_b32 v14, 4, v0")
    a("s_mul_i32 s40, s33, 81920")
    a("s_mul_i32 s41, s32, 5120")
    a("s_lshl_b32 s42, s32, 12")
    a("s_cmp_ge_u32 s34, 2")
    a(f"s_cbranch_scc1 L_{name}_nokv")
    for it in range(7):
        a(f"s_add_u32 s43, s32, {4*it}")
        a("s_min_u32 s43, s43, 24")
        a("s_lshl_b32 s43, s43, 10")
        a(f"s_add_u32 s44, s43, {WKV}")
        a("s_mov_b32 m0, s44")
        a("s_nop 0")
        a("buffer_load_dwordx4 v14, s[24:27], s43 offen lds")
    a.label(f"L_{name}_nokv")
    def issue_stage(st):
        buf = st % 3
        for jj in range(5):
            a(f"s_add_u32 s44, s41, {WB + buf*WST + jj*1024}")
            a("s_mov_b32 m0, s44")
            a(f"s_mov_b32 s43, {st*128*1280}")
            a(f"buffer_load_dwordx4 v{4+jj}, s[20:23], s43 offen lds")
        for kb in range(2):
            for rh, vo in ((0, 9), (1, 3)):
                a(f"s_add_u32 s44, s42, {XB + buf*XST + kb*2048 + rh*1024}")
                a("s_mov_b32 m0, s44")
                a(f"s_add_u32 s43, s40, {st*256 + kb*128}")
                a(f"buffer_load_dwordx4 v{vo}, s[16:19], s43 offen lds")
    for st in range(3): issue_stage(st)
    a("v_lshrrev_b32 v10, 1, v1")
    a("v_and_b32 v10, 7, v10")
    a("v_lshrrev_b32 v11, 1, v2")
    a("v_and_b32 v12, 1, v2")
    a("v_lshlrev_b32 v13, 7, v1")
    a("v_lshl_add_u32 v13, v12, 3, v13")
    a("v_add_u32 v13, s42, v13")
    a(f"v_add_u32 v13, {XB}, v13")
    for h in range(2):
        for sec in range(2):
            a(f"v_add_u32 v15, {4*h + 2*sec}, v11")
            a("v_xor_b32 v15, v15, v10")
            a(f"v_lshl_add_u32 v{16 + 2*h + sec}, v15, 4, v13")
    a("v_lshrrev_b32 v10, 2, v1")
    a("v_lshl_add_u32 v10, v2, 2, v10")
    a("v_and_b32 v11, 3, v1")
    a("v_lshlrev_b32 v11, 3, v11")
    a("v_mul_u32_u24 v12, 160, v10")
    a("v_add_u32 v20, v12, v11")
    a("s_lshl_b32 s43, s32, 5")
    a("v_add_u32 v21, s43, v20")
    a("v_mul_u32_u24 v12, 40, v10")
    a("v_add_u32 v12, v12, v11")
    a(f"v_add_u32 v22, {WKV}, v12")
    ONES = 24
    ACC = 28
    CS4 = 56; CS5 = 60; CS6 = 64; CSO = 68; RS = 72; GR = 76
    FR = 80
    for r in range(4): a(f"v_mov_b32 v{ONES+r}, 0x3f803f80")
    for r in range(ACC, 80): a(f"v_mov_b32 v{r}, 0")
    def reads(st, ks4, fs, kv):
        buf = st % 3
        b = FR + 36 * fs
        kb = ks4 // 2; h = ks4 % 2
        xo = buf * XST + kb * 2048
        a(f"ds_read_b64 {vr(b,2)}, v{16+2*h} offset:{xo}")
        a(f"ds_read_b64 {vr(b+2,2)}, v{17+2*h} offset:{xo}")
        for nt in range(5):
            for half in range(2):
                off = WB + buf * WST + (32 * ks4 + 16 * half) * 160 + 32 * nt
                a(f"ds_read_b64_tr_b16 {vr(b+4+4*nt+2*half,2)}, v20 offset:{off}")
        for half in range(2):
            off = WB + buf * WST + (32 * ks4 + 16 * half) * 160
            a(f"ds_read_b64_tr_b16 {vr(b+32+2*half,2)}, v21 offset:{off}")
        if kv:
            for t in range(2):
                for half in range(2):
                    off = (st * 128 + 32 * ks4 + 16 * half) * 40 + 32 * t
                    a(f"ds_read_b64_tr_b16 {vr(b+24+4*t+2*half,2)}, v22 offset:{off}")
    def mfmas(fs, kv):
        b = FR + 36 * fs
        for nt in range(5): mfma16(a, ACC + 4 * nt, b + 4 + 4 * nt, b)
        mfma16(a, CS4, b + 4 + 16, ONES)
        mfma16(a, CSO, b + 32, ONES)
        mfma16(a, RS, ONES, b)
        mfma16(a, GR, b, b)
        if kv:
            mfma16(a, ACC + 20, b + 24, b)
            mfma16(a, ACC + 24, b + 28, b)
            mfma16(a, CS5, b + 24, ONES)
            mfma16(a, CS6, b + 28, ONES)
    def main_loop(kv):
        waits = [18, 9, 9, 9, 0]
        for st in range(5):
            a(f"s_waitcnt vmcnt({waits[st]})")
            a("s_barrier")
            if st in (1, 2): issue_stage(st + 2)
            reads(st, 0, 0, kv)
            for ks4 in range(4):
                a("s_waitcnt lgkmcnt(0)")
                if ks4 < 3: reads(st, ks4 + 1, (ks4 + 1) % 2, kv)
                mfmas(ks4 % 2, kv)
    a("s_cmp_ge_u32 s34, 2")
    a(f"s_cbranch_scc1 L_{name}_loopq")
    main_loop(True)
    a(f"s_branch L_{name}_epi")
    a.label(f"L_{name}_loopq")
    main_loop(False)
    a.label(f"L_{name}_epi")
    a("s_nop 7")
    a("s_nop 7")
    a("v_lshlrev_b32 v10, 4, v2")
    a("s_lshl_b32 s43, s32, 6")
    a(f"s_add_u32 s43, s43, {MISC}")
    a("v_add_u32 v11, s43, v10")
    a("v_cmp_eq_u32 vcc, 0, v1")
    a("s_and_saveexec_b64 s[46:47], vcc")
    a(f"ds_write_b128 v11, {vr(CSO,4)}")
    a("s_mov_b64 exec, s[46:47]")
    a("v_and_b32 v12, 3, v1")
    a(f"v_mov_b32 v13, v{GR}")
    for r in range(1, 4):
        a(f"v_cmp_eq_u32 vcc, {r}, v12")
        a("s_nop 1")
        a(f"v_cndmask_b32 v13, v13, v{GR+r}, vcc")
    a("v_lshrrev_b32 v12, 2, v1")
    a("v_lshl_add_u32 v12, v12, 4, v1")
    a("v_lshlrev_b32 v12, 2, v12")
    a("ds_bpermute_b32 v13, v12, v13")
    a("s_waitcnt lgkmcnt(0)")
    a("s_barrier")
    a(f"v_add_u32 v11, {MISC}, v10")
    CSX = FR
    for nt in range(4): a(f"ds_read_b128 {vr(CSX+4*nt,4)}, v11 offset:{64*nt}")
    a(f"s_mov_b32 s43, {hex(f2u(1.0/640))}")
    a(f"v_mul_f32 v14, s43, v{RS}")
    a("v_mul_f32 v13, s43, v13")
    a("v_fma_f32 v13, -v14, v14, v13")
    a("v_max_f32 v13, 0, v13")
    a(f"v_add_f32 v13, {hex(f2u(1e-5))}, v13")
    a("v_rsq_f32 v15, v13")
    a("s_nop 0")
    qs = (20 ** -0.5) * math.log2(math.e)
    a(f"v_mul_f32 v23, {hex(f2u(qs))}, v15")
    a("s_waitcnt lgkmcnt(0)")
    a("s_lshl_b32 s43, s33, 2")
    a("s_add_u32 s43, s43, s32")
    a("s_mul_i32 s44, s43, 20480")
    a("s_mul_i32 s45, s34, 2560")
    a("s_add_u32 s44, s44, s45")
    a(f"s_add_u32 s44, s44, {QT_OFF}")
    a("v_lshlrev_b32 v10, 3, v0")
    T = FR + 16
    for nt in range(5):
        cs = CSX + 4 * nt if nt < 4 else CS4
        for r in range(4):
            a(f"v_fma_f32 v{T+r}, -v14, v{cs+r}, v{ACC+4*nt+r}")
            a(f"v_mul_f32 v{T+r}, v23, v{T+r}")
        a(f"v_cvt_pk_bf16_f32 v{T+4+2*nt}, v{T}, v{T+1}")
        a(f"v_cvt_pk_bf16_f32 v{T+5+2*nt}, v{T+2}, v{T+3}")
        a(f"buffer_store_dwordx2 {vr(T+4+2*nt,2)}, v10, s[28:31], s44 offen offset:{512*nt}")
    a("s_cmp_lg_u32 s32, 0")
    a(f"s_cbranch_scc1 L_{name}_nozero")
    a("v_cmp_gt_u32 vcc, 16, v0")
    a("s_and_saveexec_b64 s[46:47], vcc")
    a("v_mov_b32 v11, 0")
    a("v_lshlrev_b32 v12, 2, v0")
    a("s_lshl_b32 s45, s2, 6")
    a(f"s_add_u32 s45, s45, {ST_OFF}")
    a("buffer_store_dword v11, v12, s[28:31], s45 offen")
    a("s_mov_b64 exec, s[46:47]")
    a.label(f"L_{name}_nozero")
    a("s_cmp_ge_u32 s34, 2")
    a(f"s_cbranch_scc1 L_{name}_end")
    for t, cs in ((0, CS5), (1, CS6)):
        for r in range(4):
            a(f"v_fma_f32 v{T+4*t+r}, -v14, v{cs+r}, v{ACC+20+4*t+r}")
            a(f"v_mul_f32 v{T+4*t+r}, v15, v{T+4*t+r}")
    a("s_lshl_b32 s43, s33, 1")
    a("s_lshr_b32 s44, s32, 1")
    a("s_add_u32 s43, s43, s44")
    a(f"s_mul_i32 s43, s43, {KVT}")
    a(f"s_add_u32 s43, s43, {KV_OFF}")
    a("s_and_b32 s44, s32, 1")
    a("s_cmp_lg_u32 s34, 0")
    a(f"s_cbranch_scc1 L_{name}_vstore")
    a(f"v_cvt_pk_bf16_f32 v{T+8}, v{T}, v{T+1}")
    a(f"v_cvt_pk_bf16_f32 v{T+9}, v{T+2}, v{T+3}")
    a(f"v_cvt_pk_bf16_f32 v{T+10}, v{T+4}, v{T+5}")
    a(f"v_cvt_pk_bf16_f32 v{T+11}, v{T+6}, v{T+7}")
    a("s_lshl_b32 s45, s44, 4")
    a("v_add_u32 v10, s45, v1")
    a("v_lshrrev_b32 v11, 1, v2")
    a("v_lshlrev_b32 v11, 9, v11")
    a("v_lshl_add_u32 v11, v10, 4, v11")
    a("v_and_b32 v12, 1, v2")
    a("v_lshl_add_u32 v11, v12, 3, v11")
    a(f"buffer_store_dwordx2 {vr(T+8,2)}, v11, s[28:31], s43 offen")
    a("v_lshlrev_b32 v11, 2, v10")
    a("v_cmp_eq_u32 vcc, 0, v2")
    a("s_and_saveexec_b64 s[46:47], vcc")
    a(f"buffer_store_dword v{T+10}, v11, s[28:31], s43 offen offset:1024")
    a(f"buffer_store_dword v{T+11}, v11, s[28:31], s43 offen offset:1152")
    a("s_mov_b64 exec, s[46:47]")
    a(f"s_branch L_{name}_end")
    a.label(f"L_{name}_vstore")
    for r in range(8): a(f"v_cvt_pk_bf16_f32 v{T+8+r}, v{T+r}, v{T+r}")
    a("s_mul_i32 s45, s44, 672")
    a("s_add_u32 s43, s43, s45")
    a("v_lshrrev_b32 v10, 3, v1")
    a("v_lshlrev_b32 v10, 2, v10")
    a("v_and_b32 v11, 3, v1")
    a("v_add_u32 v10, v10, v11")
    a("v_lshlrev_b32 v10, 1, v10")
    a("v_bfe_u32 v11, v1, 2, 1")
    a("v_mul_u32_u24 v11, 336, v11")
    a("v_add_u32 v10, v10, v11")
    a("v_lshl_add_u32 v11, v2, 6, v10")
    for r in range(4):
        a(f"buffer_store_short v{T+8+r}, v11, s[28:31], s43 offen offset:{1280 + 16*r}")
    a("v_cmp_eq_u32 vcc, 0, v2")
    a("s_and_saveexec_b64 s[46:47], vcc")
    for r in range(4):
        a(f"buffer_store_short v{T+12+r}, v10, s[28:31], s43 offen offset:{1280 + 16*(16+r)}")
    a(f"buffer_store_short v{ONES}, v10, s[28:31], s43 offen offset:{1280 + 16*20}")
    a("s_mov_b64 exec, s[46:47]")
    a.label(f"L_{name}_end")
    a("s_endpgm")
    return name, a.text(), kd(name, 160), f"; @launch kernel={name} grid=(256,1,1) block=(256,1,1) lds={LDS}"

def mfma32(a, d, x, y, c=None):
    c = vr(d, 16) if c is None else c
    a(f"v_mfma_f32_32x32x16_bf16 {vr(d,16)}, {vr(x,4)}, {vr(y,4)}, {c}")

def gen_attn():
    name = "attn_kernel"
    a = Asm(); header(a, name)
    CH = 16 * KVT
    FLAG = 3 * CH
    LDS = FLAG + 64
    QF1 = 8; QF2 = 12; NEGM = 16; S = [32, 48]; O = 64; P = [80, 84]
    KB = [88, 96]
    VB = [104, 112]
    a(f"s_cmp_ge_u32 s2, 256")
    a(f"s_cbranch_scc1 L_{name}_end")
    a(f"s_load_dwordx2 s[12:13], s[0:1], 96")
    a("v_lshrrev_b32 v1, 6, v0")
    a("v_and_b32 v0, 63, v0")
    a("v_readfirstlane_b32 s32, v1")
    a("s_lshl_b32 s33, s2, 3")
    a("s_waitcnt lgkmcnt(0)")
    a("s_add_u32 s33, s33, s32")
    srd(a, 28, 12, 13, WS_SIZE)
    a("v_and_b32 v1, 31, v0")
    a("v_lshrrev_b32 v2, 5, v0")
    a("v_lshlrev_b32 v3, 4, v0")
    a("v_mov_b32 v4, 0")
    a(f"v_mov_b32 v5, {FLAG}")
    a("ds_write_b32 v5, v4")
    a("s_lshr_b32 s34, s33, 4")
    a("s_mul_i32 s34, s34, 20480")
    a("s_and_b32 s35, s33, 15")
    a("s_lshl_b32 s36, s35, 3")
    a("s_add_u32 s34, s34, s36")
    a(f"s_add_u32 s34, s34, {QT_OFF}")
    a("v_mul_u32_u24 v4, 5, v1")
    a("v_lshl_add_u32 v5, v2, 1, v4")
    a("v_lshlrev_b32 v5, 7, v5")
    a("v_add_u32 v6, 4, v4")
    a("v_lshlrev_b32 v6, 7, v6")
    a("v_lshl_add_u32 v6, v2, 2, v6")
    a(f"buffer_load_dwordx2 {vr(QF1,2)}, v5, s[28:31], s34 offen")
    a(f"buffer_load_dwordx2 {vr(QF1+2,2)}, v5, s[28:31], s34 offen offset:128")
    a(f"buffer_load_dword v{QF2}, v6, s[28:31], s34 offen")
    for r in range(1, 4): a(f"v_mov_b32 v{QF2+r}, 0")
    for kb in KB:
        for r in range(5, 8): a(f"v_mov_b32 v{kb+r}, 0")
    a("v_min_u32 v4, 20, v1")
    a("v_subrev_u32 v5, 12, v1")
    a("v_cmp_lt_u32 vcc, 27, v1")
    a("s_nop 1")
    a("v_cndmask_b32 v4, v4, v5, vcc")
    a("v_lshlrev_b32 v4, 4, v4")
    a("v_mul_u32_u24 v5, 336, v2")
    a("v_add_u32 v4, v4, v5")
    a("v_add_u32 v126, 1280, v4")
    a("v_lshlrev_b32 v127, 2, v0")
    a("v_add_u32 v127, 1024, v127")
    a("s_mov_b32 s40, 0")
    def dma_chunk(c_s, buf_s):
        for i in range(6):
            a(f"s_add_u32 s43, s32, {8*i}")
            a("s_min_u32 s43, s43, 40")
            a("s_lshl_b32 s43, s43, 10")
            a(f"s_add_u32 s44, s43, {buf_s}")
            a("s_mov_b32 m0, s44")
            a(f"s_add_u32 s43, s43, {c_s}")
            a("buffer_load_dwordx4 v3, s[28:31], s43 offen lds")
    def dma_first3():
        for c in range(3):
            a(f"s_mov_b32 s45, {KV_OFF + c*CH}")
            a(f"s_mov_b32 s46, {c*CH}")
            dma_chunk("s45", "s46")
    a.label(f"L_{name}_restart")
    dma_first3()
    a("s_cmp_eq_u32 s40, 0")
    a(f"s_cbranch_scc1 L_{name}_fast")
    a("s_waitcnt vmcnt(0)")
    a("s_barrier")
    a(f"v_mov_b32 v120, v3")
    a(f"v_mov_b32 v121, v127")
    a(f"v_mov_b32 v7, 0xff800000")
    a("s_mov_b32 s41, 0")
    a.label(f"L_{name}_mx")
    a(f"ds_read_b128 {vr(KB[0],4)}, v120")
    a(f"ds_read_b32 v{KB[0]+4}, v121")
    a(f"v_add_u32 v120, {KVT}, v120")
    a(f"v_add_u32 v121, {KVT}, v121")
    a("s_waitcnt lgkmcnt(0)")
    mfma32(a, S[0], KB[0], QF1, "0")
    mfma32(a, S[0], KB[0] + 4, QF2)
    a("s_nop 15")
    a("s_nop 3")
    for r in range(0, 16, 2): a(f"v_max3_f32 v7, v7, v{S[0]+r}, v{S[0]+r+1}")
    a("s_add_u32 s41, s41, 1")
    a("s_cmp_lg_u32 s41, 48")
    a(f"s_cbranch_scc1 L_{name}_mx2")
    a("s_barrier")
    a(f"s_mov_b32 s45, {KV_OFF + 3*CH}")
    a(f"s_mov_b32 s46, 0")
    dma_chunk("s45", "s46")
    a("s_waitcnt vmcnt(0)")
    a("s_barrier")
    a(f"v_mov_b32 v120, v3")
    a(f"v_mov_b32 v121, v127")
    a.label(f"L_{name}_mx2")
    a("s_cmp_lt_u32 s41, 64")
    a(f"s_cbranch_scc1 L_{name}_mx")
    a("s_barrier")
    dma_first3()
    a("s_waitcnt vmcnt(12)")
    a("s_barrier")
    a(f"s_branch L_{name}_havemax")
    a.label(f"L_{name}_fast")
    a("s_waitcnt vmcnt(12) lgkmcnt(0)")
    a("s_barrier")
    a(f"ds_read_b128 {vr(KB[0],4)}, v3")
    a(f"ds_read_b32 v{KB[0]+4}, v127")
    a("s_waitcnt lgkmcnt(0)")
    mfma32(a, S[0], KB[0], QF1, "0")
    mfma32(a, S[0], KB[0] + 4, QF2)
    a("s_nop 15")
    a("s_nop 3")
    a(f"v_max_f32 v7, v{S[0]}, v{S[0]+1}")
    for r in range(2, 16, 2): a(f"v_max3_f32 v7, v7, v{S[0]+r}, v{S[0]+r+1}")
    a.label(f"L_{name}_havemax")
    a("v_mov_b32 v4, v7")
    a("v_mov_b32 v5, v7")
    a("s_nop 1")
    a("v_permlane32_swap_b32 v4, v5")
    a("s_nop 1")
    a("v_max_f32 v7, v4, v5")
    a("v_sub_f32 v7, 0, v7")
    for r in range(16): a(f"v_mov_b32 v{NEGM+r}, v7")
    for r in range(16): a(f"v_mov_b32 v{O+r}, 0")
    a("v_mov_b32 v120, v3"); a("v_mov_b32 v121, v127"); a("v_mov_b32 v122, v126")
    a(f"v_add_u32 v123, {CH}, v3"); a(f"v_add_u32 v124, {CH}, v127"); a(f"v_add_u32 v125, {CH}, v126")
    a(f"ds_read_b128 {vr(KB[0],4)}, v120")
    a(f"ds_read_b32 v{KB[0]+4}, v121")
    a(f"ds_read_b128 {vr(KB[1],4)}, v120 offset:{KVT}")
    a(f"ds_read_b32 v{KB[1]+4}, v121 offset:{KVT}")
    a(f"ds_read_b128 {vr(VB[0],4)}, v122")
    a(f"ds_read_b128 {vr(VB[0]+4,4)}, v122 offset:672")
    a("s_waitcnt lgkmcnt(4)")
    mfma32(a, S[0], KB[0], QF1, vr(NEGM, 16))
    mfma32(a, S[0], KB[0] + 4, QF2)
    a("s_mov_b32 s41, 0")
    a("s_mov_b32 s42, 0")
    a.label(f"L_{name}_chunk")
    for t in range(16):
        sc = S[t % 2]; sn = S[(t + 1) % 2]
        kn = KB[(t + 1) % 2]; kl = KB[t % 2]
        vc = VB[t % 2]; vl = VB[(t + 1) % 2]
        if t == 14:
            a("s_waitcnt vmcnt(0)")
            a("s_barrier")
            a("s_cmp_lg_u32 s41, 1")
            a(f"s_cbranch_scc1 L_{name}_nodma")
            a(f"s_mov_b32 s45, {KV_OFF + 3*CH}")
            a(f"s_mov_b32 s46, 0")
            dma_chunk("s45", "s46")
            a.label(f"L_{name}_nodma")
        a("s_waitcnt lgkmcnt(0)")
        if t + 2 < 16: ka, kb_, ko = 120, 121, (t + 2) * KVT
        else: ka, kb_, ko = 123, 124, (t + 2 - 16) * KVT
        if t + 1 < 16: va, vo = 122, (t + 1) * KVT
        else: va, vo = 125, 0
        mfma32(a, sn, kn, QF1, vr(NEGM, 16))
        a(f"ds_read_b128 {vr(kl,4)}, v{ka} offset:{ko}")
        a(f"ds_read_b32 v{kl+4}, v{kb_} offset:{ko}")
        for r in range(0, 4): a(f"v_exp_f32 v{sc+r}, v{sc+r}")
        mfma32(a, sn, kn + 4, QF2)
        a(f"ds_read_b128 {vr(vl,4)}, v{va} offset:{vo}")
        a(f"ds_read_b128 {vr(vl+4,4)}, v{va} offset:{vo+672}")
        for r in range(4, 8): a(f"v_exp_f32 v{sc+r}, v{sc+r}")
        for r in range(4): a(f"v_cvt_pk_bf16_f32 v{P[0]+r}, v{sc+2*r}, v{sc+2*r+1}")
        for r in range(8, 12): a(f"v_exp_f32 v{sc+r}, v{sc+r}")
        mfma32(a, O, vc, P[0])
        for r in range(12, 16): a(f"v_exp_f32 v{sc+r}, v{sc+r}")
        for r in range(4): a(f"v_cvt_pk_bf16_f32 v{P[1]+r}, v{sc+8+2*r}, v{sc+8+2*r+1}")
        a("s_nop 1")
        mfma32(a, O, vc + 4, P[1])
    a("v_mov_b32 v120, v123"); a("v_mov_b32 v121, v124"); a("v_mov_b32 v122, v125")
    a("s_add_u32 s41, s41, 1")
    a(f"s_mov_b32 s43, {CH}")
    a(f"s_mov_b32 s44, {-2*CH & 0xffffffff}")
    a("s_cmp_eq_u32 s41, 2")
    a("s_cselect_b32 s43, s44, s43")
    a("v_add_u32 v123, s43, v123"); a("v_add_u32 v124, s43, v124"); a("v_add_u32 v125, s43, v125")
    a("s_cmp_lt_u32 s41, 4")
    a(f"s_cbranch_scc1 L_{name}_chunk")
    a("s_waitcnt lgkmcnt(0)")
    a("s_nop 15")
    a("s_nop 3")
    a(f"v_mov_b32 v4, v{O+8}")
    a(f"v_mov_b32 v5, v{O+8}")
    a("s_nop 1")
    a("v_permlane32_swap_b32 v4, v5")
    a("v_mov_b32 v6, 0")
    for r in range(12): a(f"v_fma_f32 v6, v{O+r}, 0, v6")
    a(f"v_fma_f32 v6, v5, 0, v6")
    a(f"s_mov_b32 s43, {hex(f2u(2.0**100))}")
    a("v_cmp_neq_f32 vcc, 0, v6")
    a("v_cmp_nlt_f32 s[46:47], v5, s43")
    a("s_or_b64 vcc, vcc, s[46:47]")
    a("s_cmp_lg_u32 s40, 0")
    a(f"s_cbranch_scc1 L_{name}_store")
    a(f"s_cbranch_vccz L_{name}_noflag")
    a("v_mov_b32 v6, 1")
    a(f"v_mov_b32 v7, {FLAG}")
    a("ds_write_b32 v7, v6")
    a.label(f"L_{name}_noflag")
    a("s_waitcnt lgkmcnt(0)")
    a("s_barrier")
    a(f"v_mov_b32 v7, {FLAG}")
    a("ds_read_b32 v6, v7")
    a("s_waitcnt lgkmcnt(0)")
    a("v_readfirstlane_b32 s43, v6")
    a("s_cmp_eq_u32 s43, 0")
    a(f"s_cbranch_scc1 L_{name}_store")
    a("s_mov_b32 s40, 1")
    a(f"s_branch L_{name}_restart")
    a.label(f"L_{name}_store")
    a("v_rcp_f32 v5, v5")
    a("s_nop 0")
    for r in range(12): a(f"v_mul_f32 v{O+r}, v5, v{O+r}")
    for r in range(6): a(f"v_cvt_pk_bf16_f32 v{S[0]+r}, v{O+2*r}, v{O+2*r+1}")
    a("s_lshr_b32 s34, s33, 4")
    a("s_mul_i32 s34, s34, 20480")
    a("s_lshl_b32 s36, s35, 4")
    a("s_add_u32 s34, s34, s36")
    a(f"s_add_u32 s34, s34, {OF_OFF}")
    a("v_mul_u32_u24 v4, 20, v1")
    a("v_lshl_add_u32 v4, v2, 2, v4")
    for grp in range(3):
        a(f"v_add_u32 v5, {8*grp}, v4")
        a("v_lshrrev_b32 v6, 5, v5")
        a("v_lshlrev_b32 v6, 10, v6")
        a("v_bfe_u32 v7, v5, 2, 2")
        a("v_lshl_add_u32 v6, v7, 8, v6")
        a("v_bfe_u32 v7, v5, 4, 1")
        a("v_lshl_add_u32 v6, v7, 3, v6")
        if grp == 2:
            a("v_cmp_eq_u32 vcc, 0, v2")
            a("s_and_saveexec_b64 s[46:47], vcc")
        a(f"buffer_store_dwordx2 {vr(S[0]+2*grp,2)}, v6, s[28:31], s34 offen")
    a.label(f"L_{name}_end")
    a("s_endpgm")
    return name, a.text(), kd(name, 128), f"; @launch kernel={name} grid=(256,1,1) block=(512,1,1) lds={LDS}"

def gen_oproj(layer):
    name = f"oproj{layer}_kernel"
    a = Asm(); header(a, name)
    RES = 102400
    LDS = RES + 10240
    a(f"s_cmp_ge_u32 s2, 256")
    a(f"s_cbranch_scc1 L_{name}_end")
    a(f"s_load_dwordx2 s[4:5], s[0:1], 0")
    a(f"s_load_dwordx2 s[6:7], s[0:1], 32")
    a(f"s_load_dwordx2 s[12:13], s[0:1], 96")
    a("v_lshrrev_b32 v1, 6, v0")
    a("v_and_b32 v0, 63, v0")
    a("v_readfirstlane_b32 s32, v1")
    a("s_and_b32 s33, s2, 7")
    a("s_lshl_b32 s33, s33, 2")
    a("s_lshr_b32 s34, s2, 3")
    a("s_and_b32 s34, s34, 3")
    a("s_add_u32 s33, s33, s34")
    a("s_lshr_b32 s34, s2, 5")
    a("s_waitcnt lgkmcnt(0)")
    if layer == 1:
        a(f"s_add_u32 s4, s12, {hex(X2_OFF)}")
        a(f"s_addc_u32 s5, s13, 0")
    srd(a, 16, 4, 5, XBYTES)
    srd(a, 20, 6, 7, 819200)
    srd(a, 28, 12, 13, WS_SIZE)
    a("v_and_b32 v1, 15, v0")
    a("v_lshrrev_b32 v2, 4, v0")
    a("s_mul_i32 s35, s32, 320")
    a("s_mul_i32 s36, s34, 160")
    a("s_mov_b32 s37, 6554")
    a("s_movk_i32 s38, 1280")
    for jj in range(5):
        a(f"v_add_u32 v10, s35, v0")
        if jj: a(f"v_add_u32 v10, {64*jj}, v10")
        a("v_mul_lo_u32 v11, v10, s37")
        a("v_lshrrev_b32 v11, 16, v11")
        a("v_mul_u32_u24 v12, 10, v11")
        a("v_sub_u32 v12, v10, v12")
        a("v_mul_lo_u32 v11, v11, s38")
        a("v_lshl_add_u32 v11, v12, 4, v11")
        a(f"v_add_u32 v{4+jj}, s36, v11")
    a("v_lshlrev_b32 v3, 4, v0")
    a("s_mul_i32 s40, s33, 81920")
    a("s_mul_i32 s41, s32, 5120")
    a("s_cmp_ge_u32 s32, 2")
    a(f"s_cbranch_scc1 L_{name}_nores")
    for jj in range(5):
        a(f"s_add_u32 s44, s41, {RES + jj*1024}")
        a("s_mov_b32 m0, s44")
        a("s_nop 0")
        a(f"buffer_load_dwordx4 v{4+jj}, s[16:19], s40 offen lds")
    a.label(f"L_{name}_nores")
    a("s_lshl_b32 s42, s33, 2")
    a("s_add_u32 s42, s42, s32")
    a("s_mul_i32 s43, s42, 20480")
    a(f"s_add_u32 s43, s43, {OF_OFF}")
    XF = 64
    for st in range(5):
        for jj in range(5):
            a(f"s_add_u32 s44, s41, {st*20480 + jj*1024}")
            a("s_mov_b32 m0, s44")
            a(f"s_mov_b32 s45, {st*128*1280}")
            a(f"buffer_load_dwordx4 v{4+jj}, s[20:23], s45 offen lds")
        a(f"s_add_u32 s45, s43, {st*4096}")
        for k4 in range(4):
            a(f"buffer_load_dwordx4 {vr(XF+4*(4*st+k4),4)}, v3, s[28:31], s45 offen offset:{1024*k4}")
    a("v_lshrrev_b32 v10, 2, v1")
    a("v_lshl_add_u32 v10, v2, 2, v10")
    a("v_and_b32 v11, 3, v1")
    a("v_lshlrev_b32 v11, 3, v11")
    a("v_mul_u32_u24 v12, 160, v10")
    a("v_add_u32 v20, v12, v11")
    a(f"v_add_u32 v21, {51200}, v20")
    a("s_mul_i32 s44, s32, 2560")
    a(f"s_add_u32 s44, s44, {RES}")
    a("v_add_u32 v22, s44, v20")
    ACC = 24
    WF = 144
    for r in range(ACC, ACC + 20): a(f"v_mov_b32 v{r}, 0")
    def reads(ks, fs):
        b = WF + 20 * fs
        for nt in range(5):
            for half in range(2):
                off = (32 * ks + 16 * half) * 160 + 32 * nt
                va = 20
                if off >= 51200: off -= 51200; va = 21
                a(f"ds_read_b64_tr_b16 {vr(b+4*nt+2*half,2)}, v{va} offset:{off}")
    for st in range(5):
        a(f"s_waitcnt vmcnt({9*(4-st)})")
        a("s_barrier")
        reads(4 * st, 0)
        for k4 in range(4):
            a("s_waitcnt lgkmcnt(0)")
            if k4 < 3: reads(4 * st + k4 + 1, (k4 + 1) % 2)
            b = WF + 20 * (k4 % 2)
            for nt in range(5): mfma16(a, ACC + 4 * nt, XF + 4 * (4 * st + k4), b + 4 * nt)
    RS = WF
    for nt in range(5): a(f"ds_read_b64_tr_b16 {vr(RS+2*nt,2)}, v22 offset:{32*nt}")
    SUM = 44; SQ = 48; T = 52
    for r in range(8): a(f"v_mov_b32 v{SUM+r}, 0")
    a("s_mul_i32 s44, s34, 327680")
    a("s_lshr_b32 s45, s42, 1")
    a("s_lshl_b32 s45, s45, 10")
    a("s_add_u32 s44, s44, s45")
    a("s_and_b32 s45, s42, 1")
    a("s_lshl_b32 s45, s45, 3")
    a("s_add_u32 s44, s44, s45")
    a(f"s_add_u32 s44, s44, {X1T_OFF}")
    a("s_mov_b32 s46, 0xffff0000")
    a("s_waitcnt lgkmcnt(0)")
    a("s_nop 7")
    OUT = WF + 12
    for nt in range(5):
        for h in range(2):
            a(f"v_lshlrev_b32 v{T}, 16, v{RS+2*nt+h}")
            a(f"v_and_b32 v{T+1}, s46, v{RS+2*nt+h}")
            a(f"v_add_f32 v{T}, v{T}, v{ACC+4*nt+2*h}")
            a(f"v_add_f32 v{T+1}, v{T+1}, v{ACC+4*nt+2*h+1}")
            o = OUT + 2 * nt + h
            a(f"v_cvt_pk_bf16_f32 v{o}, v{T}, v{T+1}")
            a(f"v_lshlrev_b32 v{T}, 16, v{o}")
            a(f"v_and_b32 v{T+1}, s46, v{o}")
            a(f"v_add_f32 v{SUM+2*h}, v{SUM+2*h}, v{T}")
            a(f"v_add_f32 v{SUM+2*h+1}, v{SUM+2*h+1}, v{T+1}")
            a(f"v_fma_f32 v{SQ+2*h}, v{T}, v{T}, v{SQ+2*h}")
            a(f"v_fma_f32 v{SQ+2*h+1}, v{T+1}, v{T+1}, v{SQ+2*h+1}")
        a(f"buffer_store_dwordx2 {vr(OUT+2*nt,2)}, v3, s[28:31], s44 offen")
        if nt < 4: a("s_add_u32 s44, s44, 65536")
    for sh in (8, 4, 2, 1):
        a("s_nop 1")
        for r in range(8):
            a(f"v_add_f32_dpp v{SUM+r}, v{SUM+r}, v{SUM+r} row_ror:{sh} row_mask:0xf bank_mask:0xf")
    a("s_lshl_b32 s44, s42, 7")
    a(f"s_add_u32 s44, s44, {ST_OFF}")
    a("v_lshlrev_b32 v10, 5, v2")
    a("v_cmp_eq_u32 vcc, 0, v1")
    a("s_and_saveexec_b64 s[46:47], vcc")
    for r in range(4):
        a(f"buffer_atomic_add_f32 v{SUM+r}, v10, s[28:31], s44 offen offset:{8*r}")
        a(f"buffer_atomic_add_f32 v{SQ+r}, v10, s[28:31], s44 offen offset:{8*r+4}")
    a.label(f"L_{name}_end")
    a("s_endpgm")
    return name, a.text(), kd(name, 192), f"; @launch kernel={name} grid=(256,1,1) block=(256,1,1) lds={LDS}"

def mfma16a(a, d, x, y):
    a(f"v_mfma_f32_16x16x32_bf16 a[{d}:{d+3}], {vr(x,4)}, {vr(y,4)}, a[{d}:{d+3}]")

def gen_mlp(which, layer):
    name = f"mlp{which}_{layer}_kernel"
    a = Asm(); header(a, name)
    norm = which == 1
    U = 4
    RING = U * 4096
    TAB = 4 * RING
    RED = 0
    LDS = max(TAB + 4 * 4096, 4 * 15 * 1024 + 4 * 2560)
    NWG = 216 if norm else 256
    WSTR = 3456 if norm else 4096
    WBYTES = 2048 * 1728 * 2
    XDT = 65536 if norm else 55296
    XOFF = X1T_OFF if norm else GF_OFF
    a(f"s_cmp_ge_u32 s2, {NWG}")
    a(f"s_cbranch_scc1 L_{name}_end")
    a(f"s_load_dwordx4 s[4:7], s[0:1], {48 if norm else 64}")
    a(f"s_load_dwordx2 s[12:13], s[0:1], 96")
    if not norm:
        a(f"s_load_dwordx2 s[8:9], s[0:1], 80")
    a("v_lshrrev_b32 v1, 6, v0")
    a("v_and_b32 v0, 63, v0")
    a("v_readfirstlane_b32 s32, v1")
    a("s_and_b32 s33, s2, 7")
    a(f"s_mul_i32 s33, s33, {NWG//8}")
    a("s_lshr_b32 s34, s2, 3")
    a("s_add_u32 s33, s33, s34")
    a("s_lshr_b32 s34, s33, 3")
    a("s_and_b32 s33, s33, 7")
    a("s_waitcnt lgkmcnt(0)")
    srd(a, 20, 4, 5, WBYTES)
    srd(a, 24, 6, 7, 1728 * 2 if norm else 2048 * 2)
    srd(a, 28, 12, 13, WS_SIZE)
    if not norm:
        if layer == 0:
            a(f"s_add_u32 s8, s12, {hex(X2_OFF)}")
            a(f"s_addc_u32 s9, s13, 0")
        srd(a, 16, 8, 9, XBYTES)
    a("v_and_b32 v1, 15, v0")
    a("v_lshrrev_b32 v2, 4, v0")
    a("v_lshlrev_b32 v3, 4, v0")
    if norm:
        a("s_lshl_b32 s35, s32, 4")
        a("s_mov_b32 s36, 16")
    else:
        a("s_mul_i32 s35, s32, 14")
        a("s_min_u32 s35, s35, 41")
        a("s_cmp_ge_u32 s32, 2")
        a("s_cselect_b32 s36, 13, 14")
    TB = 40
    if norm:
        a("s_lshl_b32 s37, s32, 12")
        a(f"s_add_u32 s37, s37, {ST_OFF}")
        a("v_lshlrev_b32 v4, 3, v0")
        for i2 in range(8):
            a(f"buffer_load_dwordx2 {vr(TB+2*i2,2)}, v4, s[28:31], s37 offen offset:{512*i2}")
    a("v_lshrrev_b32 v10, 3, v0")
    a("v_lshrrev_b32 v11, 1, v10")
    a("v_and_b32 v11, 3, v11")
    a("v_lshlrev_b32 v11, 1, v11")
    a("v_and_b32 v12, 7, v0")
    a("v_xor_b32 v12, v12, v11")
    a(f"s_movk_i32 s38, {WSTR}")
    a("v_mul_lo_u32 v5, v10, s38")
    a("v_lshl_add_u32 v5, v12, 4, v5")
    a(f"s_mul_i32 s40, s35, {32*WSTR}")
    a("s_lshl_b32 s41, s34, 7")
    a("s_add_u32 s40, s40, s41")
    a(f"s_mul_i32 s41, s33, {5*XDT}")
    a("s_lshl_b32 s42, s35, 10")
    a("s_add_u32 s41, s41, s42")
    a(f"s_add_u32 s41, s41, {XOFF}")
    a(f"s_mul_i32 s42, s32, {RING}")
    XR = 64
    XN = 144
    WF = 184
    TT = 216
    TMP = 232
    NV = 240
    def issue(slot):
        for jj in range(4):
            a(f"s_add_u32 s44, s42, {slot*4096 + jj*1024}")
            a("s_mov_b32 m0, s44")
            a(f"s_add_u32 s45, s40, {8*jj*WSTR}")
            a(f"buffer_load_dwordx4 v5, s[20:23], s45 offen lds")
        for dt in range(5):
            a(f"s_add_u32 s45, s41, {dt*XDT}")
            a(f"buffer_load_dwordx4 {vr(XR+20*slot+4*dt,4)}, v3, s[28:31], s45 offen")
        a(f"s_add_u32 s40, s40, {32*WSTR}")
        a("s_add_u32 s41, s41, 1024")
    for u in range(U): issue(u)
    a("v_lshrrev_b32 v10, 2, v1")
    a("v_lshl_add_u32 v10, v2, 2, v10")
    a("v_lshrrev_b32 v11, 1, v10")
    a("v_and_b32 v11, 3, v11")
    a("v_and_b32 v12, 3, v1")
    a("v_lshlrev_b32 v12, 3, v12")
    a("v_lshl_add_u32 v12, v10, 7, v12")
    a("v_add_u32 v12, s42, v12")
    for nt in range(4):
        a(f"v_xor_b32 v13, {nt}, v11")
        a(f"v_lshl_add_u32 v{6+nt}, v13, 5, v12")
    for r in range(80): a(f"v_accvgpr_write_b32 a{r}, 0")
    a("s_mov_b32 s46, 0xffff0000")
    if norm:
        a(f"s_waitcnt vmcnt({9*U})")
        a("s_lshl_b32 s43, s32, 12")
        a(f"s_add_u32 s43, s43, {TAB}")
        a("v_lshlrev_b32 v14, 2, v0")
        a("v_add_u32 v14, s43, v14")
        a("v_lshlrev_b32 v15, 4, v2")
        a("v_add_u32 v15, s43, v15")
        a(f"s_mov_b32 s47, {hex(f2u(1.0/640))}")
        a(f"s_mov_b32 s48, {hex(f2u(1e-5))}")
        for i2 in range(8):
            m = TB + 2 * i2; q = m + 1
            a(f"v_mul_f32 v{m}, s47, v{m}")
            a(f"v_mul_f32 v{q}, s47, v{q}")
            a(f"v_fma_f32 v{q}, -v{m}, v{m}, v{q}")
            a(f"v_max_f32 v{q}, 0, v{q}")
            a(f"v_add_f32 v{TMP}, s48, v{q}")
            a(f"v_rsq_f32 v{TMP}, v{TMP}")
            a("s_nop 0")
            a(f"v_mul_f32 v{q}, v{q}, v{TMP}")
            a(f"v_fma_f32 v{q}, v{q}, v{TMP}, s48")
            a(f"v_rsq_f32 v{q}, v{q}")
            a("s_nop 0")
            a(f"v_mul_f32 v{q}, v{q}, v{TMP}")
            a(f"v_mul_f32 v{m}, v{m}, v{q}")
            a(f"v_sub_f32 v{m}, 0, v{m}")
            a(f"ds_write_b32 v14, v{q} offset:{256*i2}")
            a(f"ds_write_b32 v14, v{m} offset:{2048+256*i2}")
        a("s_waitcnt lgkmcnt(0)")
    def wreads(slot, fs):
        for nt in range(4):
            for half in range(2):
                a(f"ds_read_b64_tr_b16 {vr(WF+16*fs+4*nt+2*half,2)}, v{6+nt} offset:{slot*4096+half*2048}")
    def treads():
        a(f"ds_read_b128 {vr(TT,4)}, v15")
        a(f"ds_read_b128 {vr(TT+4,4)}, v15 offset:64")
        a(f"ds_read_b128 {vr(TT+8,4)}, v15 offset:2048")
        a(f"ds_read_b128 {vr(TT+12,4)}, v15 offset:2112")
        a("v_add_u32 v15, 128, v15")
    def norm_ops(slot, fs):
        ops = []
        for dt in range(5):
            for dw in range(4):
                r = XR + 20 * slot + 4 * dt + dw
                e = (dw % 2) * 2 + (dw // 2) * 4
                t0 = TMP + 2 * (dw % 2); t1 = t0 + 1
                ops.append(f"v_lshlrev_b32 v{t0}, 16, v{r}")
                ops.append(f"v_and_b32 v{t1}, s46, v{r}")
                ops.append(f"v_fma_f32 v{t0}, v{t0}, v{TT+e}, v{TT+8+e}")
                ops.append(f"v_fma_f32 v{t1}, v{t1}, v{TT+e+1}, v{TT+8+e+1}")
                ops.append(f"v_cvt_pk_bf16_f32 v{XN+20*fs+4*dt+dw}, v{t0}, v{t1}")
        return ops
    def mfma_list(slot, fs):
        l = []
        for dt in range(5):
            x = (XN + 20 * fs + 4 * dt) if norm else (XR + 20 * slot + 4 * dt)
            for nt in range(4):
                w = WF + 16 * fs + 4 * nt
                t = 4 * (dt * 4 + nt)
                l.append(f"v_mfma_f32_16x16x32_bf16 a[{t}:{t+3}], {vr(w,4)}, {vr(x,4)}, a[{t}:{t+3}]")
        return l
    a(f"s_waitcnt vmcnt({9*(U-1)})")
    if norm:
        treads()
        wreads(0, 0)
        a("s_waitcnt lgkmcnt(8)")
        for op in norm_ops(0, 0): a(op)
        a("s_waitcnt lgkmcnt(0)")
        issue(0)
    else:
        wreads(0, 0)
    a.label(f"L_{name}_loop")
    for u in range(U):
        fs = u % 2; nu = (u + 1) % U; nfs = 1 - fs
        if norm:
            a(f"s_waitcnt vmcnt({9*(U-1)}) lgkmcnt(0)")
            treads()
            wreads(nu, nfs)
            ml = mfma_list(u, fs)
            ops = norm_ops(nu, nfs)
            for m in ml[:3]: a(m)
            a("s_waitcnt lgkmcnt(8)")
            k = 3
            for idx, op in enumerate(ops):
                a(op)
                if idx % 6 == 5 and k < 20:
                    a(ml[k]); k += 1
            while k < 20: a(ml[k]); k += 1
            a("s_waitcnt lgkmcnt(0)")
            issue(nu)
        else:
            a(f"s_waitcnt vmcnt({9*(U-2)}) lgkmcnt(0)")
            wreads(nu, nfs)
            for m in mfma_list(u, fs): a(m)
            issue(u)
        a("s_sub_u32 s36, s36, 1")
        a("s_cmp_eq_u32 s36, 0")
        if u < U - 1: a(f"s_cbranch_scc1 L_{name}_done")
        else: a(f"s_cbranch_scc0 L_{name}_loop")
    a.label(f"L_{name}_done")
    a("s_waitcnt vmcnt(0) lgkmcnt(0)")
    EB = 64
    if norm:
        a("s_lshl_b32 s43, s34, 7")
        a("s_lshl_b32 s44, s32, 5")
        a("s_add_u32 s43, s43, s44")
        a("v_lshlrev_b32 v10, 3, v2")
        a(f"buffer_load_dwordx2 {vr(EB,2)}, v10, s[24:27], s43 offen")
    else:
        a("s_lshl_b32 s43, s34, 7")
        a("s_lshl_b32 s44, s32, 5")
        a("s_add_u32 s43, s43, s44")
        a("v_lshlrev_b32 v10, 3, v2")
        a(f"buffer_load_dwordx2 {vr(EB,2)}, v10, s[24:27], s43 offen")
        a("s_mul_i32 s43, s33, 327680")
        a("s_lshl_b32 s44, s34, 11")
        a("s_add_u32 s43, s43, s44")
        a("s_lshr_b32 s44, s32, 1")
        a("s_lshl_b32 s44, s44, 10")
        a("s_add_u32 s43, s43, s44")
        a("s_and_b32 s44, s32, 1")
        a("s_lshl_b32 s44, s44, 3")
        a("s_add_u32 s43, s43, s44")
        a(f"s_add_u32 s43, s43, {X1T_OFF}")
        for dt in range(5):
            a(f"buffer_load_dwordx2 {vr(EB+2+2*dt,2)}, v3, s[28:31], s43 offen")
            if dt < 4: a("s_add_u32 s43, s43, 65536")
    a("s_barrier")
    for nt in range(4):
        a(f"s_cmp_eq_u32 s32, {nt}")
        a(f"s_cbranch_scc1 L_{name}_skipw{nt}")
        a(f"s_sub_u32 s43, s32, {nt+1}")
        a("s_and_b32 s43, s43, 3")
        a("s_mul_i32 s43, s43, 5120")
        a(f"s_add_u32 s43, s43, {nt*15360}")
        a("v_add_u32 v10, s43, v3")
        for dt in range(5):
            t = 4 * (dt * 4 + nt)
            a(f"ds_write_b128 v10, a[{t}:{t+3}] offset:{dt*1024}")
        a.label(f"L_{name}_skipw{nt}")
    OWN = 96
    for nt in range(4):
        a(f"s_cmp_lg_u32 s32, {nt}")
        a(f"s_cbranch_scc1 L_{name}_skipo{nt}")
        for dt in range(5):
            for r in range(4):
                a(f"v_accvgpr_read_b32 v{OWN+4*dt+r}, a{4*(dt*4+nt)+r}")
        a.label(f"L_{name}_skipo{nt}")
    a("s_waitcnt lgkmcnt(0)")
    a("s_barrier")
    a("s_mul_i32 s43, s32, 15360")
    a("v_add_u32 v10, s43, v3")
    PR = 120
    for sidx in range(3):
        for dt in range(5):
            a(f"ds_read_b128 {vr(PR+20*sidx+4*dt,4)}, v10 offset:{sidx*5120+dt*1024}")
    a("s_waitcnt lgkmcnt(0)")
    for sidx in range(3):
        for r in range(20):
            a(f"v_add_f32 v{OWN+r}, v{OWN+r}, v{PR+20*sidx+r}")
    a("s_waitcnt vmcnt(0)")
    BI = 40
    a(f"v_lshlrev_b32 v{BI}, 16, v{EB}")
    a(f"v_and_b32 v{BI+1}, s46, v{EB}")
    a(f"v_lshlrev_b32 v{BI+2}, 16, v{EB+1}")
    a(f"v_and_b32 v{BI+3}, s46, v{EB+1}")
    if norm:
        c1 = -2.0 * math.log2(math.e) * 0.7978845608028654
        c2 = c1 * 0.044715
        a(f"s_mov_b32 s47, {hex(f2u(c1))}")
        a(f"s_mov_b32 s48, {hex(f2u(c2))}")
        a("v_mov_b32 v44, s47")
        a(f"s_mul_i32 s43, s33, {5*55296}")
        a("s_lshl_b32 s44, s34, 11")
        a("s_add_u32 s43, s43, s44")
        a("s_lshr_b32 s44, s32, 1")
        a("s_lshl_b32 s44, s44, 10")
        a("s_add_u32 s43, s43, s44")
        a("s_and_b32 s44, s32, 1")
        a("s_lshl_b32 s44, s44, 3")
        a("s_add_u32 s43, s43, s44")
        a(f"s_add_u32 s43, s43, {GF_OFF}")
        for dt in range(5):
            for r in range(4):
                u = OWN + 4 * dt + r; t = 48 + r
                a(f"v_add_f32 v{u}, v{u}, v{BI+r}")
                a(f"v_mul_f32 v{t}, v{u}, v{u}")
                a(f"v_fma_f32 v{t}, v{t}, s48, v44")
                a(f"v_mul_f32 v{t}, v{t}, v{u}")
                a(f"v_exp_f32 v{t}, v{t}")
                a("s_nop 0")
                a(f"v_add_f32 v{t}, 1.0, v{t}")
                a(f"v_rcp_f32 v{t}, v{t}")
                a("s_nop 0")
                a(f"v_mul_f32 v{u}, v{u}, v{t}")
            o = 52 + 2 * dt
            a(f"v_cvt_pk_bf16_f32 v{o}, v{OWN+4*dt}, v{OWN+4*dt+1}")
            a(f"v_cvt_pk_bf16_f32 v{o+1}, v{OWN+4*dt+2}, v{OWN+4*dt+3}")
            a(f"buffer_store_dwordx2 {vr(o,2)}, v3, s[28:31], s43 offen")
            if dt < 4: a("s_add_u32 s43, s43, 55296")
    else:
        TR = 61440
        a("s_mul_i32 s43, s32, 2560")
        a(f"s_add_u32 s43, s43, {TR}")
        a("v_mul_u32_u24 v10, 640, v2")
        a("v_lshl_add_u32 v10, v1, 1, v10")
        a("v_add_u32 v10, s43, v10")
        for dt in range(5):
            for h in range(2):
                rr = EB + 2 + 2 * dt + h
                a(f"v_lshlrev_b32 v48, 16, v{rr}")
                a(f"v_and_b32 v49, s46, v{rr}")
                u = OWN + 4 * dt + 2 * h
                a(f"v_add_f32 v{u}, v{u}, v{BI+2*h}")
                a(f"v_add_f32 v{u+1}, v{u+1}, v{BI+2*h+1}")
                a(f"v_add_f32 v48, v48, v{u}")
                a(f"v_add_f32 v49, v49, v{u+1}")
                a(f"v_cvt_pk_bf16_f32 v{50+h}, v48, v49")
                a(f"ds_write_b16 v10, v{50+h} offset:{(2*h)*160 + 32*dt}")
                a(f"ds_write_b16_d16_hi v10, v{50+h} offset:{(2*h+1)*160 + 32*dt}")
        a("s_waitcnt lgkmcnt(0)")
        a("s_lshl_b32 s44, s34, 6")
        a("s_lshl_b32 s45, s32, 4")
        a("s_add_u32 s44, s44, s45")
        a("s_mul_i32 s44, s44, 1280")
        a("s_mul_i32 s45, s33, 160")
        a("s_add_u32 s44, s44, s45")
        a("s_mov_b32 s47, 6554")
        a("s_movk_i32 s48, 1280")
        a("v_add_u32 v11, s43, v3")
        for j in range(3):
            a(f"ds_read_b128 {vr(56+4*j,4)}, v11 offset:{1024*j}")
        for j in range(3):
            a(f"v_add_u32 v12, {64*j}, v0")
            a("v_mul_lo_u32 v13, v12, s47")
            a("v_lshrrev_b32 v13, 16, v13")
            a("v_mul_u32_u24 v14, 10, v13")
            a("v_sub_u32 v14, v12, v14")
            a("v_mul_lo_u32 v13, v13, s48")
            a(f"v_lshl_add_u32 v{16+j}, v14, 4, v13")
        a("s_waitcnt lgkmcnt(0)")
        for j in range(3):
            if j == 2:
                a("v_cmp_gt_u32 vcc, 32, v0")
                a("s_and_saveexec_b64 s[46:47], vcc")
            a(f"buffer_store_dwordx4 {vr(56+4*j,4)}, v{16+j}, s[16:19], s44 offen")
    a.label(f"L_{name}_end")
    a("s_endpgm")
    kdt = kd(name, NV + 80).replace(f".amdhsa_accum_offset {NV+80}", f".amdhsa_accum_offset {NV}")
    return name, a.text(), kdt, f"; @launch kernel={name} grid=({NWG},1,1) block=(256,1,1) lds={LDS}"

KERNELS = []
for L in range(2):
    KERNELS += [gen_qkv(L), gen_attn(), gen_oproj(L), gen_mlp(1, L), gen_mlp(2, L)]

def emit(kernels, path, order=None):
    launches = [k[3] for k in kernels] if order is None else order
    hdr = open("interleave_layers__grouped_kv_mqa__mixer_token_mlp__prompt.s.ref").read().split("; Override")[0]
    out = hdr + "\n".join(launches) + "\n"
    out += '.amdgcn_target "amdgcn-amd-amdhsa--gfx950"\n.text\n'
    seen = set()
    for k in kernels:
        if k[0] in seen: continue
        seen.add(k[0]); out += k[1]
    out += '.section .rodata,"a"\n'
    seen = set()
    for k in kernels:
        if k[0] in seen: continue
        seen.add(k[0]); out += k[2]
    open(path, "w").write(out)

if __name__ == "__main__":
    emit(KERNELS, sys.argv[1] if len(sys.argv) > 1 else "k.s")
```

```python
import struct, sys, math, os

def f2u(x): return struct.unpack("<I", struct.pack("<f", x))[0]

QT_OFF   = 0
KV_OFF   = 0x300000
OF_OFF   = 0x400000
X1T_OFF  = 0x700000
ST_OFF   = 0xA00000
GF_OFF   = 0xB00000
X2_OFF   = 0xE00000
WS_SIZE  = 0x10000000
KVT = 2624
XBYTES = 2048 * 640 * 2

class Asm:
    def __init__(self): self.l = []
    def __call__(self, s):
        for x in s.strip("\n").split("\n"):
            self.l.append("    " + x.strip())
    def label(self, n): self.l.append(n + ":")
    def raw(self, s): self.l.append(s)
    def text(self): return "\n".join(self.l) + "\n"

def vr(b, n=1): return f"v{b}" if n == 1 else f"v[{b}:{b+n-1}]"
def sr(b, n=1): return f"s{b}" if n == 1 else f"s[{b}:{b+n-1}]"

def srd(a, d, lo, hi, nbytes):
    a(f"s_mov_b32 s{d}, s{lo}")
    a(f"s_and_b32 s{d+1}, s{hi}, 0xffff")
    a(f"s_mov_b32 s{d+2}, {hex(nbytes)}")
    a(f"s_mov_b32 s{d+3}, 0x00020000")

def header(a, name):
    a.raw(f".globl {name}\n.p2align 8\n.type {name},@function\n{name}:")

def kd(name, nv, ns=102):
    acc = (nv + 3) // 4 * 4
    return f""".p2align 6
.amdhsa_kernel {name}
  .amdhsa_next_free_vgpr {nv}
  .amdhsa_next_free_sgpr {ns}
  .amdhsa_accum_offset {acc}
  .amdhsa_group_segment_fixed_size 0
  .amdhsa_kernarg_size 104
  .amdhsa_user_sgpr_count 2
  .amdhsa_user_sgpr_kernarg_segment_ptr 1
  .amdhsa_system_sgpr_workgroup_id_x 1
.end_amdhsa_kernel
"""

STAMPS = False
DBG_OFF = 0x8000000
class Stamper:
    def __init__(self, a, kidx, maxw): self.a = a; self.n = 0; self.kidx = kidx; self.maxw = maxw
    def stamp(self):
        if not STAMPS: return
        self.a(f"s_memtime s[{72+2*self.n}:{73+2*self.n}]"); self.n += 1
    def real(self):
        if not STAMPS: return
        self.a(f"s_memrealtime s[{72+2*self.n}:{73+2*self.n}]"); self.n += 1
    def flush(self, wave_s="s32", srd_="s[28:31]"):
        if not STAMPS: return
        a = self.a
        a("s_mov_b64 exec, -1")
        a("s_waitcnt lgkmcnt(0) vmcnt(0)")
        a(f"s_mul_i32 s58, s2, {self.maxw}")
        a(f"s_add_u32 s58, s58, {wave_s}")
        a("s_lshl_b32 s58, s58, 6")
        a(f"s_add_u32 s58, s58, {DBG_OFF + self.kidx * 0x100000}")
        a("v_mov_b32 v0, 0")
        for i in range(self.n):
            a(f"v_mov_b32 v1, s{72+2*i}")
            a(f"buffer_store_dword v1, v0, {srd_}, s58 offen offset:{4*i}")
        a("s_waitcnt vmcnt(0)")

def mfma16(a, d, x, y, c=None):
    c = vr(d, 4) if c is None else c
    a(f"v_mfma_f32_16x16x32_bf16 {vr(d,4)}, {vr(x,4)}, {vr(y,4)}, {c}")

def gen_qkv(layer):
    name = f"qkv{layer}_kernel"
    a = Asm(); header(a, name)
    WB = 0; WST = 20480
    XB = 61440; XST = 16384
    WKV = 110592
    MISC = 136192
    LDS = MISC + 512
    a(f"s_cmp_ge_u32 s2, 256")
    a(f"s_cbranch_scc1 L_{name}_end")
    S = Stamper(a, 0 + 5*layer, 4); S.real(); S.stamp()
    a(f"s_load_dwordx2 s[4:5], s[0:1], 0")
    a(f"s_load_dwordx4 s[8:11], s[0:1], 16")
    a(f"s_load_dwordx2 s[6:7], s[0:1], 8")
    a(f"s_load_dwordx2 s[12:13], s[0:1], 96")
    a("v_lshrrev_b32 v1, 6, v0")
    a("v_and_b32 v0, 63, v0")
    a("v_readfirstlane_b32 s32, v1")
    a("s_and_b32 s33, s2, 7")
    a("s_lshr_b32 s34, s2, 3")
    a("s_and_b32 s34, s34, 3")
    a("s_lshl_b32 s34, s34, 3")
    a("s_add_u32 s33, s33, s34")
    a("s_lshr_b32 s34, s2, 5")
    a("s_waitcnt lgkmcnt(0)")
    if layer == 1:
        a(f"s_add_u32 s4, s12, {hex(X2_OFF)}")
        a(f"s_addc_u32 s5, s13, 0")
    srd(a, 16, 4, 5, XBYTES)
    srd(a, 20, 6, 7, 819200)
    a("s_cmp_eq_u32 s34, 0")
    a("s_cselect_b32 s14, s8, s10")
    a("s_cselect_b32 s15, s9, s11")
    srd(a, 24, 14, 15, 25600)
    srd(a, 28, 12, 13, WS_SIZE)
    a("v_and_b32 v1, 15, v0")
    a("v_lshrrev_b32 v2, 4, v0")
    a("s_mul_i32 s35, s32, 320")
    a("s_mul_i32 s36, s34, 160")
    a("s_mov_b32 s37, 6554")
    a("s_movk_i32 s38, 1280")
    for jj in range(5):
        a(f"v_add_u32 v10, s35, v0")
        if jj: a(f"v_add_u32 v10, {64*jj}, v10")
        a("v_mul_lo_u32 v11, v10, s37")
        a("v_lshrrev_b32 v11, 16, v11")
        a("v_mul_u32_u24 v12, 10, v11")
        a("v_sub_u32 v12, v10, v12")
        a("v_mul_lo_u32 v11, v11, s38")
        a("v_lshl_add_u32 v11, v12, 4, v11")
        a(f"v_add_u32 v{4+jj}, s36, v11")
    a("v_lshrrev_b32 v10, 3, v0")
    a("v_and_b32 v11, 7, v0")
    a("s_lshl_b32 s39, s32, 4")
    for rh, dst in ((0, 9), (1, 3)):
        a(f"v_add_u32 v12, {8*rh}, v10")
        a("v_lshrrev_b32 v13, 1, v12")
        a("v_and_b32 v13, 7, v13")
        a("v_xor_b32 v13, v13, v11")
        a("v_add_u32 v12, s39, v12")
        a("v_mul_lo_u32 v12, v12, s38")
        a(f"v_lshl_add_u32 v{dst}, v13, 4, v12")
    a("v_lshlrev_b32 v14, 4, v0")
    a("s_mul_i32 s40, s33, 81920")
    a("s_mul_i32 s41, s32, 5120")
    a("s_lshl_b32 s42, s32, 12")
    a("s_cmp_ge_u32 s34, 2")
    a(f"s_cbranch_scc1 L_{name}_nokv")
    for it in range(7):
        a(f"s_add_u32 s43, s32, {4*it}")
        a("s_min_u32 s43, s43, 24")
        a("s_lshl_b32 s43, s43, 10")
        a(f"s_add_u32 s44, s43, {WKV}")
        a("s_mov_b32 m0, s44")
        a("s_nop 0")
        a("buffer_load_dwordx4 v14, s[24:27], s43 offen lds")
    a.label(f"L_{name}_nokv")
    def stage_ops(st):
        buf = st % 3
        ops = []
        for jj in range(5):
            ops.append([f"s_add_u32 s44, s41, {WB + buf*WST + jj*1024}", "s_mov_b32 m0, s44",
                        f"s_mov_b32 s43, {st*128*1280}", f"buffer_load_dwordx4 v{4+jj}, s[20:23], s43 offen lds"])
        for kb in range(2):
            for rh, vo in ((0, 9), (1, 3)):
                ops.append([f"s_add_u32 s44, s42, {XB + buf*XST + kb*2048 + rh*1024}", "s_mov_b32 m0, s44",
                            f"s_add_u32 s43, s40, {st*256 + kb*128}", f"buffer_load_dwordx4 v{vo}, s[16:19], s43 offen lds"])
        return ops
    def issue_stage(st):
        for op in stage_ops(st):
            for x in op: a(x)
    for st in range(2): issue_stage(st)
    S.stamp()
    a("v_lshrrev_b32 v10, 1, v1")
    a("v_and_b32 v10, 7, v10")
    a("v_lshrrev_b32 v11, 1, v2")
    a("v_and_b32 v12, 1, v2")
    a("v_lshlrev_b32 v13, 7, v1")
    a("v_lshl_add_u32 v13, v12, 3, v13")
    a("v_add_u32 v13, s42, v13")
    a(f"v_add_u32 v13, {XB}, v13")
    for h in range(2):
        for sec in range(2):
            a(f"v_add_u32 v15, {4*h + 2*sec}, v11")
            a("v_xor_b32 v15, v15, v10")
            a(f"v_lshl_add_u32 v{16 + 2*h + sec}, v15, 4, v13")
    a("v_lshrrev_b32 v10, 2, v1")
    a("v_lshl_add_u32 v10, v2, 2, v10")
    a("v_and_b32 v11, 3, v1")
    a("v_lshlrev_b32 v11, 3, v11")
    a("v_mul_u32_u24 v12, 160, v10")
    a("v_add_u32 v20, v12, v11")
    a("s_lshl_b32 s43, s32, 5")
    a("v_add_u32 v21, s43, v20")
    a("v_mul_u32_u24 v12, 40, v10")
    a("v_add_u32 v12, v12, v11")
    a(f"v_add_u32 v22, {WKV}, v12")
    ONES = 24
    ACC = 28
    CS4 = 56; CS5 = 60; CS6 = 64; CSO = 68; RS = 72; GR = 76
    FR = 80
    for r in range(4): a(f"v_mov_b32 v{ONES+r}, 0x3f803f80")
    for r in range(ACC, 80): a(f"v_mov_b32 v{r}, 0")
    def reads(st, ks4, fs, kv):
        buf = st % 3
        b = FR + 36 * fs
        kb = ks4 // 2; h = ks4 % 2
        xo = buf * XST + kb * 2048
        a(f"ds_read_b64 {vr(b,2)}, v{16+2*h} offset:{xo}")
        a(f"ds_read_b64 {vr(b+2,2)}, v{17+2*h} offset:{xo}")
        for nt in range(5):
            for half in range(2):
                off = WB + buf * WST + (32 * ks4 + 16 * half) * 160 + 32 * nt
                a(f"ds_read_b64_tr_b16 {vr(b+4+4*nt+2*half,2)}, v20 offset:{off}")
        for half in range(2):
            off = WB + buf * WST + (32 * ks4 + 16 * half) * 160
            a(f"ds_read_b64_tr_b16 {vr(b+32+2*half,2)}, v21 offset:{off}")
        if kv:
            for t in range(2):
                for half in range(2):
                    off = (st * 128 + 32 * ks4 + 16 * half) * 40 + 32 * t
                    a(f"ds_read_b64_tr_b16 {vr(b+24+4*t+2*half,2)}, v22 offset:{off}")
    def mfmas(fs, kv, pend):
        b = FR + 36 * fs
        l = [(ACC + 4 * nt, b + 4 + 4 * nt, b) for nt in range(5)]
        l += [(CS4, b + 4 + 16, ONES), (CSO, b + 32, ONES), (RS, ONES, b), (GR, b, b)]
        if kv:
            l += [(ACC + 20, b + 24, b), (ACC + 24, b + 28, b), (CS5, b + 24, ONES), (CS6, b + 28, ONES)]
        for idx, (d, x, y) in enumerate(l):
            mfma16(a, d, x, y)
            if idx % 3 == 1 and pend:
                for x_ in pend.pop(0): a(x_)
    def main_loop(kv):
        waits = [9, 9, 9, 9, 0]
        for st in range(5):
            a(f"s_waitcnt vmcnt({waits[st]})")
            a("s_barrier")
            if st == 0:
                if kv: S.stamp(); S.n -= 1
                else: S.stamp()
            pend = stage_ops(st + 2) if st + 2 < 5 else []
            reads(st, 0, 0, kv)
            for ks4 in range(4):
                a("s_waitcnt lgkmcnt(0)")
                if ks4 < 3: reads(st, ks4 + 1, (ks4 + 1) % 2, kv)
                mfmas(ks4 % 2, kv, pend)
            assert not pend
    a("s_cmp_ge_u32 s34, 2")
    a(f"s_cbranch_scc1 L_{name}_loopq")
    main_loop(True)
    a(f"s_branch L_{name}_epi")
    a.label(f"L_{name}_loopq")
    main_loop(False)
    a.label(f"L_{name}_epi")
    S.stamp()
    a("s_nop 7")
    a("s_nop 7")
    a("v_lshlrev_b32 v10, 4, v2")
    a("s_lshl_b32 s43, s32, 6")
    a(f"s_add_u32 s43, s43, {MISC}")
    a("v_add_u32 v11, s43, v10")
    a("v_cmp_eq_u32 vcc, 0, v1")
    a("s_and_saveexec_b64 s[46:47], vcc")
    a(f"ds_write_b128 v11, {vr(CSO,4)}")
    a("s_mov_b64 exec, s[46:47]")
    a("v_and_b32 v12, 3, v1")
    a(f"v_mov_b32 v13, v{GR}")
    for r in range(1, 4):
        a(f"v_cmp_eq_u32 vcc, {r}, v12")
        a("s_nop 1")
        a(f"v_cndmask_b32 v13, v13, v{GR+r}, vcc")
    a("v_lshrrev_b32 v12, 2, v1")
    a("v_lshl_add_u32 v12, v12, 4, v1")
    a("v_lshlrev_b32 v12, 2, v12")
    a("ds_bpermute_b32 v13, v12, v13")
    a("s_waitcnt lgkmcnt(0)")
    a("s_barrier")
    a(f"v_add_u32 v11, {MISC}, v10")
    CSX = FR
    for nt in range(4): a(f"ds_read_b128 {vr(CSX+4*nt,4)}, v11 offset:{64*nt}")
    a(f"s_mov_b32 s43, {hex(f2u(1.0/640))}")
    a(f"v_mul_f32 v14, s43, v{RS}")
    a("v_mul_f32 v13, s43, v13")
    a("v_fma_f32 v13, -v14, v14, v13")
    a("v_max_f32 v13, 0, v13")
    a(f"v_add_f32 v13, {hex(f2u(1e-5))}, v13")
    a("v_rsq_f32 v15, v13")
    a("s_nop 0")
    qs = (20 ** -0.5) * math.log2(math.e)
    a(f"v_mul_f32 v23, {hex(f2u(qs))}, v15")
    a("s_waitcnt lgkmcnt(0)")
    a("s_lshl_b32 s43, s33, 2")
    a("s_add_u32 s43, s43, s32")
    a("s_mul_i32 s44, s43, 20480")
    a("s_mul_i32 s45, s34, 2560")
    a("s_add_u32 s44, s44, s45")
    a(f"s_add_u32 s44, s44, {QT_OFF}")
    a("v_lshlrev_b32 v10, 3, v0")
    T = FR + 16
    for nt in range(5):
        cs = CSX + 4 * nt if nt < 4 else CS4
        for r in range(4):
            a(f"v_fma_f32 v{T+r}, -v14, v{cs+r}, v{ACC+4*nt+r}")
            a(f"v_mul_f32 v{T+r}, v23, v{T+r}")
        a(f"v_cvt_pk_bf16_f32 v{T+4+2*nt}, v{T}, v{T+1}")
        a(f"v_cvt_pk_bf16_f32 v{T+5+2*nt}, v{T+2}, v{T+3}")
        a(f"buffer_store_dwordx2 {vr(T+4+2*nt,2)}, v10, s[28:31], s44 offen offset:{512*nt}")
    a("s_cmp_lg_u32 s32, 0")
    a(f"s_cbranch_scc1 L_{name}_nozero")
    a("v_cmp_gt_u32 vcc, 16, v0")
    a("s_and_saveexec_b64 s[46:47], vcc")
    a("v_mov_b32 v11, 0")
    a("v_lshlrev_b32 v12, 2, v0")
    a("s_lshl_b32 s45, s2, 6")
    a(f"s_add_u32 s45, s45, {ST_OFF}")
    a("buffer_store_dword v11, v12, s[28:31], s45 offen")
    a("s_mov_b64 exec, s[46:47]")
    a.label(f"L_{name}_nozero")
    a("s_cmp_ge_u32 s34, 2")
    a(f"s_cbranch_scc1 L_{name}_fin")
    for t, cs in ((0, CS5), (1, CS6)):
        for r in range(4):
            a(f"v_fma_f32 v{T+4*t+r}, -v14, v{cs+r}, v{ACC+20+4*t+r}")
            a(f"v_mul_f32 v{T+4*t+r}, v15, v{T+4*t+r}")
    a("s_lshl_b32 s43, s33, 1")
    a("s_lshr_b32 s44, s32, 1")
    a("s_add_u32 s43, s43, s44")
    a(f"s_mul_i32 s43, s43, {KVT}")
    a(f"s_add_u32 s43, s43, {KV_OFF}")
    a("s_and_b32 s44, s32, 1")
    a("s_cmp_lg_u32 s34, 0")
    a(f"s_cbranch_scc1 L_{name}_vstore")
    a(f"v_cvt_pk_bf16_f32 v{T+8}, v{T}, v{T+1}")
    a(f"v_cvt_pk_bf16_f32 v{T+9}, v{T+2}, v{T+3}")
    a(f"v_cvt_pk_bf16_f32 v{T+10}, v{T+4}, v{T+5}")
    a(f"v_cvt_pk_bf16_f32 v{T+11}, v{T+6}, v{T+7}")
    a("s_lshl_b32 s45, s44, 4")
    a("v_add_u32 v10, s45, v1")
    a("v_lshrrev_b32 v11, 1, v2")
    a("v_lshlrev_b32 v11, 9, v11")
    a("v_lshl_add_u32 v11, v10, 4, v11")
    a("v_and_b32 v12, 1, v2")
    a("v_lshl_add_u32 v11, v12, 3, v11")
    a(f"buffer_store_dwordx2 {vr(T+8,2)}, v11, s[28:31], s43 offen")
    a("v_lshlrev_b32 v11, 2, v10")
    a("v_cmp_eq_u32 vcc, 0, v2")
    a("s_and_saveexec_b64 s[46:47], vcc")
    a(f"buffer_store_dword v{T+10}, v11, s[28:31], s43 offen offset:1024")
    a(f"buffer_store_dword v{T+11}, v11, s[28:31], s43 offen offset:1152")
    a("s_mov_b64 exec, s[46:47]")
    a(f"s_branch L_{name}_fin")
    a.label(f"L_{name}_vstore")
    for r in range(8): a(f"v_cvt_pk_bf16_f32 v{T+8+r}, v{T+r}, v{T+r}")
    a("s_mul_i32 s45, s44, 672")
    a("s_add_u32 s43, s43, s45")
    a("v_lshrrev_b32 v10, 3, v1")
    a("v_lshlrev_b32 v10, 2, v10")
    a("v_and_b32 v11, 3, v1")
    a("v_add_u32 v10, v10, v11")
    a("v_lshlrev_b32 v10, 1, v10")
    a("v_bfe_u32 v11, v1, 2, 1")
    a("v_mul_u32_u24 v11, 336, v11")
    a("v_add_u32 v10, v10, v11")
    a("v_lshl_add_u32 v11, v2, 6, v10")
    for r in range(4):
        a(f"buffer_store_short v{T+8+r}, v11, s[28:31], s43 offen offset:{1280 + 16*r}")
    a("v_cmp_eq_u32 vcc, 0, v2")
    a("s_and_saveexec_b64 s[46:47], vcc")
    for r in range(4):
        a(f"buffer_store_short v{T+12+r}, v10, s[28:31], s43 offen offset:{1280 + 16*(16+r)}")
    a(f"buffer_store_short v{ONES}, v10, s[28:31], s43 offen offset:{1280 + 16*20}")
    a("s_mov_b64 exec, s[46:47]")
    a.label(f"L_{name}_fin")
    S.stamp(); S.real(); S.flush()
    a.label(f"L_{name}_end")
    a("s_endpgm")
    return name, a.text(), kd(name, 160), f"; @launch kernel={name} grid=(256,1,1) block=(256,1,1) lds={LDS}"

def mfma32(a, d, x, y, c=None):
    c = vr(d, 16) if c is None else c
    a(f"v_mfma_f32_32x32x16_bf16 {vr(d,16)}, {vr(x,4)}, {vr(y,4)}, {c}")

def gen_attn():
    name = "attn_kernel"
    a = Asm(); header(a, name)
    NLT = 60
    CH = 16 * KVT
    QL = 56 * KVT
    FLAG = 154 * 1024
    LDS = FLAG + 64
    QMAX = 153
    QF1 = 8; QF2 = 12; NEGM = 16; S_ = [32, 48]; O = 64; P = [80, 88]
    KB = [96, 104]
    VB = [112, 120]
    AC = 128
    VOFF = 134; K2OFF = 135; PFO = 136; DUM = 140
    RT = 144
    NV = RT + 64
    a(f"s_cmp_ge_u32 s2, 256")
    a(f"s_cbranch_scc1 L_{name}_end")
    S = Stamper(a, 1, 8); S.real(); S.stamp()
    a(f"s_load_dwordx2 s[12:13], s[0:1], 96")
    a("s_load_dwordx2 s[14:15], s[0:1], 32")
    a("s_load_dwordx2 s[16:17], s[0:1], 48")
    a("v_lshrrev_b32 v1, 6, v0")
    a("v_and_b32 v0, 63, v0")
    a("v_readfirstlane_b32 s32, v1")
    a("s_and_b32 s33, s2, 7")
    a("s_lshr_b32 s34, s2, 3")
    a("s_and_b32 s34, s34, 3")
    a("s_lshl_b32 s34, s34, 3")
    a("s_add_u32 s33, s33, s34")
    a("s_lshl_b32 s33, s33, 6")
    a("s_lshr_b32 s34, s2, 5")
    a("s_lshl_b32 s34, s34, 3")
    a("s_add_u32 s33, s33, s34")
    a("v_lshlrev_b32 v3, 4, v0")
    a("v_lshrrev_b32 v4, 2, v0")
    a("v_lshlrev_b32 v4, 7, v4")
    a("v_and_b32 v5, 3, v0")
    a("v_lshl_add_u32 v4, v5, 4, v4")
    a("s_lshr_b32 s34, s33, 4")
    a("s_mul_i32 s34, s34, 20480")
    a("s_and_b32 s35, s33, 15")
    a("s_lshl_b32 s36, s35, 3")
    a("s_add_u32 s34, s34, s36")
    a(f"s_add_u32 s34, s34, {QT_OFF}")
    a("s_lshl_b32 s36, s32, 11")
    a("s_add_u32 s36, s36, s34")
    a("s_lshl_b32 s37, s32, 10")
    a(f"s_add_u32 s37, s37, {QL}")
    a("s_lshl_b32 s50, s32, 10")
    a("s_waitcnt lgkmcnt(0)")
    srd(a, 28, 12, 13, WS_SIZE)
    a("s_mov_b32 m0, s37")
    a("s_add_u32 s33, s33, s32")
    a("buffer_load_dwordx4 v4, s[28:31], s36 offen lds")
    a("s_cmp_ge_u32 s32, 2")
    a(f"s_cbranch_scc1 L_{name}_q1")
    a("s_add_u32 s37, s37, 8192")
    a("s_mov_b32 m0, s37")
    a("s_add_u32 s36, s36, 16384")
    a("buffer_load_dwordx4 v4, s[28:31], s36 offen lds")
    a.label(f"L_{name}_q1")
    a("s_mov_b32 s40, 0")
    def dma_piece():
        a(f"s_min_u32 s43, s50, {QMAX*1024}")
        a("s_mov_b32 m0, s43")
        a(f"s_add_u32 s43, s43, {KV_OFF}")
        a("buffer_load_dwordx4 v3, s[28:31], s43 offen lds")
        a("s_add_u32 s50, s50, 8192")
    for i in range(6): dma_piece()
    a("s_and_b32 s35, s33, 15")
    srd(a, 20, 14, 15, 819200)
    srd(a, 24, 16, 17, 2048*1728*2)
    a("s_lshr_b32 s54, s2, 3")
    a("s_lshl_b32 s54, s54, 3")
    a("s_add_u32 s54, s54, s32")
    a("s_mul_i32 s55, s54, 3200")
    a("s_and_b32 s56, s2, 7")
    a("s_mul_i32 s56, s56, 27")
    a("s_lshr_b32 s56, s56, 3")
    a("s_lshl_b32 s56, s56, 7")
    a(f"s_mul_i32 s57, s54, {8*3456}")
    a("s_add_u32 s56, s56, s57")
    a("v_lshrrev_b32 v4, 3, v0")
    a("v_mul_u32_u24 v4, 3456, v4")
    a("v_and_b32 v5, 7, v0")
    a(f"v_lshl_add_u32 v{PFO}, v5, 4, v4")
    a("v_and_b32 v1, 31, v0")
    a("v_lshrrev_b32 v2, 5, v0")
    a("v_mov_b32 v4, 0")
    a(f"v_mov_b32 v5, {FLAG}")
    a("ds_write_b32 v5, v4")
    for r in range(1, 4): a(f"v_mov_b32 v{QF2+r}, 0")
    for kb in KB + [RT + 16 * j for j in range(4)]:
        for r in range(5, 8): a(f"v_mov_b32 v{kb+r}, 0")
    a("v_min_u32 v4, 20, v1")
    a("v_subrev_u32 v5, 12, v1")
    a("v_cmp_lt_u32 vcc, 27, v1")
    a("s_nop 1")
    a("v_cndmask_b32 v4, v4, v5, vcc")
    a("v_lshlrev_b32 v4, 4, v4")
    a("v_mul_u32_u24 v5, 336, v2")
    a("v_add_u32 v4, v4, v5")
    a(f"v_add_u32 v{VOFF}, 1280, v4")
    a(f"v_lshlrev_b32 v{K2OFF}, 2, v0")
    a(f"v_add_u32 v{K2OFF}, 1024, v{K2OFF}")
    a("v_mul_u32_u24 v4, 5, v1")
    a("v_lshl_add_u32 v5, v2, 1, v4")
    a("v_lshlrev_b32 v5, 6, v5")
    a("s_lshl_b32 s36, s32, 3")
    a(f"s_add_u32 s36, s36, {QL}")
    a("v_add_u32 v5, s36, v5")
    a("v_add_u32 v6, 4, v4")
    a("v_lshlrev_b32 v6, 6, v6")
    a("v_lshl_add_u32 v6, v2, 2, v6")
    a("v_add_u32 v6, s36, v6")
    a("s_waitcnt vmcnt(4) lgkmcnt(0)")
    a("s_barrier")
    a(f"ds_read_b64 {vr(QF1,2)}, v5")
    a(f"ds_read_b64 {vr(QF1+2,2)}, v5 offset:64")
    a(f"ds_read_b32 v{QF2}, v6")
    a(f"ds_read_b128 {vr(KB[0],4)}, v3")
    a(f"ds_read_b32 v{KB[0]+4}, v{K2OFF}")
    a("s_waitcnt lgkmcnt(0)")
    mfma32(a, S_[0], KB[0], QF1, "0")
    mfma32(a, S_[0], KB[0] + 4, QF2)
    a("s_nop 15")
    a("s_nop 3")
    a(f"v_max_f32 v7, v{S_[0]}, v{S_[0]+1}")
    for r in range(2, 16, 2): a(f"v_max3_f32 v7, v7, v{S_[0]+r}, v{S_[0]+r+1}")
    a(f"s_branch L_{name}_havemax")
    a.label(f"L_{name}_restart")
    a(f"v_mov_b32 v{AC}, v3")
    a(f"v_mov_b32 v{AC+1}, v{K2OFF}")
    a(f"v_mov_b32 v7, 0xff800000")
    a("s_mov_b32 s41, 0")
    a.label(f"L_{name}_mx")
    a(f"ds_read_b128 {vr(KB[0],4)}, v{AC}")
    a(f"ds_read_b32 v{KB[0]+4}, v{AC+1}")
    a(f"v_add_u32 v{AC}, {KVT}, v{AC}")
    a(f"v_add_u32 v{AC+1}, {KVT}, v{AC+1}")
    a("s_waitcnt lgkmcnt(0)")
    mfma32(a, S_[0], KB[0], QF1, "0")
    mfma32(a, S_[0], KB[0] + 4, QF2)
    a("s_nop 15")
    a("s_nop 3")
    for r in range(0, 16, 2): a(f"v_max3_f32 v7, v7, v{S_[0]+r}, v{S_[0]+r+1}")
    a("s_add_u32 s41, s41, 1")
    a(f"s_cmp_lt_u32 s41, {NLT}")
    a(f"s_cbranch_scc1 L_{name}_mx")
    for j in range(4):
        mfma32(a, S_[0], RT + 16 * j, QF1, "0")
        mfma32(a, S_[0], RT + 16 * j + 4, QF2)
        a("s_nop 15")
        a("s_nop 3")
        for r in range(0, 16, 2): a(f"v_max3_f32 v7, v7, v{S_[0]+r}, v{S_[0]+r+1}")
    a.label(f"L_{name}_havemax")
    S.stamp()
    a("v_mov_b32 v4, v7")
    a("v_mov_b32 v5, v7")
    a("s_nop 1")
    a("v_permlane32_swap_b32 v4, v5")
    a("s_nop 1")
    a("v_max_f32 v7, v4, v5")
    a("v_sub_f32 v7, 0, v7")
    for r in range(16): a(f"v_mov_b32 v{NEGM+r}, v7")
    for r in range(16): a(f"v_mov_b32 v{O+r}, 0")
    for r in range(8): a(f"v_mov_b32 v{P[1]+r}, 0")
    for r in range(8): a(f"v_mov_b32 v{VB[1]+r}, 0")
    a(f"v_mov_b32 v{AC}, v3"); a(f"v_mov_b32 v{AC+1}, v{K2OFF}"); a(f"v_mov_b32 v{AC+2}, v{VOFF}")
    a(f"ds_read_b128 {vr(KB[0],4)}, v{AC}")
    a(f"ds_read_b32 v{KB[0]+4}, v{AC+1}")
    a(f"ds_read_b128 {vr(KB[1],4)}, v{AC} offset:{KVT}")
    a(f"ds_read_b32 v{KB[1]+4}, v{AC+1} offset:{KVT}")
    a("s_waitcnt lgkmcnt(2)")
    mfma32(a, S_[0], KB[0], QF1, vr(NEGM, 16))
    mfma32(a, S_[0], KB[0] + 4, QF2)
    a("s_lshl_b32 s41, s40, 3")
    a("s_mov_b32 s42, 0")
    PON = int(os.environ.get("PON", "0")); POFF = int(os.environ.get("POFF", "12"))
    def body(t, last):
        sc = S_[t % 2]; sn = S_[(t + 1) % 2]
        kl = KB[t % 2]; vl = VB[t % 2]
        pp = P[(t + 1) % 2]; pc = P[t % 2]
        gt = 48 + t if last else None
        kn = KB[(t + 1) % 2] if not (last and gt + 1 >= NLT) else RT + 16 * (gt + 1 - NLT)
        vp = VB[(t + 1) % 2] if not (last and gt - 1 >= NLT) else RT + 16 * (gt - 1 - NLT) + 8
        tag = "L" if last else ""
        if not last:
            if t == 4:
                a("s_cmp_lg_u32 s41, 0")
                a(f"s_cbranch_scc1 L_{name}_nb4")
                a("s_waitcnt vmcnt(4)")
                a("s_barrier")
                a.label(f"L_{name}_nb4")
            if t == 14:
                a("s_cmp_lg_u32 s41, 0")
                a(f"s_cbranch_scc1 L_{name}_nb14")
                a("s_waitcnt vmcnt(0)")
                a("s_barrier")
                a.label(f"L_{name}_nb14")
            if t in (0, 5, 8, 11):
                a("s_cmp_lg_u32 s41, 0")
                a(f"s_cbranch_scc1 L_{name}_sk{t}")
                for i in range(4 if t < 11 else 2): dma_piece()
                a.label(f"L_{name}_sk{t}")
            if t in (2, 9):
                a("s_cmp_lg_u32 s41, 1")
                a(f"s_cbranch_scc1 L_{name}_pf{t}")
                if t == 2:
                    for j in range(4):
                        a(f"s_mov_b32 s43, {KV_OFF + (NLT+j)*KVT}")
                        a(f"buffer_load_dwordx4 {vr(RT+16*j,4)}, v3, s[28:31], s43 offen")
                        a(f"buffer_load_dword v{RT+16*j+4}, v{K2OFF}, s[28:31], s43 offen")
                        a(f"buffer_load_dwordx4 {vr(RT+16*j+8,4)}, v{VOFF}, s[28:31], s43 offen")
                        a(f"buffer_load_dwordx4 {vr(RT+16*j+12,4)}, v{VOFF}, s[28:31], s43 offen offset:672")
                else:
                    for k in range(4):
                        a(f"buffer_load_dwordx4 {vr(DUM,4)}, v3, s[20:23], s55 offen offset:{min(k*1024, 3200-1024)}")
                    for k in range(5):
                        a(f"buffer_load_dwordx4 {vr(DUM,4)}, v{PFO}, s[24:27], s56 offen offset:{k*128}")
                a.label(f"L_{name}_pf{t}")
        if t == PON:
            a("s_cmp_lt_u32 s32, 4")
            a(f"s_cbranch_scc1 L_{name}_np{tag}")
            a("s_setprio 1")
            a.label(f"L_{name}_np{tag}")
        if t == POFF: a("s_setprio 0")
        a("s_waitcnt lgkmcnt(0)")
        ldk = not (last and gt + 2 >= NLT)
        ldv = not (last and gt >= NLT)
        dos = not (last and t == 15)
        if dos: mfma32(a, sn, kn, QF1, vr(NEGM, 16))
        if ldk:
            a(f"ds_read_b128 {vr(kl,4)}, v{AC} offset:{(t+2)*KVT}")
            a(f"ds_read_b32 v{kl+4}, v{AC+1} offset:{(t+2)*KVT}")
        for r in range(0, 4): a(f"v_exp_f32 v{sc+r}, v{sc+r}")
        mfma32(a, O, vp, pp)
        if ldv:
            a(f"ds_read_b128 {vr(vl,4)}, v{AC+2} offset:{t*KVT}")
            a(f"ds_read_b128 {vr(vl+4,4)}, v{AC+2} offset:{t*KVT+672}")
        for r in range(4, 8): a(f"v_exp_f32 v{sc+r}, v{sc+r}")
        for r in range(4): a(f"v_cvt_pk_bf16_f32 v{pc+r}, v{sc+2*r}, v{sc+2*r+1}")
        if dos: mfma32(a, sn, kn + 4, QF2)
        for r in range(8, 12): a(f"v_exp_f32 v{sc+r}, v{sc+r}")
        mfma32(a, O, vp + 4, pp + 4)
        for r in range(12, 16): a(f"v_exp_f32 v{sc+r}, v{sc+r}")
        for r in range(4): a(f"v_cvt_pk_bf16_f32 v{pc+4+r}, v{sc+8+2*r}, v{sc+8+2*r+1}")
    a.label(f"L_{name}_chunk")
    for t in range(16): body(t, False)
    for r in range(3): a(f"v_add_u32 v{AC+r}, {CH}, v{AC+r}")
    a("s_add_u32 s41, s41, 1")
    a("s_add_u32 s42, s42, 1")
    a("s_cmp_lt_u32 s42, 3")
    a(f"s_cbranch_scc1 L_{name}_chunk")
    a("s_waitcnt vmcnt(0)")
    for t in range(16): body(t, True)
    a("s_setprio 0")
    a("s_nop 1")
    mfma32(a, O, RT + 48 + 8, P[1])
    mfma32(a, O, RT + 48 + 12, P[1] + 4)
    S.stamp()
    a("s_nop 15")
    a("s_nop 3")
    a(f"v_mov_b32 v4, v{O+8}")
    a(f"v_mov_b32 v5, v{O+8}")
    a("s_nop 1")
    a("v_permlane32_swap_b32 v4, v5")
    a("v_mov_b32 v6, 0")
    for r in range(12): a(f"v_fma_f32 v6, v{O+r}, 0, v6")
    a(f"v_fma_f32 v6, v5, 0, v6")
    a(f"s_mov_b32 s43, {hex(f2u(2.0**100))}")
    a("v_cmp_neq_f32 vcc, 0, v6")
    a("v_cmp_nlt_f32 s[46:47], v5, s43")
    a("s_or_b64 vcc, vcc, s[46:47]")
    a("s_cmp_lg_u32 s40, 0")
    a(f"s_cbranch_scc1 L_{name}_store")
    a(f"s_cbranch_vccz L_{name}_store")
    a("s_mov_b32 s40, 1")
    a(f"s_branch L_{name}_restart")
    a.label(f"L_{name}_store")
    a("v_rcp_f32 v5, v5")
    a("s_nop 0")
    for r in range(12): a(f"v_mul_f32 v{O+r}, v5, v{O+r}")
    for r in range(6): a(f"v_cvt_pk_bf16_f32 v{S_[0]+r}, v{O+2*r}, v{O+2*r+1}")
    a("s_lshr_b32 s34, s33, 4")
    a("s_mul_i32 s34, s34, 20480")
    a("s_lshl_b32 s36, s35, 4")
    a("s_add_u32 s34, s34, s36")
    a(f"s_add_u32 s34, s34, {OF_OFF}")
    a("v_mul_u32_u24 v4, 20, v1")
    a("v_lshl_add_u32 v4, v2, 2, v4")
    for grp in range(3):
        a(f"v_add_u32 v5, {8*grp}, v4")
        a("v_lshrrev_b32 v6, 5, v5")
        a("v_lshlrev_b32 v6, 10, v6")
        a("v_bfe_u32 v7, v5, 2, 2")
        a("v_lshl_add_u32 v6, v7, 8, v6")
        a("v_bfe_u32 v7, v5, 4, 1")
        a("v_lshl_add_u32 v6, v7, 3, v6")
        if grp == 2:
            a("v_cmp_eq_u32 vcc, 0, v2")
            a("s_and_saveexec_b64 s[46:47], vcc")
        a(f"buffer_store_dwordx2 {vr(S_[0]+2*grp,2)}, v6, s[28:31], s34 offen")
    S.stamp(); S.real(); S.flush()
    a.label(f"L_{name}_end")
    a("s_endpgm")
    return name, a.text(), kd(name, NV), f"; @launch kernel={name} grid=(256,1,1) block=(512,1,1) lds={LDS}"

def gen_oproj(layer):
    name = f"oproj{layer}_kernel"
    a = Asm(); header(a, name)
    RES = 102400
    LDS = RES + 10240
    a(f"s_cmp_ge_u32 s2, 256")
    a(f"s_cbranch_scc1 L_{name}_end")
    S = Stamper(a, 2 + 5*layer, 4); S.real(); S.stamp()
    a(f"s_load_dwordx2 s[4:5], s[0:1], 0")
    a(f"s_load_dwordx2 s[6:7], s[0:1], 32")
    a(f"s_load_dwordx2 s[12:13], s[0:1], 96")
    a("v_lshrrev_b32 v1, 6, v0")
    a("v_and_b32 v0, 63, v0")
    a("v_readfirstlane_b32 s32, v1")
    a("s_and_b32 s33, s2, 7")
    a("s_lshr_b32 s34, s2, 3")
    a("s_and_b32 s34, s34, 3")
    a("s_lshl_b32 s34, s34, 3")
    a("s_add_u32 s33, s33, s34")
    a("s_lshr_b32 s34, s2, 5")
    a("s_waitcnt lgkmcnt(0)")
    if layer == 1:
        a(f"s_add_u32 s4, s12, {hex(X2_OFF)}")
        a(f"s_addc_u32 s5, s13, 0")
    srd(a, 16, 4, 5, XBYTES)
    srd(a, 20, 6, 7, 819200)
    srd(a, 28, 12, 13, WS_SIZE)
    a("v_and_b32 v1, 15, v0")
    a("v_lshrrev_b32 v2, 4, v0")
    a("s_mul_i32 s35, s32, 320")
    a("s_mul_i32 s36, s34, 160")
    a("s_mov_b32 s37, 6554")
    a("s_movk_i32 s38, 1280")
    for jj in range(5):
        a(f"v_add_u32 v10, s35, v0")
        if jj: a(f"v_add_u32 v10, {64*jj}, v10")
        a("v_mul_lo_u32 v11, v10, s37")
        a("v_lshrrev_b32 v11, 16, v11")
        a("v_mul_u32_u24 v12, 10, v11")
        a("v_sub_u32 v12, v10, v12")
        a("v_mul_lo_u32 v11, v11, s38")
        a("v_lshl_add_u32 v11, v12, 4, v11")
        a(f"v_add_u32 v{4+jj}, s36, v11")
    a("v_lshlrev_b32 v3, 4, v0")
    a("s_mul_i32 s40, s33, 81920")
    a("s_mul_i32 s41, s32, 5120")
    a("s_cmp_ge_u32 s32, 2")
    a(f"s_cbranch_scc1 L_{name}_nores")
    for jj in range(5):
        a(f"s_add_u32 s44, s41, {RES + jj*1024}")
        a("s_mov_b32 m0, s44")
        a("s_nop 0")
        a(f"buffer_load_dwordx4 v{4+jj}, s[16:19], s40 offen lds")
    a.label(f"L_{name}_nores")
    a("s_lshl_b32 s42, s33, 2")
    a("s_add_u32 s42, s42, s32")
    a("s_mul_i32 s43, s42, 20480")
    a(f"s_add_u32 s43, s43, {OF_OFF}")
    XF = 64
    def stage_ops(st):
        ops = []
        for jj in range(5):
            ops.append([f"s_add_u32 s44, s41, {st*20480 + jj*1024}", "s_mov_b32 m0, s44",
                        f"s_mov_b32 s45, {st*128*1280}", f"buffer_load_dwordx4 v{4+jj}, s[20:23], s45 offen lds"])
        for k4 in range(4):
            ops.append([f"s_add_u32 s45, s43, {st*4096}",
                        f"buffer_load_dwordx4 {vr(XF+4*(4*st+k4),4)}, v3, s[28:31], s45 offen offset:{1024*k4}"])
        return ops
    for st in range(2):
        for op in stage_ops(st):
            for x in op: a(x)
    S.stamp()
    a("v_lshrrev_b32 v10, 2, v1")
    a("v_lshl_add_u32 v10, v2, 2, v10")
    a("v_and_b32 v11, 3, v1")
    a("v_lshlrev_b32 v11, 3, v11")
    a("v_mul_u32_u24 v12, 160, v10")
    a("v_add_u32 v20, v12, v11")
    a(f"v_add_u32 v21, {51200}, v20")
    a("s_mul_i32 s48, s32, 2560")
    a(f"s_add_u32 s48, s48, {RES}")
    a("v_add_u32 v22, s48, v20")
    ACC = 24
    WF = 144
    for r in range(ACC, ACC + 20): a(f"v_mov_b32 v{r}, 0")
    def reads(ks, fs):
        b = WF + 20 * fs
        for nt in range(5):
            for half in range(2):
                off = (32 * ks + 16 * half) * 160 + 32 * nt
                va = 20
                if off >= 51200: off -= 51200; va = 21
                a(f"ds_read_b64_tr_b16 {vr(b+4*nt+2*half,2)}, v{va} offset:{off}")
    for st in range(5):
        a(f"s_waitcnt vmcnt({9 if st < 4 else 0})")
        a("s_barrier")
        if st == 0: S.stamp()
        pend = stage_ops(st + 2) if st + 2 < 5 else []
        reads(4 * st, 0)
        for k4 in range(4):
            a("s_waitcnt lgkmcnt(0)")
            if k4 < 3: reads(4 * st + k4 + 1, (k4 + 1) % 2)
            b = WF + 20 * (k4 % 2)
            for nt in range(5):
                mfma16(a, ACC + 4 * nt, XF + 4 * (4 * st + k4), b + 4 * nt)
                if nt % 2 == 0 and pend:
                    for x_ in pend.pop(0): a(x_)
        assert not pend
    S.stamp()
    RS = WF
    for nt in range(5): a(f"ds_read_b64_tr_b16 {vr(RS+2*nt,2)}, v22 offset:{32*nt}")
    SUM = 44; SQ = 48; T = 52
    for r in range(8): a(f"v_mov_b32 v{SUM+r}, 0")
    a("s_mul_i32 s44, s34, 327680")
    a("s_lshr_b32 s45, s42, 1")
    a("s_lshl_b32 s45, s45, 10")
    a("s_add_u32 s44, s44, s45")
    a("s_and_b32 s45, s42, 1")
    a("s_lshl_b32 s45, s45, 3")
    a("s_add_u32 s44, s44, s45")
    a(f"s_add_u32 s44, s44, {X1T_OFF}")
    a("s_mov_b32 s46, 0xffff0000")
    a("s_waitcnt lgkmcnt(0)")
    a("s_nop 7")
    OUT = WF + 12
    for nt in range(5):
        for h in range(2):
            a(f"v_lshlrev_b32 v{T}, 16, v{RS+2*nt+h}")
            a(f"v_and_b32 v{T+1}, s46, v{RS+2*nt+h}")
            a(f"v_add_f32 v{T}, v{T}, v{ACC+4*nt+2*h}")
            a(f"v_add_f32 v{T+1}, v{T+1}, v{ACC+4*nt+2*h+1}")
            o = OUT + 2 * nt + h
            a(f"v_cvt_pk_bf16_f32 v{o}, v{T}, v{T+1}")
            a(f"v_lshlrev_b32 v{T}, 16, v{o}")
            a(f"v_and_b32 v{T+1}, s46, v{o}")
            a(f"v_add_f32 v{SUM+2*h}, v{SUM+2*h}, v{T}")
            a(f"v_add_f32 v{SUM+2*h+1}, v{SUM+2*h+1}, v{T+1}")
            a(f"v_fma_f32 v{SQ+2*h}, v{T}, v{T}, v{SQ+2*h}")
            a(f"v_fma_f32 v{SQ+2*h+1}, v{T+1}, v{T+1}, v{SQ+2*h+1}")
        a(f"buffer_store_dwordx2 {vr(OUT+2*nt,2)}, v3, s[28:31], s44 offen")
        if nt < 4: a("s_add_u32 s44, s44, 65536")
    for sh in (8, 4, 2, 1):
        a("s_nop 1")
        for r in range(8):
            a(f"v_add_f32_dpp v{SUM+r}, v{SUM+r}, v{SUM+r} row_ror:{sh} row_mask:0xf bank_mask:0xf")
    a("s_lshl_b32 s44, s42, 7")
    a(f"s_add_u32 s44, s44, {ST_OFF}")
    a("v_lshlrev_b32 v10, 5, v2")
    a("v_cmp_eq_u32 vcc, 0, v1")
    a("s_and_saveexec_b64 s[46:47], vcc")
    for r in range(4):
        a(f"buffer_atomic_add_f32 v{SUM+r}, v10, s[28:31], s44 offen offset:{8*r}")
        a(f"buffer_atomic_add_f32 v{SQ+r}, v10, s[28:31], s44 offen offset:{8*r+4}")
    S.stamp(); S.real(); S.flush()
    a.label(f"L_{name}_end")
    a("s_endpgm")
    return name, a.text(), kd(name, 192), f"; @launch kernel={name} grid=(256,1,1) block=(256,1,1) lds={LDS}"

def mfma16a(a, d, x, y):
    a(f"v_mfma_f32_16x16x32_bf16 a[{d}:{d+3}], {vr(x,4)}, {vr(y,4)}, a[{d}:{d+3}]")

def gen_mlp(which, layer):
    name = f"mlp{which}_{layer}_kernel"
    a = Asm(); header(a, name)
    norm = which == 1
    NW = 8 if norm else int(os.environ.get("K5NW", "4"))
    U = 2 if norm else int(os.environ.get("K5U", "4"))
    RING = U * 4096
    TAB = NW * RING
    NWG = 216 if norm else 256
    WSTR = 3456 if norm else 4096
    WBYTES = 2048 * 1728 * 2
    XDT = 65536 if norm else 55296
    XOFF = X1T_OFF if norm else GF_OFF
    if NW == 8: own_dts = lambda w: (0, 1, 2) if w < 4 else (3, 4)
    else: own_dts = lambda w: (0, 1, 2, 3, 4)
    MT = 3 if NW == 8 else 5
    NS = NW - 1
    own_base = []; off = 0
    for w in range(NW):
        own_base.append(off); off += NS * len(own_dts(w)) * 1024
    REDSZ = off
    TR = REDSZ + 1024
    LDS = max(TAB + NW * 2048, TR + 4 * 2560)
    a(f"s_cmp_ge_u32 s2, {NWG}")
    a(f"s_cbranch_scc1 L_{name}_end")
    S = Stamper(a, 2 + which + 5*layer, 8); S.real(); S.stamp()
    a(f"s_load_dwordx4 s[4:7], s[0:1], {48 if norm else 64}")
    a(f"s_load_dwordx2 s[12:13], s[0:1], 96")
    if not norm:
        a(f"s_load_dwordx2 s[8:9], s[0:1], 80")
    a("v_lshrrev_b32 v1, 6, v0")
    a("v_and_b32 v0, 63, v0")
    a("v_readfirstlane_b32 s32, v1")
    if norm:
        a("s_and_b32 s33, s2, 7")
        a(f"s_mul_i32 s33, s33, {NWG//8}")
        a("s_lshr_b32 s34, s2, 3")
        a("s_add_u32 s33, s33, s34")
        a("s_lshr_b32 s34, s33, 3")
        a("s_and_b32 s33, s33, 7")
        a(f"s_load_dwordx2 s[8:9], s[0:1], 64")
    else:
        a("s_and_b32 s34, s2, 7")
        a("s_lshr_b32 s33, s2, 3")
        a("s_and_b32 s33, s33, 3")
        a("s_lshl_b32 s33, s33, 3")
        a("s_add_u32 s34, s34, s33")
        a("s_lshr_b32 s33, s2, 5")
        a(f"s_load_dwordx2 s[10:11], s[0:1], 8")
    a("v_and_b32 v1, 15, v0")
    a("v_lshrrev_b32 v2, 4, v0")
    a("v_lshlrev_b32 v3, 4, v0")
    if norm:
        a("s_lshl_b32 s35, s32, 3")
        a("s_mov_b32 s36, 8")
    elif NW == 8:
        a("s_mul_i32 s35, s32, 7")
        a("s_min_u32 s35, s35, 48")
        a("s_cmp_ge_u32 s32, 6")
        a("s_cselect_b32 s36, 6, 7")
    else:
        a("s_mul_i32 s35, s32, 14")
        a("s_min_u32 s35, s35, 41")
        a("s_cmp_ge_u32 s32, 2")
        a("s_cselect_b32 s36, 13, 14")
    a("v_lshrrev_b32 v10, 3, v0")
    a("v_lshrrev_b32 v11, 1, v10")
    a("v_and_b32 v11, 3, v11")
    a("v_lshlrev_b32 v11, 1, v11")
    a("v_and_b32 v12, 7, v0")
    a("v_xor_b32 v12, v12, v11")
    a(f"s_movk_i32 s38, {WSTR}")
    a("v_mul_lo_u32 v5, v10, s38")
    a("v_lshl_add_u32 v44, v12, 4, v5")
    for jj in range(1, 4): a(f"v_add_u32 v{44+jj}, {jj*(8*WSTR-1024)}, v44")
    for dt in range(1, 5): a(f"v_add_u32 v{19+dt}, {dt*XDT}, v3")
    a(f"s_mul_i32 s40, s35, {32*WSTR}")
    a("s_lshl_b32 s41, s34, 7")
    a("s_add_u32 s40, s40, s41")
    a(f"s_mul_i32 s41, s33, {5*XDT}")
    a("s_lshl_b32 s42, s35, 10")
    a("s_add_u32 s41, s41, s42")
    a(f"s_add_u32 s41, s41, {XOFF}")
    a(f"s_sub_u32 s49, s36, {U}")
    a(f"s_mul_i32 s42, s32, {RING}")
    a("s_and_b32 s52, s32, 3")
    a("s_lshr_b32 s53, s32, 2")
    a("s_waitcnt lgkmcnt(0)")
    srd(a, 20, 4, 5, WBYTES)
    srd(a, 28, 12, 13, WS_SIZE)
    XR = 48
    XN = XR + 20 * U
    WF = XN + (40 if norm else 0)
    TT = WF + 32
    NV = max(TT + (16 if norm else 0), 176)
    TMP = 16
    TB = 36
    EB = 24
    if norm:
        a("s_lshl_b32 s37, s32, 11")
        a(f"s_add_u32 s37, s37, {ST_OFF}")
        a("v_lshlrev_b32 v4, 3, v0")
        for i2 in range(4):
            a(f"buffer_load_dwordx2 {vr(TB+2*i2,2)}, v4, s[28:31], s37 offen offset:{512*i2}")
    def w_ops(slot):
        ops = []
        for jj in range(4):
            op = [f"s_mov_b32 m0, s{64+slot}"] if jj == 0 else []
            if jj == 0: op.append("s_nop 0")
            op.append(f"buffer_load_dwordx4 v{44+jj}, s[20:23], s40 offen offset:{jj*1024} lds")
            ops.append(op)
        ops[-1] += [f"s_add_u32 s40, s40, {32*WSTR}"]
        return ops
    def x_ops(slot):
        ops = []
        for dt in range(5):
            va = 3 if dt == 0 else 19 + dt
            ops.append([f"buffer_load_dwordx4 {vr(XR+20*slot+4*dt,4)}, v{va}, s[60:63], s41 offen"])
        ops[-1] += ["s_add_u32 s41, s41, 1024"]
        return ops
    lab = [0]
    def emit_ops(ops, guard=False):
        for op in ops:
            for x in op: a(x)
    srd(a, 60, 12, 13, WS_SIZE)
    for u in range(U): a(f"s_add_u32 s{64+u}, s42, {u*4096}")
    emit_ops(w_ops(0)); emit_ops(x_ops(0))
    srd(a, 24, 6, 7, 1728 * 2 if norm else 2048 * 2)
    if not norm:
        if layer == 0:
            a(f"s_add_u32 s8, s12, {hex(X2_OFF)}")
            a(f"s_addc_u32 s9, s13, 0")
        srd(a, 16, 8, 9, XBYTES)
    a("s_lshl_b32 s43, s34, 7")
    a("s_lshl_b32 s44, s52, 5")
    a("s_add_u32 s43, s43, s44")
    a("v_lshlrev_b32 v10, 3, v2")
    a(f"buffer_load_dwordx2 {vr(EB,2)}, v10, s[24:27], s43 offen")
    NE = 1
    if not norm:
        a("s_mul_i32 s43, s33, 327680")
        a("s_mul_i32 s44, s53, 196608")
        a("s_add_u32 s43, s43, s44")
        a("s_lshl_b32 s44, s34, 11")
        a("s_add_u32 s43, s43, s44")
        a("s_lshr_b32 s44, s52, 1")
        a("s_lshl_b32 s44, s44, 10")
        a("s_add_u32 s43, s43, s44")
        a("s_and_b32 s44, s52, 1")
        a("s_lshl_b32 s44, s44, 3")
        a("s_add_u32 s43, s43, s44")
        a(f"s_add_u32 s43, s43, {X1T_OFF}")
        for j in range(MT):
            a(f"buffer_load_dwordx2 {vr(EB+2+2*j,2)}, v3, s[28:31], s43 offen")
            if j < MT - 1: a("s_add_u32 s43, s43, 65536")
        NE = 1 + MT
    for u in range(1, U):
        emit_ops(w_ops(u)); emit_ops(x_ops(u))
    S.stamp()
    a("v_lshrrev_b32 v10, 2, v1")
    a("v_lshl_add_u32 v10, v2, 2, v10")
    a("v_lshrrev_b32 v11, 1, v10")
    a("v_and_b32 v11, 3, v11")
    a("v_and_b32 v12, 3, v1")
    a("v_lshlrev_b32 v12, 3, v12")
    a("v_lshl_add_u32 v12, v10, 7, v12")
    a("v_add_u32 v12, s42, v12")
    for nt in range(4):
        a(f"v_xor_b32 v13, {nt}, v11")
        a(f"v_lshl_add_u32 v{6+nt}, v13, 5, v12")
    for r in range(80): a(f"v_accvgpr_write_b32 a{r}, 0")
    a("s_mov_b32 s46, 0xffff0000")
    if norm:
        a(f"s_waitcnt vmcnt({9*U+NE})")
        a("s_lshl_b32 s43, s32, 11")
        a(f"s_add_u32 s43, s43, {TAB}")
        a("v_lshlrev_b32 v14, 2, v0")
        a("v_add_u32 v14, s43, v14")
        a("v_lshlrev_b32 v15, 4, v2")
        a("v_add_u32 v15, s43, v15")
        a(f"s_mov_b32 s47, {hex(f2u(1.0/640))}")
        a(f"s_mov_b32 s48, {hex(f2u(1e-5))}")
        for i2 in range(4):
            m = TB + 2 * i2; q = m + 1
            a(f"v_mul_f32 v{m}, s47, v{m}")
            a(f"v_mul_f32 v{q}, s47, v{q}")
            a(f"v_fma_f32 v{q}, -v{m}, v{m}, v{q}")
            a(f"v_max_f32 v{q}, 0, v{q}")
            a(f"v_add_f32 v{TMP}, s48, v{q}")
            a(f"v_rsq_f32 v{TMP}, v{TMP}")
            a("s_nop 0")
            a(f"v_mul_f32 v{q}, v{q}, v{TMP}")
            a(f"v_fma_f32 v{q}, v{q}, v{TMP}, s48")
            a(f"v_rsq_f32 v{q}, v{q}")
            a("s_nop 0")
            a(f"v_mul_f32 v{q}, v{q}, v{TMP}")
            a(f"v_mul_f32 v{m}, v{m}, v{q}")
            a(f"v_sub_f32 v{m}, 0, v{m}")
            a(f"ds_write_b32 v14, v{q} offset:{256*i2}")
            a(f"ds_write_b32 v14, v{m} offset:{1024+256*i2}")
        a("s_waitcnt lgkmcnt(0)")
    def wreads(slot, fs):
        for nt in range(4):
            for half in range(2):
                a(f"ds_read_b64_tr_b16 {vr(WF+16*fs+4*nt+2*half,2)}, v{6+nt} offset:{slot*4096+half*2048}")
    def treads():
        a(f"ds_read_b128 {vr(TT,4)}, v15")
        a(f"ds_read_b128 {vr(TT+4,4)}, v15 offset:64")
        a(f"ds_read_b128 {vr(TT+8,4)}, v15 offset:1024")
        a(f"ds_read_b128 {vr(TT+12,4)}, v15 offset:1088")
        a("v_add_u32 v15, 128, v15")
    def norm_ops(slot, fs):
        ops = []
        for dt in range(5):
            for dw in range(4):
                r = XR + 20 * slot + 4 * dt + dw
                e = (dw % 2) * 2 + (dw // 2) * 4
                t0 = TMP + 2 * (dw % 2); t1 = t0 + 1
                ops.append(f"v_lshlrev_b32 v{t0}, 16, v{r}")
                ops.append(f"v_and_b32 v{t1}, s46, v{r}")
                ops.append(f"v_fma_f32 v{t0}, v{t0}, v{TT+e}, v{TT+8+e}")
                ops.append(f"v_fma_f32 v{t1}, v{t1}, v{TT+e+1}, v{TT+8+e+1}")
                ops.append(f"v_cvt_pk_bf16_f32 v{XN+20*fs+4*dt+dw}, v{t0}, v{t1}")
        return ops
    def mfma_list(slot, fs):
        l = []
        for dt in range(5):
            x = (XN + 20 * fs + 4 * dt) if norm else (XR + 20 * slot + 4 * dt)
            for nt in range(4):
                w = WF + 16 * fs + 4 * nt
                t = 4 * (dt * 4 + nt)
                l.append(f"v_mfma_f32_16x16x32_bf16 a[{t}:{t+3}], {vr(w,4)}, {vr(x,4)}, a[{t}:{t+3}]")
        return l
    def upd_loads():
        a("s_sub_i32 s49, s49, 1")
        a("s_cmp_gt_i32 s49, 0")
        a("s_cselect_b32 s22, s22, 0")
        a("s_cselect_b32 s62, s62, 0")
    def norm_step(nu, nfs, ml):
        treads()
        wreads(nu, nfs)
        ops = norm_ops(nu, nfs)
        xo = x_ops(nu); wo = w_ops(nu)
        k = 0
        for m in ml[:3]: a(m); k += 1
        a("s_waitcnt lgkmcnt(8)")
        for idx, op in enumerate(ops):
            a(op)
            if idx % 6 == 5 and k < len(ml):
                a(ml[k]); k += 1
            if idx % 20 == 19:
                emit_ops([xo.pop(0)], True)
            if idx == 30: a("s_waitcnt lgkmcnt(0)")
            if idx in (40, 55, 70, 85):
                emit_ops([wo.pop(0)], True)
        while k < len(ml): a(ml[k]); k += 1
        assert not xo and not wo
        upd_loads()
    def wait_vm(n):
        a(f"s_waitcnt vmcnt({n}) lgkmcnt(0)")
    a(f"s_waitcnt vmcnt({9*(U-1)+NE})")
    if norm:
        norm_step(0, 0, [])
    else:
        wreads(0, 0)
    S.stamp()
    a.label(f"L_{name}_loop")
    for u in range(U):
        fs = u % 2; nu = (u + 1) % U; nfs = 1 - fs
        if norm:
            if u == U - 1:
                a("s_cmp_eq_u32 s36, 1")
                a(f"s_cbranch_scc1 L_{name}_last")
            wait_vm(9*(U-1))
            norm_step(nu, nfs, mfma_list(u, fs))
        else:
            wait_vm(9*(U-2))
            wreads(nu, nfs)
            xo = x_ops(u); wo = w_ops(u)
            for idx, m in enumerate(mfma_list(u, fs)):
                a(m)
                if idx % 4 == 3: emit_ops([xo.pop(0)], True)
                if idx % 4 == 1 and wo: emit_ops([wo.pop(0)], True)
            assert not xo and not wo
            upd_loads()
        a("s_sub_u32 s36, s36, 1")
        a("s_cmp_eq_u32 s36, 0")
        if u < U - 1: a(f"s_cbranch_scc1 L_{name}_done")
        else: a(f"s_cbranch_scc0 L_{name}_loop")
    if norm:
        a(f"s_branch L_{name}_done")
        a.label(f"L_{name}_last")
        a("s_waitcnt lgkmcnt(0)")
        for m in mfma_list(U - 1, (U - 1) % 2): a(m)
    a.label(f"L_{name}_done")
    S.stamp()
    a("s_waitcnt vmcnt(0) lgkmcnt(0)")
    if norm:
        srd(a, 56, 8, 9, WBYTES)
        a("s_lshr_b32 s43, s2, 3")
        a("s_lshl_b32 s43, s43, 3")
        a("s_add_u32 s43, s43, s32")
        a(f"s_mul_i32 s43, s43, {8*4096}")
        a("s_and_b32 s44, s2, 7")
        a("s_lshl_b32 s44, s44, 7")
        a("s_add_u32 s43, s43, s44")
        a("v_lshrrev_b32 v10, 3, v0")
        a("v_lshlrev_b32 v10, 12, v10")
        a("v_and_b32 v11, 7, v0")
        a("v_lshl_add_u32 v10, v11, 4, v10")
        for j in range(4):
            a(f"buffer_load_dwordx4 v[20:23], v10, s[56:59], s43 offen offset:{1024*j}")
    elif layer == 0:
        srd(a, 56, 10, 11, 819200)
        per = 819200 // (32 * NW)
        a("s_lshr_b32 s43, s2, 3")
        a(f"s_mul_i32 s43, s43, {NW}")
        a("s_add_u32 s43, s43, s32")
        a(f"s_mul_i32 s43, s43, {per}")
        for j in range((per + 1023) // 1024):
            if j == 4: a("s_add_u32 s43, s43, 4096")
            a(f"buffer_load_dwordx4 v[20:23], v3, s[56:59], s43 offen offset:{min(1024*j, per-1024) - (4096 if j >= 4 else 0)}")
    a("s_barrier")
    OWN = 88
    for o in range(NW):
        dts = own_dts(o); nt = o % 4
        a(f"s_cmp_eq_u32 s32, {o}")
        a(f"s_cbranch_scc1 L_{name}_own{o}")
        a(f"s_sub_u32 s43, s32, {o+1}")
        a(f"s_and_b32 s43, s43, {NW-1}")
        a(f"s_mul_i32 s43, s43, {len(dts)*1024}")
        a(f"s_add_u32 s43, s43, {own_base[o]}")
        a("v_add_u32 v10, s43, v3")
        for j, dt in enumerate(dts):
            t = 4 * (dt * 4 + nt)
            a(f"ds_write_b128 v10, a[{t}:{t+3}] offset:{j*1024}")
        a(f"s_branch L_{name}_nx{o}")
        a.label(f"L_{name}_own{o}")
        for j, dt in enumerate(dts):
            for r in range(4):
                a(f"v_accvgpr_read_b32 v{OWN+4*j+r}, a{4*(dt*4+nt)+r}")
        for r in range(4 * len(dts), 4 * MT): a(f"v_mov_b32 v{OWN+r}, 0")
        a(f"s_mov_b32 s54, {own_base[o]}")
        a(f"s_mov_b32 s55, {len(dts)*1024}")
        a.label(f"L_{name}_nx{o}")
    a("s_waitcnt lgkmcnt(0)")
    a("s_barrier")
    a("v_add_u32 v10, s54, v3")
    BI = 40
    a(f"v_lshlrev_b32 v{BI}, 16, v{EB}")
    a(f"v_and_b32 v{BI+1}, s46, v{EB}")
    a(f"v_lshlrev_b32 v{BI+2}, 16, v{EB+1}")
    a(f"v_and_b32 v{BI+3}, s46, v{EB+1}")
    if NW == 8: PRS = [108, 120, 132, 144, 156, 48, 60]
    else: PRS = [108, 128, 148]
    issued = 0; done = 0
    for sidx in range(NS):
        for j in range(MT):
            a(f"ds_read_b128 {vr(PRS[sidx]+4*j,4)}, v10 offset:{j*1024}")
        issued += 1
        if sidx < NS - 1: a("v_add_u32 v10, s55, v10")
        if (issued - done) * MT >= 12 and sidx < NS - 1:
            a(f"s_waitcnt lgkmcnt({(issued-done-1)*MT})")
            for r in range(4 * MT): a(f"v_add_f32 v{OWN+r}, v{OWN+r}, v{PRS[done]+r}")
            done += 1
    while done < NS:
        a(f"s_waitcnt lgkmcnt({(NS-done-1)*MT})")
        for r in range(4 * MT): a(f"v_add_f32 v{OWN+r}, v{OWN+r}, v{PRS[done]+r}")
        done += 1
    S.stamp()
    E0 = 112
    if norm:
        c1 = -2.0 * math.log2(math.e) * 0.7978845608028654
        c2 = c1 * 0.044715
        a(f"s_mov_b32 s47, {hex(f2u(c1))}")
        a(f"s_mov_b32 s48, {hex(f2u(c2))}")
        a("v_mov_b32 v44, s47")
        a(f"s_mul_i32 s43, s33, {5*55296}")
        a(f"s_mul_i32 s44, s53, {3*55296}")
        a("s_add_u32 s43, s43, s44")
        a("s_lshl_b32 s44, s34, 11")
        a("s_add_u32 s43, s43, s44")
        a("s_lshr_b32 s44, s52, 1")
        a("s_lshl_b32 s44, s44, 10")
        a("s_add_u32 s43, s43, s44")
        a("s_and_b32 s44, s52, 1")
        a("s_lshl_b32 s44, s44, 3")
        a("s_add_u32 s43, s43, s44")
        a(f"s_add_u32 s43, s43, {GF_OFF}")
        for j in range(MT):
            if NW == 8 and j == 2:
                a("s_cmp_lg_u32 s53, 0")
                a(f"s_cbranch_scc1 L_{name}_fin")
            for r in range(4):
                u = OWN + 4 * j + r
                a(f"v_add_f32 v{u}, v{u}, v{BI+r}")
            for r in range(4):
                u = OWN + 4 * j + r; t = E0 + r
                a(f"v_mul_f32 v{t}, v{u}, v{u}")
            for r in range(4):
                t = E0 + r
                a(f"v_fma_f32 v{t}, v{t}, s48, v44")
            for r in range(4):
                u = OWN + 4 * j + r; t = E0 + r
                a(f"v_mul_f32 v{t}, v{t}, v{u}")
            for r in range(4): a(f"v_exp_f32 v{E0+r}, v{E0+r}")
            for r in range(4): a(f"v_add_f32 v{E0+r}, 1.0, v{E0+r}")
            for r in range(4): a(f"v_rcp_f32 v{E0+r}, v{E0+r}")
            for r in range(4):
                u = OWN + 4 * j + r
                a(f"v_mul_f32 v{u}, v{u}, v{E0+r}")
            o = E0 + 6 + 2 * j
            a(f"v_cvt_pk_bf16_f32 v{o}, v{OWN+4*j}, v{OWN+4*j+1}")
            a(f"v_cvt_pk_bf16_f32 v{o+1}, v{OWN+4*j+2}, v{OWN+4*j+3}")
            a(f"buffer_store_dwordx2 {vr(o,2)}, v3, s[28:31], s43 offen")
            if j < MT - 1: a("s_add_u32 s43, s43, 55296")
    else:
        a("s_mul_i32 s43, s52, 2560")
        a(f"s_add_u32 s43, s43, {TR}")
        a("s_mul_i32 s44, s53, 96")
        a("s_add_u32 s44, s44, s43")
        a("v_mul_u32_u24 v10, 640, v2")
        a("v_lshl_add_u32 v10, v1, 1, v10")
        a("v_add_u32 v10, s44, v10")
        for j in range(MT):
            if NW == 8 and j == 2:
                a("s_cmp_lg_u32 s53, 0")
                a(f"s_cbranch_scc1 L_{name}_tr")
            for h in range(2):
                rr = EB + 2 + 2 * j + h
                a(f"v_lshlrev_b32 v{E0}, 16, v{rr}")
                a(f"v_and_b32 v{E0+1}, s46, v{rr}")
                u = OWN + 4 * j + 2 * h
                a(f"v_add_f32 v{u}, v{u}, v{BI+2*h}")
                a(f"v_add_f32 v{u+1}, v{u+1}, v{BI+2*h+1}")
                a(f"v_add_f32 v{E0}, v{E0}, v{u}")
                a(f"v_add_f32 v{E0+1}, v{E0+1}, v{u+1}")
                a(f"v_cvt_pk_bf16_f32 v{E0+2+h}, v{E0}, v{E0+1}")
                a(f"ds_write_b16 v10, v{E0+2+h} offset:{(2*h)*160 + 32*j}")
                a(f"ds_write_b16_d16_hi v10, v{E0+2+h} offset:{(2*h+1)*160 + 32*j}")
        a.label(f"L_{name}_tr")
        NCH = 2 if NW == 8 else 3
        LASTN = 16 if NW == 8 else 32
        a("s_lshl_b32 s44, s34, 6")
        a("s_lshl_b32 s45, s52, 4")
        a("s_add_u32 s44, s44, s45")
        a("s_mul_i32 s44, s44, 1280")
        a("s_mul_i32 s45, s33, 160")
        a("s_add_u32 s44, s44, s45")
        a("s_mov_b32 s47, 6554")
        a("s_movk_i32 s48, 1280")
        a("s_mul_i32 s45, s53, 80")
        a("v_add_u32 v12, s45, v0")
        a("v_lshlrev_b32 v11, 4, v12")
        a("v_add_u32 v11, s43, v11")
        for j in range(NCH):
            if j: a("v_add_u32 v12, 64, v12")
            a("v_mul_lo_u32 v13, v12, s47")
            a("v_lshrrev_b32 v13, 16, v13")
            a("v_mul_u32_u24 v14, 10, v13")
            a("v_sub_u32 v14, v12, v14")
            a("v_mul_lo_u32 v13, v13, s48")
            a(f"v_lshl_add_u32 v{16+j}, v14, 4, v13")
        a("s_waitcnt lgkmcnt(0)")
        if NW == 8: a("s_barrier")
        for j in range(NCH):
            a(f"ds_read_b128 {vr(120+4*j,4)}, v11 offset:{1024*j}")
        a("s_waitcnt lgkmcnt(0)")
        for j in range(NCH):
            if j == NCH - 1:
                a(f"v_cmp_gt_u32 vcc, {LASTN}, v0")
                a("s_and_saveexec_b64 s[46:47], vcc")
            a(f"buffer_store_dwordx4 {vr(120+4*j,4)}, v{16+j}, s[16:19], s44 offen")
    a.label(f"L_{name}_fin")
    S.stamp(); S.real(); S.flush()
    a.label(f"L_{name}_end")
    a("s_endpgm")
    kdt = kd(name, NV + 80).replace(f".amdhsa_accum_offset {NV+80}", f".amdhsa_accum_offset {NV}")
    return name, a.text(), kdt, f"; @launch kernel={name} grid=({NWG},1,1) block=({64*NW},1,1) lds={LDS}"

if "--stamps" in sys.argv:
    STAMPS = True; sys.argv.remove("--stamps")
KERNELS = []
for L in range(2):
    KERNELS += [gen_qkv(L), gen_attn(), gen_oproj(L), gen_mlp(1, L), gen_mlp(2, L)]

def emit(kernels, path, order=None):
    launches = [k[3] for k in kernels] if order is None else order
    hdr = open("interleave_layers__grouped_kv_mqa__mixer_token_mlp__prompt.s.ref").read().split("; Override")[0]
    out = hdr + "\n".join(launches) + "\n"
    out += '.amdgcn_target "amdgcn-amd-amdhsa--gfx950"\n.text\n'
    seen = set()
    for k in kernels:
        if k[0] in seen: continue
        seen.add(k[0]); out += k[1]
    out += '.section .rodata,"a"\n'
    seen = set()
    for k in kernels:
        if k[0] in seen: continue
        seen.add(k[0]); out += k[2]
    open(path, "w").write(out)

if __name__ == "__main__":
    emit(KERNELS, sys.argv[1] if len(sys.argv) > 1 else "k.s")
```

```python
import struct, sys, math, os

def f2u(x): return struct.unpack("<I", struct.pack("<f", x))[0]

QT_OFF   = 0
KV_OFF   = 0x300000
OF_OFF   = 0x400000
X1T_OFF  = 0x700000
ST_OFF   = 0xA00000
GF_OFF   = 0xB00000
X2_OFF   = 0xE00000
CNT_OFF  = 0xA80000
WS_SIZE  = 0x10000000
KVT = 2624
XBYTES = 2048 * 640 * 2

class Asm:
    def __init__(self): self.l = []
    def __call__(self, s):
        for x in s.strip("\n").split("\n"):
            self.l.append("    " + x.strip())
    def label(self, n): self.l.append(n + ":")
    def raw(self, s): self.l.append(s)
    def text(self): return "\n".join(self.l) + "\n"

def vr(b, n=1): return f"v{b}" if n == 1 else f"v[{b}:{b+n-1}]"
def sr(b, n=1): return f"s{b}" if n == 1 else f"s[{b}:{b+n-1}]"

def srd(a, d, lo, hi, nbytes):
    a(f"s_mov_b32 s{d}, s{lo}")
    a(f"s_and_b32 s{d+1}, s{hi}, 0xffff")
    a(f"s_mov_b32 s{d+2}, {hex(nbytes)}")
    a(f"s_mov_b32 s{d+3}, 0x00020000")

def header(a, name):
    a.raw(f".globl {name}\n.p2align 8\n.type {name},@function\n{name}:")

def kd(name, nv, ns=102):
    acc = (nv + 3) // 4 * 4
    return f""".p2align 6
.amdhsa_kernel {name}
  .amdhsa_next_free_vgpr {nv}
  .amdhsa_next_free_sgpr {ns}
  .amdhsa_accum_offset {acc}
  .amdhsa_group_segment_fixed_size 0
  .amdhsa_kernarg_size 104
  .amdhsa_user_sgpr_count 2
  .amdhsa_user_sgpr_kernarg_segment_ptr 1
  .amdhsa_system_sgpr_workgroup_id_x 1
.end_amdhsa_kernel
"""

STAMPS = False
DBG_OFF = 0x8000000
class Stamper:
    def __init__(self, a, kidx, maxw): self.a = a; self.n = 0; self.kidx = kidx; self.maxw = maxw
    def stamp(self):
        if not STAMPS: return
        self.a(f"s_memtime s[{72+2*self.n}:{73+2*self.n}]"); self.n += 1
    def real(self):
        if not STAMPS: return
        self.a(f"s_memrealtime s[{72+2*self.n}:{73+2*self.n}]"); self.n += 1
    def flush(self, wave_s="s32", srd_="s[28:31]"):
        if not STAMPS: return
        a = self.a
        a("s_mov_b64 exec, -1")
        a("s_waitcnt lgkmcnt(0) vmcnt(0)")
        a(f"s_mul_i32 s58, s2, {self.maxw}")
        a(f"s_add_u32 s58, s58, {wave_s}")
        a("s_lshl_b32 s58, s58, 6")
        a(f"s_add_u32 s58, s58, {DBG_OFF + self.kidx * 0x100000}")
        a("v_mov_b32 v0, 0")
        for i in range(self.n):
            a(f"v_mov_b32 v1, s{72+2*i}")
            a(f"buffer_store_dword v1, v0, {srd_}, s58 offen offset:{4*i}")
        a("s_waitcnt vmcnt(0)")

def mfma16(a, d, x, y, c=None):
    c = vr(d, 4) if c is None else c
    a(f"v_mfma_f32_16x16x32_bf16 {vr(d,4)}, {vr(x,4)}, {vr(y,4)}, {c}")

def gen_qkv(layer):
    name = f"qkv{layer}_kernel"
    a = Asm(); header(a, name)
    WB = 0; WST = 20480
    XB = 61440; XST = 16384
    WKV = 110592
    MISC = 136192
    LDS = MISC + 512
    a(f"s_cmp_ge_u32 s2, 256")
    a(f"s_cbranch_scc1 L_{name}_end")
    S = Stamper(a, 0 + 5*layer, 4); S.real(); S.stamp()
    a(f"s_load_dwordx2 s[4:5], s[0:1], 0")
    a(f"s_load_dwordx4 s[8:11], s[0:1], 16")
    a(f"s_load_dwordx2 s[6:7], s[0:1], 8")
    a(f"s_load_dwordx2 s[12:13], s[0:1], 96")
    a("v_lshrrev_b32 v1, 6, v0")
    a("v_and_b32 v0, 63, v0")
    a("v_readfirstlane_b32 s32, v1")
    a("s_and_b32 s33, s2, 7")
    a("s_lshr_b32 s34, s2, 3")
    a("s_and_b32 s34, s34, 3")
    a("s_lshl_b32 s34, s34, 3")
    a("s_add_u32 s33, s33, s34")
    a("s_lshr_b32 s34, s2, 5")
    a("s_waitcnt lgkmcnt(0)")
    if layer == 1:
        a(f"s_add_u32 s4, s12, {hex(X2_OFF)}")
        a(f"s_addc_u32 s5, s13, 0")
    srd(a, 16, 4, 5, XBYTES)
    srd(a, 20, 6, 7, 819200)
    a("s_cmp_eq_u32 s34, 0")
    a("s_cselect_b32 s14, s8, s10")
    a("s_cselect_b32 s15, s9, s11")
    srd(a, 24, 14, 15, 25600)
    srd(a, 28, 12, 13, WS_SIZE)
    a("v_and_b32 v1, 15, v0")
    a("v_lshrrev_b32 v2, 4, v0")
    a("s_mul_i32 s35, s32, 320")
    a("s_mul_i32 s36, s34, 160")
    a("s_mov_b32 s37, 6554")
    a("s_movk_i32 s38, 1280")
    for jj in range(5):
        a(f"v_add_u32 v10, s35, v0")
        if jj: a(f"v_add_u32 v10, {64*jj}, v10")
        a("v_mul_lo_u32 v11, v10, s37")
        a("v_lshrrev_b32 v11, 16, v11")
        a("v_mul_u32_u24 v12, 10, v11")
        a("v_sub_u32 v12, v10, v12")
        a("v_mul_lo_u32 v11, v11, s38")
        a("v_lshl_add_u32 v11, v12, 4, v11")
        a(f"v_add_u32 v{4+jj}, s36, v11")
    a("v_lshrrev_b32 v10, 3, v0")
    a("v_and_b32 v11, 7, v0")
    a("s_lshl_b32 s39, s32, 4")
    for rh, dst in ((0, 9), (1, 3)):
        a(f"v_add_u32 v12, {8*rh}, v10")
        a("v_lshrrev_b32 v13, 1, v12")
        a("v_and_b32 v13, 7, v13")
        a("v_xor_b32 v13, v13, v11")
        a("v_add_u32 v12, s39, v12")
        a("v_mul_lo_u32 v12, v12, s38")
        a(f"v_lshl_add_u32 v{dst}, v13, 4, v12")
    a("v_lshlrev_b32 v14, 4, v0")
    a("s_mul_i32 s40, s33, 81920")
    a("s_mul_i32 s41, s32, 5120")
    a("s_lshl_b32 s42, s32, 12")
    a("s_cmp_ge_u32 s34, 2")
    a(f"s_cbranch_scc1 L_{name}_nokv")
    for it in range(7):
        a(f"s_add_u32 s43, s32, {4*it}")
        a("s_min_u32 s43, s43, 24")
        a("s_lshl_b32 s43, s43, 10")
        a(f"s_add_u32 s44, s43, {WKV}")
        a("s_mov_b32 m0, s44")
        a("s_nop 0")
        a("buffer_load_dwordx4 v14, s[24:27], s43 offen lds")
    a.label(f"L_{name}_nokv")
    def stage_ops(st):
        buf = st % 3
        ops = []
        for jj in range(5):
            ops.append([f"s_add_u32 s44, s41, {WB + buf*WST + jj*1024}", "s_mov_b32 m0, s44",
                        f"s_mov_b32 s43, {st*128*1280}", f"buffer_load_dwordx4 v{4+jj}, s[20:23], s43 offen lds"])
        for kb in range(2):
            for rh, vo in ((0, 9), (1, 3)):
                ops.append([f"s_add_u32 s44, s42, {XB + buf*XST + kb*2048 + rh*1024}", "s_mov_b32 m0, s44",
                            f"s_add_u32 s43, s40, {st*256 + kb*128}", f"buffer_load_dwordx4 v{vo}, s[16:19], s43 offen lds"])
        return ops
    def issue_stage(st):
        for op in stage_ops(st):
            for x in op: a(x)
    for st in range(2): issue_stage(st)
    S.stamp()
    a("v_lshrrev_b32 v10, 1, v1")
    a("v_and_b32 v10, 7, v10")
    a("v_lshrrev_b32 v11, 1, v2")
    a("v_and_b32 v12, 1, v2")
    a("v_lshlrev_b32 v13, 7, v1")
    a("v_lshl_add_u32 v13, v12, 3, v13")
    a("v_add_u32 v13, s42, v13")
    a(f"v_add_u32 v13, {XB}, v13")
    for h in range(2):
        for sec in range(2):
            a(f"v_add_u32 v15, {4*h + 2*sec}, v11")
            a("v_xor_b32 v15, v15, v10")
            a(f"v_lshl_add_u32 v{16 + 2*h + sec}, v15, 4, v13")
    a("v_lshrrev_b32 v10, 2, v1")
    a("v_lshl_add_u32 v10, v2, 2, v10")
    a("v_and_b32 v11, 3, v1")
    a("v_lshlrev_b32 v11, 3, v11")
    a("v_mul_u32_u24 v12, 160, v10")
    a("v_add_u32 v20, v12, v11")
    a("s_lshl_b32 s43, s32, 5")
    a("v_add_u32 v21, s43, v20")
    a("v_mul_u32_u24 v12, 40, v10")
    a("v_add_u32 v12, v12, v11")
    a(f"v_add_u32 v22, {WKV}, v12")
    ONES = 24
    ACC = 28
    CS4 = 56; CS5 = 60; CS6 = 64; CSO = 68; RS = 72; GR = 76
    FR = 80
    for r in range(4): a(f"v_mov_b32 v{ONES+r}, 0x3f803f80")
    for r in range(ACC, 80): a(f"v_mov_b32 v{r}, 0")
    def reads(st, ks4, fs, kv):
        buf = st % 3
        b = FR + 36 * fs
        kb = ks4 // 2; h = ks4 % 2
        xo = buf * XST + kb * 2048
        a(f"ds_read_b64 {vr(b,2)}, v{16+2*h} offset:{xo}")
        a(f"ds_read_b64 {vr(b+2,2)}, v{17+2*h} offset:{xo}")
        for nt in range(5):
            for half in range(2):
                off = WB + buf * WST + (32 * ks4 + 16 * half) * 160 + 32 * nt
                a(f"ds_read_b64_tr_b16 {vr(b+4+4*nt+2*half,2)}, v20 offset:{off}")
        for half in range(2):
            off = WB + buf * WST + (32 * ks4 + 16 * half) * 160
            a(f"ds_read_b64_tr_b16 {vr(b+32+2*half,2)}, v21 offset:{off}")
        if kv:
            for t in range(2):
                for half in range(2):
                    off = (st * 128 + 32 * ks4 + 16 * half) * 40 + 32 * t
                    a(f"ds_read_b64_tr_b16 {vr(b+24+4*t+2*half,2)}, v22 offset:{off}")
    def mfmas(fs, kv, pend):
        b = FR + 36 * fs
        l = [(ACC + 4 * nt, b + 4 + 4 * nt, b) for nt in range(5)]
        l += [(CS4, b + 4 + 16, ONES), (CSO, b + 32, ONES), (RS, ONES, b), (GR, b, b)]
        if kv:
            l += [(ACC + 20, b + 24, b), (ACC + 24, b + 28, b), (CS5, b + 24, ONES), (CS6, b + 28, ONES)]
        for idx, (d, x, y) in enumerate(l):
            mfma16(a, d, x, y)
            if idx % 3 == 1 and pend:
                for x_ in pend.pop(0): a(x_)
    def main_loop(kv):
        waits = [9, 9, 9, 9, 0]
        for st in range(5):
            a(f"s_waitcnt vmcnt({waits[st]})")
            a("s_barrier")
            if st == 0:
                if kv: S.stamp(); S.n -= 1
                else: S.stamp()
            pend = stage_ops(st + 2) if st + 2 < 5 else []
            reads(st, 0, 0, kv)
            for ks4 in range(4):
                a("s_waitcnt lgkmcnt(0)")
                if ks4 < 3: reads(st, ks4 + 1, (ks4 + 1) % 2, kv)
                mfmas(ks4 % 2, kv, pend)
            assert not pend
    a("s_cmp_ge_u32 s34, 2")
    a(f"s_cbranch_scc1 L_{name}_loopq")
    main_loop(True)
    a(f"s_branch L_{name}_epi")
    a.label(f"L_{name}_loopq")
    main_loop(False)
    a.label(f"L_{name}_epi")
    S.stamp()
    a("s_nop 7")
    a("s_nop 7")
    a("v_lshlrev_b32 v10, 4, v2")
    a("s_lshl_b32 s43, s32, 6")
    a(f"s_add_u32 s43, s43, {MISC}")
    a("v_add_u32 v11, s43, v10")
    a("v_cmp_eq_u32 vcc, 0, v1")
    a("s_and_saveexec_b64 s[46:47], vcc")
    a(f"ds_write_b128 v11, {vr(CSO,4)}")
    a("s_mov_b64 exec, s[46:47]")
    a("v_and_b32 v12, 3, v1")
    a(f"v_mov_b32 v13, v{GR}")
    for r in range(1, 4):
        a(f"v_cmp_eq_u32 vcc, {r}, v12")
        a("s_nop 1")
        a(f"v_cndmask_b32 v13, v13, v{GR+r}, vcc")
    a("v_lshrrev_b32 v12, 2, v1")
    a("v_lshl_add_u32 v12, v12, 4, v1")
    a("v_lshlrev_b32 v12, 2, v12")
    a("ds_bpermute_b32 v13, v12, v13")
    a("s_waitcnt lgkmcnt(0)")
    a("s_barrier")
    a(f"v_add_u32 v11, {MISC}, v10")
    CSX = FR
    for nt in range(4): a(f"ds_read_b128 {vr(CSX+4*nt,4)}, v11 offset:{64*nt}")
    a(f"s_mov_b32 s43, {hex(f2u(1.0/640))}")
    a(f"v_mul_f32 v14, s43, v{RS}")
    a("v_mul_f32 v13, s43, v13")
    a("v_fma_f32 v13, -v14, v14, v13")
    a("v_max_f32 v13, 0, v13")
    a(f"v_add_f32 v13, {hex(f2u(1e-5))}, v13")
    a("v_rsq_f32 v15, v13")
    a("s_nop 0")
    qs = (20 ** -0.5) * math.log2(math.e)
    a(f"v_mul_f32 v23, {hex(f2u(qs))}, v15")
    a("s_waitcnt lgkmcnt(0)")
    a("s_lshl_b32 s43, s33, 2")
    a("s_add_u32 s43, s43, s32")
    a("s_mul_i32 s44, s43, 20480")
    a("s_mul_i32 s45, s34, 2560")
    a("s_add_u32 s44, s44, s45")
    a(f"s_add_u32 s44, s44, {QT_OFF}")
    a("v_lshlrev_b32 v10, 3, v0")
    T = FR + 16
    for nt in range(5):
        cs = CSX + 4 * nt if nt < 4 else CS4
        for r in range(4):
            a(f"v_fma_f32 v{T+r}, -v14, v{cs+r}, v{ACC+4*nt+r}")
            a(f"v_mul_f32 v{T+r}, v23, v{T+r}")
        a(f"v_cvt_pk_bf16_f32 v{T+4+2*nt}, v{T}, v{T+1}")
        a(f"v_cvt_pk_bf16_f32 v{T+5+2*nt}, v{T+2}, v{T+3}")
        a(f"buffer_store_dwordx2 {vr(T+4+2*nt,2)}, v10, s[28:31], s44 offen offset:{512*nt}")
    a("s_cmp_lg_u32 s32, 0")
    a(f"s_cbranch_scc1 L_{name}_nozero")
    a("v_cmp_gt_u32 vcc, 16, v0")
    a("s_and_saveexec_b64 s[46:47], vcc")
    a("v_mov_b32 v11, 0")
    a("v_lshlrev_b32 v12, 2, v0")
    a("s_lshl_b32 s45, s2, 6")
    a(f"s_add_u32 s45, s45, {ST_OFF}")
    a("buffer_store_dword v11, v12, s[28:31], s45 offen")
    a("s_and_b32 s45, s2, 63")
    a("s_lshl_b32 s45, s45, 8")
    a(f"s_add_u32 s45, s45, {CNT_OFF}")
    a("buffer_store_dword v11, v12, s[28:31], s45 offen")
    a("s_mov_b64 exec, s[46:47]")
    a.label(f"L_{name}_nozero")
    a("s_cmp_ge_u32 s34, 2")
    a(f"s_cbranch_scc1 L_{name}_fin")
    for t, cs in ((0, CS5), (1, CS6)):
        for r in range(4):
            a(f"v_fma_f32 v{T+4*t+r}, -v14, v{cs+r}, v{ACC+20+4*t+r}")
            a(f"v_mul_f32 v{T+4*t+r}, v15, v{T+4*t+r}")
    a("s_lshl_b32 s43, s33, 1")
    a("s_lshr_b32 s44, s32, 1")
    a("s_add_u32 s43, s43, s44")
    a(f"s_mul_i32 s43, s43, {KVT}")
    a(f"s_add_u32 s43, s43, {KV_OFF}")
    a("s_and_b32 s44, s32, 1")
    a("s_cmp_lg_u32 s34, 0")
    a(f"s_cbranch_scc1 L_{name}_vstore")
    a(f"v_cvt_pk_bf16_f32 v{T+8}, v{T}, v{T+1}")
    a(f"v_cvt_pk_bf16_f32 v{T+9}, v{T+2}, v{T+3}")
    a(f"v_cvt_pk_bf16_f32 v{T+10}, v{T+4}, v{T+5}")
    a(f"v_cvt_pk_bf16_f32 v{T+11}, v{T+6}, v{T+7}")
    a("s_lshl_b32 s45, s44, 4")
    a("v_add_u32 v10, s45, v1")
    a("v_lshrrev_b32 v11, 1, v2")
    a("v_lshlrev_b32 v11, 9, v11")
    a("v_lshl_add_u32 v11, v10, 4, v11")
    a("v_and_b32 v12, 1, v2")
    a("v_lshl_add_u32 v11, v12, 3, v11")
    a(f"buffer_store_dwordx2 {vr(T+8,2)}, v11, s[28:31], s43 offen")
    a("v_lshlrev_b32 v11, 2, v10")
    a("v_cmp_eq_u32 vcc, 0, v2")
    a("s_and_saveexec_b64 s[46:47], vcc")
    a(f"buffer_store_dword v{T+10}, v11, s[28:31], s43 offen offset:1024")
    a(f"buffer_store_dword v{T+11}, v11, s[28:31], s43 offen offset:1152")
    a("s_mov_b64 exec, s[46:47]")
    a(f"s_branch L_{name}_fin")
    a.label(f"L_{name}_vstore")
    for r in range(8): a(f"v_cvt_pk_bf16_f32 v{T+8+r}, v{T+r}, v{T+r}")
    a("s_mul_i32 s45, s44, 672")
    a("s_add_u32 s43, s43, s45")
    a("v_lshrrev_b32 v10, 3, v1")
    a("v_lshlrev_b32 v10, 2, v10")
    a("v_and_b32 v11, 3, v1")
    a("v_add_u32 v10, v10, v11")
    a("v_lshlrev_b32 v10, 1, v10")
    a("v_bfe_u32 v11, v1, 2, 1")
    a("v_mul_u32_u24 v11, 336, v11")
    a("v_add_u32 v10, v10, v11")
    a("v_lshl_add_u32 v11, v2, 6, v10")
    for r in range(4):
        a(f"buffer_store_short v{T+8+r}, v11, s[28:31], s43 offen offset:{1280 + 16*r}")
    a("v_cmp_eq_u32 vcc, 0, v2")
    a("s_and_saveexec_b64 s[46:47], vcc")
    for r in range(4):
        a(f"buffer_store_short v{T+12+r}, v10, s[28:31], s43 offen offset:{1280 + 16*(16+r)}")
    a(f"buffer_store_short v{ONES}, v10, s[28:31], s43 offen offset:{1280 + 16*20}")
    a("s_mov_b64 exec, s[46:47]")
    a.label(f"L_{name}_fin")
    S.stamp(); S.real(); S.flush()
    a.label(f"L_{name}_end")
    a("s_endpgm")
    return name, a.text(), kd(name, 160), f"; @launch kernel={name} grid=(256,1,1) block=(256,1,1) lds={LDS}"

def mfma32(a, d, x, y, c=None):
    c = vr(d, 16) if c is None else c
    a(f"v_mfma_f32_32x32x16_bf16 {vr(d,16)}, {vr(x,4)}, {vr(y,4)}, {c}")

def gen_attn():
    name = "attn0_kernel"
    a = Asm()
    header(a, "attn1_kernel")
    a("s_mov_b32 s99, 1")
    a("s_branch L_attn_body")
    header(a, name)
    a("s_mov_b32 s99, 0")
    a.label("L_attn_body")
    NLT = 60
    CH = 16 * KVT
    QL = 56 * KVT
    FLAG = 154 * 1024
    LDS = FLAG + 64
    QMAX = 153
    QF1 = 8; QF2 = 12; NEGM = 16; S_ = [32, 48]; O = 64; P = [80, 88]
    KB = [96, 104]
    VB = [112, 120]
    AC = 128
    VOFF = 134; K2OFF = 135; PFO = 136; DUM = 140
    RT = 144
    NV = RT + 64
    a(f"s_cmp_ge_u32 s2, 256")
    a(f"s_cbranch_scc1 L_{name}_end")
    S = Stamper(a, 1, 8); S.real(); S.stamp()
    a(f"s_load_dwordx2 s[12:13], s[0:1], 96")
    a("s_load_dwordx2 s[14:15], s[0:1], 32")
    a("s_load_dwordx2 s[16:17], s[0:1], 48")
    a("v_lshrrev_b32 v1, 6, v0")
    a("v_and_b32 v0, 63, v0")
    a("v_readfirstlane_b32 s32, v1")
    a("s_and_b32 s33, s2, 7")
    a("s_lshr_b32 s34, s2, 3")
    a("s_and_b32 s34, s34, 3")
    a("s_lshl_b32 s34, s34, 3")
    a("s_add_u32 s33, s33, s34")
    a("s_lshl_b32 s33, s33, 6")
    a("s_lshr_b32 s34, s2, 5")
    a("s_lshl_b32 s34, s34, 3")
    a("s_add_u32 s33, s33, s34")
    a("v_lshlrev_b32 v3, 4, v0")
    a("v_lshrrev_b32 v4, 2, v0")
    a("v_lshlrev_b32 v4, 7, v4")
    a("v_and_b32 v5, 3, v0")
    a("v_lshl_add_u32 v4, v5, 4, v4")
    a("s_lshr_b32 s34, s33, 4")
    a("s_mul_i32 s34, s34, 20480")
    a("s_and_b32 s35, s33, 15")
    a("s_lshl_b32 s36, s35, 3")
    a("s_add_u32 s34, s34, s36")
    a(f"s_add_u32 s34, s34, {QT_OFF}")
    a("s_lshl_b32 s36, s32, 11")
    a("s_add_u32 s36, s36, s34")
    a("s_lshl_b32 s37, s32, 10")
    a(f"s_add_u32 s37, s37, {QL}")
    a("s_lshl_b32 s50, s32, 10")
    a("s_waitcnt lgkmcnt(0)")
    srd(a, 28, 12, 13, WS_SIZE)
    a("s_mov_b32 m0, s37")
    a("s_add_u32 s33, s33, s32")
    a("buffer_load_dwordx4 v4, s[28:31], s36 offen lds")
    a("s_cmp_ge_u32 s32, 2")
    a(f"s_cbranch_scc1 L_{name}_q1")
    a("s_add_u32 s37, s37, 8192")
    a("s_mov_b32 m0, s37")
    a("s_add_u32 s36, s36, 16384")
    a("buffer_load_dwordx4 v4, s[28:31], s36 offen lds")
    a.label(f"L_{name}_q1")
    a("s_mov_b32 s40, 0")
    def dma_piece():
        a(f"s_min_u32 s43, s50, {QMAX*1024}")
        a("s_mov_b32 m0, s43")
        a(f"s_add_u32 s43, s43, {KV_OFF}")
        a("buffer_load_dwordx4 v3, s[28:31], s43 offen lds")
        a("s_add_u32 s50, s50, 8192")
    for i in range(6): dma_piece()
    a("s_and_b32 s35, s33, 15")
    srd(a, 20, 14, 15, 819200)
    srd(a, 24, 16, 17, 2048*1728*2)
    a("s_lshr_b32 s54, s2, 3")
    a("s_lshl_b32 s54, s54, 3")
    a("s_add_u32 s54, s54, s32")
    a("s_mul_i32 s55, s54, 3200")
    a("s_and_b32 s56, s2, 7")
    a("s_mul_i32 s56, s56, 27")
    a("s_lshr_b32 s56, s56, 3")
    a("s_lshl_b32 s56, s56, 7")
    a(f"s_mul_i32 s57, s54, {8*3456}")
    a("s_add_u32 s56, s56, s57")
    a("v_lshrrev_b32 v4, 3, v0")
    a("v_mul_u32_u24 v4, 3456, v4")
    a("v_and_b32 v5, 7, v0")
    a(f"v_lshl_add_u32 v{PFO}, v5, 4, v4")
    a("v_and_b32 v1, 31, v0")
    a("v_lshrrev_b32 v2, 5, v0")
    a("v_mov_b32 v4, 0")
    a(f"v_mov_b32 v5, {FLAG}")
    a("ds_write_b32 v5, v4")
    for r in range(1, 4): a(f"v_mov_b32 v{QF2+r}, 0")
    for kb in KB + [RT + 16 * j for j in range(4)]:
        for r in range(5, 8): a(f"v_mov_b32 v{kb+r}, 0")
    a("v_min_u32 v4, 20, v1")
    a("v_subrev_u32 v5, 12, v1")
    a("v_cmp_lt_u32 vcc, 27, v1")
    a("s_nop 1")
    a("v_cndmask_b32 v4, v4, v5, vcc")
    a("v_lshlrev_b32 v4, 4, v4")
    a("v_mul_u32_u24 v5, 336, v2")
    a("v_add_u32 v4, v4, v5")
    a(f"v_add_u32 v{VOFF}, 1280, v4")
    a(f"v_lshlrev_b32 v{K2OFF}, 2, v0")
    a(f"v_add_u32 v{K2OFF}, 1024, v{K2OFF}")
    a("v_mul_u32_u24 v4, 5, v1")
    a("v_lshl_add_u32 v5, v2, 1, v4")
    a("v_lshlrev_b32 v5, 6, v5")
    a("s_lshl_b32 s36, s32, 3")
    a(f"s_add_u32 s36, s36, {QL}")
    a("v_add_u32 v5, s36, v5")
    a("v_add_u32 v6, 4, v4")
    a("v_lshlrev_b32 v6, 6, v6")
    a("v_lshl_add_u32 v6, v2, 2, v6")
    a("v_add_u32 v6, s36, v6")
    a("s_waitcnt vmcnt(4) lgkmcnt(0)")
    a("s_barrier")
    a(f"ds_read_b64 {vr(QF1,2)}, v5")
    a(f"ds_read_b64 {vr(QF1+2,2)}, v5 offset:64")
    a(f"ds_read_b32 v{QF2}, v6")
    a(f"ds_read_b128 {vr(KB[0],4)}, v3")
    a(f"ds_read_b32 v{KB[0]+4}, v{K2OFF}")
    a("s_waitcnt lgkmcnt(0)")
    mfma32(a, S_[0], KB[0], QF1, "0")
    mfma32(a, S_[0], KB[0] + 4, QF2)
    a("s_nop 15")
    a("s_nop 3")
    a(f"v_max_f32 v7, v{S_[0]}, v{S_[0]+1}")
    for r in range(2, 16, 2): a(f"v_max3_f32 v7, v7, v{S_[0]+r}, v{S_[0]+r+1}")
    a(f"s_branch L_{name}_havemax")
    a.label(f"L_{name}_restart")
    a(f"v_mov_b32 v{AC}, v3")
    a(f"v_mov_b32 v{AC+1}, v{K2OFF}")
    a(f"v_mov_b32 v7, 0xff800000")
    a("s_mov_b32 s41, 0")
    a.label(f"L_{name}_mx")
    a(f"ds_read_b128 {vr(KB[0],4)}, v{AC}")
    a(f"ds_read_b32 v{KB[0]+4}, v{AC+1}")
    a(f"v_add_u32 v{AC}, {KVT}, v{AC}")
    a(f"v_add_u32 v{AC+1}, {KVT}, v{AC+1}")
    a("s_waitcnt lgkmcnt(0)")
    mfma32(a, S_[0], KB[0], QF1, "0")
    mfma32(a, S_[0], KB[0] + 4, QF2)
    a("s_nop 15")
    a("s_nop 3")
    for r in range(0, 16, 2): a(f"v_max3_f32 v7, v7, v{S_[0]+r}, v{S_[0]+r+1}")
    a("s_add_u32 s41, s41, 1")
    a(f"s_cmp_lt_u32 s41, {NLT}")
    a(f"s_cbranch_scc1 L_{name}_mx")
    for j in range(4):
        mfma32(a, S_[0], RT + 16 * j, QF1, "0")
        mfma32(a, S_[0], RT + 16 * j + 4, QF2)
        a("s_nop 15")
        a("s_nop 3")
        for r in range(0, 16, 2): a(f"v_max3_f32 v7, v7, v{S_[0]+r}, v{S_[0]+r+1}")
    a.label(f"L_{name}_havemax")
    S.stamp()
    a("v_mov_b32 v4, v7")
    a("v_mov_b32 v5, v7")
    a("s_nop 1")
    a("v_permlane32_swap_b32 v4, v5")
    a("s_nop 1")
    a("v_max_f32 v7, v4, v5")
    a("v_sub_f32 v7, 0, v7")
    for r in range(16): a(f"v_mov_b32 v{NEGM+r}, v7")
    for r in range(16): a(f"v_mov_b32 v{O+r}, 0")
    for r in range(8): a(f"v_mov_b32 v{P[1]+r}, 0")
    for r in range(8): a(f"v_mov_b32 v{VB[1]+r}, 0")
    a(f"v_mov_b32 v{AC}, v3"); a(f"v_mov_b32 v{AC+1}, v{K2OFF}"); a(f"v_mov_b32 v{AC+2}, v{VOFF}")
    a(f"ds_read_b128 {vr(KB[0],4)}, v{AC}")
    a(f"ds_read_b32 v{KB[0]+4}, v{AC+1}")
    a(f"ds_read_b128 {vr(KB[1],4)}, v{AC} offset:{KVT}")
    a(f"ds_read_b32 v{KB[1]+4}, v{AC+1} offset:{KVT}")
    a("s_waitcnt lgkmcnt(2)")
    mfma32(a, S_[0], KB[0], QF1, vr(NEGM, 16))
    mfma32(a, S_[0], KB[0] + 4, QF2)
    a("s_lshl_b32 s41, s40, 3")
    a("s_mov_b32 s42, 0")
    PON = int(os.environ.get("PON", "0")); POFF = int(os.environ.get("POFF", "12"))
    def body(t, last):
        sc = S_[t % 2]; sn = S_[(t + 1) % 2]
        kl = KB[t % 2]; vl = VB[t % 2]
        pp = P[(t + 1) % 2]; pc = P[t % 2]
        gt = 48 + t if last else None
        kn = KB[(t + 1) % 2] if not (last and gt + 1 >= NLT) else RT + 16 * (gt + 1 - NLT)
        vp = VB[(t + 1) % 2] if not (last and gt - 1 >= NLT) else RT + 16 * (gt - 1 - NLT) + 8
        tag = "L" if last else ""
        if not last:
            if t == 4:
                a("s_cmp_lg_u32 s41, 0")
                a(f"s_cbranch_scc1 L_{name}_nb4")
                a("s_waitcnt vmcnt(4)")
                a("s_barrier")
                a.label(f"L_{name}_nb4")
            if t == 14:
                a("s_cmp_lg_u32 s41, 0")
                a(f"s_cbranch_scc1 L_{name}_nb14")
                a("s_waitcnt vmcnt(0)")
                a("s_barrier")
                a.label(f"L_{name}_nb14")
            if t in (0, 5, 8, 11):
                a("s_cmp_lg_u32 s41, 0")
                a(f"s_cbranch_scc1 L_{name}_sk{t}")
                for i in range(4 if t < 11 else 2): dma_piece()
                a.label(f"L_{name}_sk{t}")
            if t in (2, 9):
                a("s_cmp_lg_u32 s41, 1")
                a(f"s_cbranch_scc1 L_{name}_pf{t}")
                if t == 2:
                    for j in range(4):
                        a(f"s_mov_b32 s43, {KV_OFF + (NLT+j)*KVT}")
                        a(f"buffer_load_dwordx4 {vr(RT+16*j,4)}, v3, s[28:31], s43 offen")
                        a(f"buffer_load_dword v{RT+16*j+4}, v{K2OFF}, s[28:31], s43 offen")
                        a(f"buffer_load_dwordx4 {vr(RT+16*j+8,4)}, v{VOFF}, s[28:31], s43 offen")
                        a(f"buffer_load_dwordx4 {vr(RT+16*j+12,4)}, v{VOFF}, s[28:31], s43 offen offset:672")
                else:
                    for k in range(4):
                        a(f"buffer_load_dwordx4 {vr(DUM,4)}, v3, s[20:23], s55 offen offset:{min(k*1024, 3200-1024)}")
                    for k in range(5):
                        a(f"buffer_load_dwordx4 {vr(DUM,4)}, v{PFO}, s[24:27], s56 offen offset:{k*128}")
                a.label(f"L_{name}_pf{t}")
        if t == PON:
            a("s_cmp_lt_u32 s32, 4")
            a(f"s_cbranch_scc1 L_{name}_np{tag}")
            a("s_setprio 1")
            a.label(f"L_{name}_np{tag}")
        if t == POFF: a("s_setprio 0")
        a("s_waitcnt lgkmcnt(0)")
        ldk = not (last and gt + 2 >= NLT)
        ldv = not (last and gt >= NLT)
        dos = not (last and t == 15)
        if dos: mfma32(a, sn, kn, QF1, vr(NEGM, 16))
        if ldk:
            a(f"ds_read_b128 {vr(kl,4)}, v{AC} offset:{(t+2)*KVT}")
            a(f"ds_read_b32 v{kl+4}, v{AC+1} offset:{(t+2)*KVT}")
        for r in range(0, 4): a(f"v_exp_f32 v{sc+r}, v{sc+r}")
        mfma32(a, O, vp, pp)
        if ldv:
            a(f"ds_read_b128 {vr(vl,4)}, v{AC+2} offset:{t*KVT}")
            a(f"ds_read_b128 {vr(vl+4,4)}, v{AC+2} offset:{t*KVT+672}")
        for r in range(4, 8): a(f"v_exp_f32 v{sc+r}, v{sc+r}")
        for r in range(4): a(f"v_cvt_pk_bf16_f32 v{pc+r}, v{sc+2*r}, v{sc+2*r+1}")
        if dos: mfma32(a, sn, kn + 4, QF2)
        for r in range(8, 12): a(f"v_exp_f32 v{sc+r}, v{sc+r}")
        mfma32(a, O, vp + 4, pp + 4)
        for r in range(12, 16): a(f"v_exp_f32 v{sc+r}, v{sc+r}")
        for r in range(4): a(f"v_cvt_pk_bf16_f32 v{pc+4+r}, v{sc+8+2*r}, v{sc+8+2*r+1}")
    a.label(f"L_{name}_chunk")
    for t in range(16): body(t, False)
    for r in range(3): a(f"v_add_u32 v{AC+r}, {CH}, v{AC+r}")
    a("s_add_u32 s41, s41, 1")
    a("s_add_u32 s42, s42, 1")
    a("s_cmp_lt_u32 s42, 3")
    a(f"s_cbranch_scc1 L_{name}_chunk")
    a("s_waitcnt vmcnt(0)")
    for t in range(16): body(t, True)
    a("s_setprio 0")
    a("s_nop 1")
    mfma32(a, O, RT + 48 + 8, P[1])
    mfma32(a, O, RT + 48 + 12, P[1] + 4)
    S.stamp()
    a("s_nop 15")
    a("s_nop 3")
    a(f"v_mov_b32 v4, v{O+8}")
    a(f"v_mov_b32 v5, v{O+8}")
    a("s_nop 1")
    a("v_permlane32_swap_b32 v4, v5")
    a("v_mov_b32 v6, 0")
    for r in range(12): a(f"v_fma_f32 v6, v{O+r}, 0, v6")
    a(f"v_fma_f32 v6, v5, 0, v6")
    a(f"s_mov_b32 s43, {hex(f2u(2.0**100))}")
    a("v_cmp_neq_f32 vcc, 0, v6")
    a("v_cmp_nlt_f32 s[46:47], v5, s43")
    a("s_or_b64 vcc, vcc, s[46:47]")
    a("s_cmp_lg_u32 s40, 0")
    a(f"s_cbranch_scc1 L_{name}_store")
    a(f"s_cbranch_vccz L_{name}_store")
    a("s_mov_b32 s40, 1")
    a(f"s_branch L_{name}_restart")
    a.label(f"L_{name}_store")
    a("v_rcp_f32 v5, v5")
    a("s_nop 0")
    for r in range(12): a(f"v_mul_f32 v{O+r}, v5, v{O+r}")
    for r in range(6): a(f"v_cvt_pk_bf16_f32 v{S_[0]+r}, v{O+2*r}, v{O+2*r+1}")
    OST = 140000 // 1024 * 1024
    a("v_mul_u32_u24 v4, 20, v1")
    a("v_lshl_add_u32 v4, v2, 2, v4")
    a("s_lshl_b32 s36, s32, 4")
    a(f"s_add_u32 s36, s36, {OST}")
    for grp in range(3):
        a(f"v_add_u32 v5, {8*grp}, v4")
        a("v_lshrrev_b32 v6, 5, v5")
        a("v_lshlrev_b32 v6, 9, v6")
        a("v_bfe_u32 v7, v5, 2, 2")
        a("v_lshl_add_u32 v6, v7, 7, v6")
        a("v_bfe_u32 v7, v5, 4, 1")
        a("v_lshl_add_u32 v6, v7, 3, v6")
        a(f"v_add_u32 v{10+grp}, s36, v6")
    a("s_barrier")
    for grp in range(3):
        if grp == 2:
            a("v_cmp_eq_u32 vcc, 0, v2")
            a("s_and_saveexec_b64 s[46:47], vcc")
        a(f"ds_write_b64 v{10+grp}, {vr(S_[0]+2*grp,2)}")
    a("s_mov_b64 exec, -1")
    S.stamp()
    RES = 102400; RED = RES + 10240
    a("s_load_dwordx2 s[4:5], s[0:1], 0")
    a("s_lshr_b32 s33, s33, 6")
    a("s_lshr_b32 s34, s2, 5")
    a("v_and_b32 v1, 15, v0")
    a("v_lshrrev_b32 v2, 4, v0")
    a("s_mul_i32 s36, s34, 160")
    a("s_mov_b32 s37, 6554")
    a("s_movk_i32 s38, 1280")
    for r in range(5):
        a(f"v_add_u32 v10, {64*r}, v0")
        a("v_mul_lo_u32 v11, v10, s37")
        a("v_lshrrev_b32 v11, 16, v11")
        a("v_mul_u32_u24 v12, 10, v11")
        a("v_sub_u32 v12, v10, v12")
        a("v_mul_lo_u32 v11, v11, s38")
        a("v_lshl_add_u32 v11, v12, 4, v11")
        a(f"v_add_u32 v11, s36, v11")
        a(f"v_subrev_u32 v{4+r}, {1024*(r%4)}, v11")
    a("s_waitcnt lgkmcnt(0)")
    a(f"s_add_u32 s8, s12, {hex(X2_OFF)}")
    a("s_addc_u32 s9, s13, 0")
    a("s_cmp_eq_u32 s99, 0")
    a("s_cselect_b32 s4, s4, s8")
    a("s_cselect_b32 s5, s5, s9")
    srd(a, 16, 4, 5, XBYTES)
    a("s_waitcnt lgkmcnt(0)")
    a("s_barrier")
    a("s_lshl_b32 s43, s32, 10")
    a(f"s_add_u32 s43, s43, {OST}")
    a("v_add_u32 v10, s43, v3")
    a(f"ds_read_b128 v[32:35], v10")
    a(f"ds_read_b128 v[36:39], v10 offset:8192")
    a("v_lshrrev_b32 v11, 3, v0")
    a("v_lshlrev_b32 v11, 8, v11")
    a("v_and_b32 v12, 7, v0")
    a("v_lshl_add_u32 v11, v12, 4, v11")
    a("s_lshl_b32 s44, s33, 2")
    a("s_lshr_b32 s45, s34, 1")
    a("s_add_u32 s44, s44, s45")
    a("s_mul_i32 s44, s44, 20480")
    a("s_and_b32 s45, s34, 1")
    a("s_lshl_b32 s45, s45, 7")
    a("s_add_u32 s44, s44, s45")
    a("s_lshl_b32 s45, s32, 11")
    a("s_add_u32 s44, s44, s45")
    a(f"s_add_u32 s44, s44, {OF_OFF}")
    a("s_waitcnt lgkmcnt(0)")
    a("buffer_store_dwordx4 v[32:35], v11, s[28:31], s44 offen sc1")
    a("s_cmp_ge_u32 s32, 2")
    a(f"s_cbranch_scc1 L_{name}_os")
    a("s_add_u32 s44, s44, 16384")
    a("buffer_store_dwordx4 v[36:39], v11, s[28:31], s44 offen sc1")
    a.label(f"L_{name}_os")
    S.stamp()
    def wgroup(srd_, soff, ldsb):
        a(f"s_mov_b32 m0, {ldsb}")
        a(f"s_add_u32 s45, {ldsb}, 4096")
        for r in range(4):
            a(f"buffer_load_dwordx4 v{4+r}, {srd_}, {soff} offen offset:{1024*r} lds")
        a("s_mov_b32 m0, s45")
        a("s_nop 0")
        a(f"buffer_load_dwordx4 v8, {srd_}, {soff} offen lds")
    a(f"s_mul_i32 s40, s32, {32*1280}")
    a("s_add_u32 s40, s40, 4096")
    a("s_mul_i32 s41, s32, 5120")
    a("s_sub_u32 s60, s20, 4096")
    a("s_subb_u32 s61, s21, 0")
    a(f"s_mov_b32 s62, {819200+4096}")
    a("s_mov_b32 s63, 0x00020000")
    a("s_sub_u32 s64, s16, 4096")
    a("s_subb_u32 s65, s17, 0")
    a(f"s_mov_b32 s66, {XBYTES+4096}")
    a("s_mov_b32 s67, 0x00020000")
    for r in range(5): a(f"v_add_u32 v{4+r}, 4096, v{4+r}")
    a(f"s_mul_i32 s40, s32, {32*1280}")
    wgroup("s[60:63]", "s40", "s41")
    a(f"s_add_u32 s40, s40, {8*32*1280}")
    a(f"s_add_u32 s41, s41, {8*5120}")
    wgroup("s[60:63]", "s40", "s41")
    a("s_cmp_ge_u32 s32, 4")
    a(f"s_cbranch_scc1 L_{name}_w3")
    a(f"s_add_u32 s40, s40, {8*32*1280}")
    a(f"s_add_u32 s41, s41, {8*5120}")
    wgroup("s[60:63]", "s40", "s41")
    a(f"s_branch L_{name}_w4")
    a.label(f"L_{name}_w3")
    a("s_cmp_ge_u32 s32, 6")
    a(f"s_cbranch_scc1 L_{name}_w4")
    a("s_sub_u32 s43, s32, 4")
    a(f"s_mul_i32 s40, s43, {32*1280}")
    a("s_mul_i32 s44, s33, 81920")
    a("s_add_u32 s40, s40, s44")
    a("s_mul_i32 s41, s43, 5120")
    a(f"s_add_u32 s41, s41, {RES}")
    wgroup("s[64:67]", "s40", "s41")
    a.label(f"L_{name}_w4")
    S.stamp()
    a("s_waitcnt vmcnt(10)")
    S.stamp()
    a("s_barrier")
    S.stamp()
    a("s_cmp_lg_u32 s32, 0")
    a(f"s_cbranch_scc1 L_{name}_nopoll")
    a("s_lshl_b32 s43, s33, 8")
    a(f"s_add_u32 s43, s43, {CNT_OFF}")
    a("v_mov_b32 v10, s43")
    a("v_mov_b32 v11, 1")
    a("s_mov_b64 exec, 1")
    a("buffer_atomic_add v11, v10, s[28:31], 0 offen")
    a.label(f"L_{name}_poll")
    a("buffer_load_dword v12, v10, s[28:31], 0 offen sc1")
    a("s_waitcnt vmcnt(0)")
    a("v_readfirstlane_b32 s43, v12")
    a("s_cmp_ge_u32 s43, 8")
    a(f"s_cbranch_scc1 L_{name}_polled")
    a("s_sleep 1")
    a(f"s_branch L_{name}_poll")
    a.label(f"L_{name}_polled")
    a("s_mov_b64 exec, -1")
    a.label(f"L_{name}_nopoll")
    S.stamp()
    a("s_and_b32 s52, s32, 3")
    a("s_lshr_b32 s53, s32, 2")
    a("s_lshl_b32 s42, s33, 2")
    a("s_add_u32 s42, s42, s52")
    a("s_mul_i32 s43, s42, 20480")
    a("s_mul_i32 s44, s53, 10240")
    a("s_add_u32 s43, s43, s44")
    a(f"s_add_u32 s43, s43, {OF_OFF}")
    a("v_lshrrev_b32 v10, 2, v1")
    a("v_lshl_add_u32 v10, v2, 2, v10")
    a("v_and_b32 v11, 3, v1")
    a("v_lshlrev_b32 v11, 3, v11")
    a("v_mul_u32_u24 v12, 160, v10")
    a("v_add_u32 v20, v12, v11")
    a("s_mul_i32 s48, s52, 2560")
    a(f"s_add_u32 s48, s48, {RES}")
    a("v_add_u32 v22, s48, v20")
    a("s_mul_i32 s48, s53, 51200")
    a("v_add_u32 v20, s48, v20")
    ACC = 24; XF = 64; WF = 104
    for r in range(ACC, ACC + 20): a(f"v_mov_b32 v{r}, 0")
    a("s_waitcnt vmcnt(0)")
    a("s_barrier")
    S.stamp()
    for j in range(10):
        if j == 4: a("s_add_u32 s43, s43, 4096")
        if j == 8: a("s_add_u32 s43, s43, 4096")
        a(f"buffer_load_dwordx4 {vr(XF+4*j,4)}, v3, s[28:31], s43 offen offset:{1024*(j%4)} sc1")
    def reads(ks, fs):
        b = WF + 20 * fs
        for nt in range(5):
            for half in range(2):
                off = (32 * ks + 16 * half) * 160 + 32 * nt
                a(f"ds_read_b64_tr_b16 {vr(b+4*nt+2*half,2)}, v20 offset:{off}")
    reads(0, 0)
    for j in range(10):
        a(f"s_waitcnt lgkmcnt(0) vmcnt({9-j})")
        if j < 9: reads(j + 1, (j + 1) % 2)
        b = WF + 20 * (j % 2)
        for nt in range(5): mfma16(a, ACC + 4 * nt, XF + 4 * j, b + 4 * nt)
    a("s_mul_i32 s44, s52, 5120")
    a(f"s_add_u32 s44, s44, {RED}")
    a("v_add_u32 v10, s44, v3")
    a("s_cmp_eq_u32 s53, 0")
    a(f"s_cbranch_scc1 L_{name}_kh0")
    a("s_nop 7")
    for nt in range(5): a(f"ds_write_b128 v10, {vr(ACC+4*nt,4)} offset:{1024*nt}")
    a("s_waitcnt lgkmcnt(0)")
    a("s_barrier")
    a(f"s_branch L_{name}_fin")
    a.label(f"L_{name}_kh0")
    RS = 144
    for nt in range(5): a(f"ds_read_b64_tr_b16 {vr(RS+2*nt,2)}, v22 offset:{32*nt}")
    SUM = 44; SQ = 48; T = 52
    for r in range(8): a(f"v_mov_b32 v{SUM+r}, 0")
    a("s_mul_i32 s44, s34, 327680")
    a("s_lshr_b32 s45, s42, 1")
    a("s_lshl_b32 s45, s45, 10")
    a("s_add_u32 s44, s44, s45")
    a("s_and_b32 s45, s42, 1")
    a("s_lshl_b32 s45, s45, 3")
    a("s_add_u32 s44, s44, s45")
    a(f"s_add_u32 s44, s44, {X1T_OFF}")
    a("s_mov_b32 s46, 0xffff0000")
    a("s_barrier")
    for nt in range(5): a(f"ds_read_b128 {vr(XF+4*nt,4)}, v10 offset:{1024*nt}")
    a("s_waitcnt lgkmcnt(0)")
    for r in range(20): a(f"v_add_f32 v{ACC+r}, v{ACC+r}, v{XF+r}")
    OUT = 160
    for nt in range(5):
        for h in range(2):
            a(f"v_lshlrev_b32 v{T}, 16, v{RS+2*nt+h}")
            a(f"v_and_b32 v{T+1}, s46, v{RS+2*nt+h}")
            a(f"v_add_f32 v{T}, v{T}, v{ACC+4*nt+2*h}")
            a(f"v_add_f32 v{T+1}, v{T+1}, v{ACC+4*nt+2*h+1}")
            o = OUT + 2 * nt + h
            a(f"v_cvt_pk_bf16_f32 v{o}, v{T}, v{T+1}")
            a(f"v_lshlrev_b32 v{T}, 16, v{o}")
            a(f"v_and_b32 v{T+1}, s46, v{o}")
            a(f"v_add_f32 v{SUM+2*h}, v{SUM+2*h}, v{T}")
            a(f"v_add_f32 v{SUM+2*h+1}, v{SUM+2*h+1}, v{T+1}")
            a(f"v_fma_f32 v{SQ+2*h}, v{T}, v{T}, v{SQ+2*h}")
            a(f"v_fma_f32 v{SQ+2*h+1}, v{T+1}, v{T+1}, v{SQ+2*h+1}")
        a(f"buffer_store_dwordx2 {vr(OUT+2*nt,2)}, v3, s[28:31], s44 offen")
        if nt < 4: a("s_add_u32 s44, s44, 65536")
    for sh in (8, 4, 2, 1):
        a("s_nop 1")
        for r in range(8):
            a(f"v_add_f32_dpp v{SUM+r}, v{SUM+r}, v{SUM+r} row_ror:{sh} row_mask:0xf bank_mask:0xf")
    a("s_lshl_b32 s44, s42, 7")
    a(f"s_add_u32 s44, s44, {ST_OFF}")
    a("v_lshlrev_b32 v10, 5, v2")
    a("v_cmp_eq_u32 vcc, 0, v1")
    a("s_and_saveexec_b64 s[46:47], vcc")
    for r in range(4):
        a(f"buffer_atomic_add_f32 v{SUM+r}, v10, s[28:31], s44 offen offset:{8*r}")
        a(f"buffer_atomic_add_f32 v{SQ+r}, v10, s[28:31], s44 offen offset:{8*r+4}")
    a.label(f"L_{name}_fin")
    S.stamp(); S.real(); S.flush()
    a.label(f"L_{name}_end")
    a("s_endpgm")
    ll = lambda n: f"; @launch kernel={n} grid=(256,1,1) block=(512,1,1) lds={LDS}"
    return (name, a.text(), kd(name, NV) + kd("attn1_kernel", NV), ll(name)), ("attn1_kernel", "", "", ll("attn1_kernel"))

def gen_oproj(layer):
    name = f"oproj{layer}_kernel"
    a = Asm(); header(a, name)
    RES = 102400
    LDS = RES + 10240
    a(f"s_cmp_ge_u32 s2, 256")
    a(f"s_cbranch_scc1 L_{name}_end")
    S = Stamper(a, 2 + 5*layer, 4); S.real(); S.stamp()
    a(f"s_load_dwordx2 s[4:5], s[0:1], 0")
    a(f"s_load_dwordx2 s[6:7], s[0:1], 32")
    a(f"s_load_dwordx2 s[12:13], s[0:1], 96")
    a("v_lshrrev_b32 v1, 6, v0")
    a("v_and_b32 v0, 63, v0")
    a("v_readfirstlane_b32 s32, v1")
    a("s_and_b32 s33, s2, 7")
    a("s_lshr_b32 s34, s2, 3")
    a("s_and_b32 s34, s34, 3")
    a("s_lshl_b32 s34, s34, 3")
    a("s_add_u32 s33, s33, s34")
    a("s_lshr_b32 s34, s2, 5")
    a("s_waitcnt lgkmcnt(0)")
    if layer == 1:
        a(f"s_add_u32 s4, s12, {hex(X2_OFF)}")
        a(f"s_addc_u32 s5, s13, 0")
    srd(a, 16, 4, 5, XBYTES)
    srd(a, 20, 6, 7, 819200)
    srd(a, 28, 12, 13, WS_SIZE)
    a("v_and_b32 v1, 15, v0")
    a("v_lshrrev_b32 v2, 4, v0")
    a("s_mul_i32 s35, s32, 320")
    a("s_mul_i32 s36, s34, 160")
    a("s_mov_b32 s37, 6554")
    a("s_movk_i32 s38, 1280")
    for jj in range(5):
        a(f"v_add_u32 v10, s35, v0")
        if jj: a(f"v_add_u32 v10, {64*jj}, v10")
        a("v_mul_lo_u32 v11, v10, s37")
        a("v_lshrrev_b32 v11, 16, v11")
        a("v_mul_u32_u24 v12, 10, v11")
        a("v_sub_u32 v12, v10, v12")
        a("v_mul_lo_u32 v11, v11, s38")
        a("v_lshl_add_u32 v11, v12, 4, v11")
        a(f"v_add_u32 v{4+jj}, s36, v11")
    a("v_lshlrev_b32 v3, 4, v0")
    a("s_mul_i32 s40, s33, 81920")
    a("s_mul_i32 s41, s32, 5120")
    a("s_cmp_ge_u32 s32, 2")
    a(f"s_cbranch_scc1 L_{name}_nores")
    for jj in range(5):
        a(f"s_add_u32 s44, s41, {RES + jj*1024}")
        a("s_mov_b32 m0, s44")
        a("s_nop 0")
        a(f"buffer_load_dwordx4 v{4+jj}, s[16:19], s40 offen lds")
    a.label(f"L_{name}_nores")
    a("s_lshl_b32 s42, s33, 2")
    a("s_add_u32 s42, s42, s32")
    a("s_mul_i32 s43, s42, 20480")
    a(f"s_add_u32 s43, s43, {OF_OFF}")
    XF = 64
    def stage_ops(st):
        ops = []
        for jj in range(5):
            ops.append([f"s_add_u32 s44, s41, {st*20480 + jj*1024}", "s_mov_b32 m0, s44",
                        f"s_mov_b32 s45, {st*128*1280}", f"buffer_load_dwordx4 v{4+jj}, s[20:23], s45 offen lds"])
        for k4 in range(4):
            ops.append([f"s_add_u32 s45, s43, {st*4096}",
                        f"buffer_load_dwordx4 {vr(XF+4*(4*st+k4),4)}, v3, s[28:31], s45 offen offset:{1024*k4}"])
        return ops
    for st in range(2):
        for op in stage_ops(st):
            for x in op: a(x)
    S.stamp()
    a("v_lshrrev_b32 v10, 2, v1")
    a("v_lshl_add_u32 v10, v2, 2, v10")
    a("v_and_b32 v11, 3, v1")
    a("v_lshlrev_b32 v11, 3, v11")
    a("v_mul_u32_u24 v12, 160, v10")
    a("v_add_u32 v20, v12, v11")
    a(f"v_add_u32 v21, {51200}, v20")
    a("s_mul_i32 s48, s32, 2560")
    a(f"s_add_u32 s48, s48, {RES}")
    a("v_add_u32 v22, s48, v20")
    ACC = 24
    WF = 144
    for r in range(ACC, ACC + 20): a(f"v_mov_b32 v{r}, 0")
    def reads(ks, fs):
        b = WF + 20 * fs
        for nt in range(5):
            for half in range(2):
                off = (32 * ks + 16 * half) * 160 + 32 * nt
                va = 20
                if off >= 51200: off -= 51200; va = 21
                a(f"ds_read_b64_tr_b16 {vr(b+4*nt+2*half,2)}, v{va} offset:{off}")
    for st in range(5):
        a(f"s_waitcnt vmcnt({9 if st < 4 else 0})")
        a("s_barrier")
        if st == 0: S.stamp()
        pend = stage_ops(st + 2) if st + 2 < 5 else []
        reads(4 * st, 0)
        for k4 in range(4):
            a("s_waitcnt lgkmcnt(0)")
            if k4 < 3: reads(4 * st + k4 + 1, (k4 + 1) % 2)
            b = WF + 20 * (k4 % 2)
            for nt in range(5):
                mfma16(a, ACC + 4 * nt, XF + 4 * (4 * st + k4), b + 4 * nt)
                if nt % 2 == 0 and pend:
                    for x_ in pend.pop(0): a(x_)
        assert not pend
    S.stamp()
    RS = WF
    for nt in range(5): a(f"ds_read_b64_tr_b16 {vr(RS+2*nt,2)}, v22 offset:{32*nt}")
    SUM = 44; SQ = 48; T = 52
    for r in range(8): a(f"v_mov_b32 v{SUM+r}, 0")
    a("s_mul_i32 s44, s34, 327680")
    a("s_lshr_b32 s45, s42, 1")
    a("s_lshl_b32 s45, s45, 10")
    a("s_add_u32 s44, s44, s45")
    a("s_and_b32 s45, s42, 1")
    a("s_lshl_b32 s45, s45, 3")
    a("s_add_u32 s44, s44, s45")
    a(f"s_add_u32 s44, s44, {X1T_OFF}")
    a("s_mov_b32 s46, 0xffff0000")
    a("s_waitcnt lgkmcnt(0)")
    a("s_nop 7")
    OUT = WF + 12
    for nt in range(5):
        for h in range(2):
            a(f"v_lshlrev_b32 v{T}, 16, v{RS+2*nt+h}")
            a(f"v_and_b32 v{T+1}, s46, v{RS+2*nt+h}")
            a(f"v_add_f32 v{T}, v{T}, v{ACC+4*nt+2*h}")
            a(f"v_add_f32 v{T+1}, v{T+1}, v{ACC+4*nt+2*h+1}")
            o = OUT + 2 * nt + h
            a(f"v_cvt_pk_bf16_f32 v{o}, v{T}, v{T+1}")
            a(f"v_lshlrev_b32 v{T}, 16, v{o}")
            a(f"v_and_b32 v{T+1}, s46, v{o}")
            a(f"v_add_f32 v{SUM+2*h}, v{SUM+2*h}, v{T}")
            a(f"v_add_f32 v{SUM+2*h+1}, v{SUM+2*h+1}, v{T+1}")
            a(f"v_fma_f32 v{SQ+2*h}, v{T}, v{T}, v{SQ+2*h}")
            a(f"v_fma_f32 v{SQ+2*h+1}, v{T+1}, v{T+1}, v{SQ+2*h+1}")
        a(f"buffer_store_dwordx2 {vr(OUT+2*nt,2)}, v3, s[28:31], s44 offen")
        if nt < 4: a("s_add_u32 s44, s44, 65536")
    for sh in (8, 4, 2, 1):
        a("s_nop 1")
        for r in range(8):
            a(f"v_add_f32_dpp v{SUM+r}, v{SUM+r}, v{SUM+r} row_ror:{sh} row_mask:0xf bank_mask:0xf")
    a("s_lshl_b32 s44, s42, 7")
    a(f"s_add_u32 s44, s44, {ST_OFF}")
    a("v_lshlrev_b32 v10, 5, v2")
    a("v_cmp_eq_u32 vcc, 0, v1")
    a("s_and_saveexec_b64 s[46:47], vcc")
    for r in range(4):
        a(f"buffer_atomic_add_f32 v{SUM+r}, v10, s[28:31], s44 offen offset:{8*r}")
        a(f"buffer_atomic_add_f32 v{SQ+r}, v10, s[28:31], s44 offen offset:{8*r+4}")
    S.stamp(); S.real(); S.flush()
    a.label(f"L_{name}_end")
    a("s_endpgm")
    return name, a.text(), kd(name, 192), f"; @launch kernel={name} grid=(256,1,1) block=(256,1,1) lds={LDS}"

def mfma16a(a, d, x, y):
    a(f"v_mfma_f32_16x16x32_bf16 a[{d}:{d+3}], {vr(x,4)}, {vr(y,4)}, a[{d}:{d+3}]")

def gen_mlp(which, layer):
    name = f"mlp{which}_{layer}_kernel"
    a = Asm(); header(a, name)
    norm = which == 1
    NW = 8 if norm else int(os.environ.get("K5NW", "4"))
    U = 2 if norm else int(os.environ.get("K5U", "4"))
    RING = U * 4096
    TAB = NW * RING
    NWG = 216 if norm else 256
    WSTR = 3456 if norm else 4096
    WBYTES = 2048 * 1728 * 2
    XDT = 65536 if norm else 55296
    XOFF = X1T_OFF if norm else GF_OFF
    if NW == 8: own_dts = lambda w: (0, 1, 2) if w < 4 else (3, 4)
    else: own_dts = lambda w: (0, 1, 2, 3, 4)
    MT = 3 if NW == 8 else 5
    NS = NW - 1
    own_base = []; off = 0
    for w in range(NW):
        own_base.append(off); off += NS * len(own_dts(w)) * 1024
    REDSZ = off
    TR = REDSZ + 1024
    LDS = max(TAB + NW * 2048, TR + 4 * 2560)
    a(f"s_cmp_ge_u32 s2, {NWG}")
    a(f"s_cbranch_scc1 L_{name}_end")
    S = Stamper(a, 2 + which + 5*layer, 8); S.real(); S.stamp()
    a(f"s_load_dwordx4 s[4:7], s[0:1], {48 if norm else 64}")
    a(f"s_load_dwordx2 s[12:13], s[0:1], 96")
    if not norm:
        a(f"s_load_dwordx2 s[8:9], s[0:1], 80")
    a("v_lshrrev_b32 v1, 6, v0")
    a("v_and_b32 v0, 63, v0")
    a("v_readfirstlane_b32 s32, v1")
    if norm:
        a("s_and_b32 s33, s2, 7")
        a(f"s_mul_i32 s33, s33, {NWG//8}")
        a("s_lshr_b32 s34, s2, 3")
        a("s_add_u32 s33, s33, s34")
        a("s_lshr_b32 s34, s33, 3")
        a("s_and_b32 s33, s33, 7")
        a(f"s_load_dwordx2 s[8:9], s[0:1], 64")
    else:
        a("s_and_b32 s34, s2, 7")
        a("s_lshr_b32 s33, s2, 3")
        a("s_and_b32 s33, s33, 3")
        a("s_lshl_b32 s33, s33, 3")
        a("s_add_u32 s34, s34, s33")
        a("s_lshr_b32 s33, s2, 5")
        a(f"s_load_dwordx2 s[10:11], s[0:1], 8")
    a("v_and_b32 v1, 15, v0")
    a("v_lshrrev_b32 v2, 4, v0")
    a("v_lshlrev_b32 v3, 4, v0")
    if norm:
        a("s_lshl_b32 s35, s32, 3")
        a("s_mov_b32 s36, 8")
    elif NW == 8:
        a("s_mul_i32 s35, s32, 7")
        a("s_min_u32 s35, s35, 48")
        a("s_cmp_ge_u32 s32, 6")
        a("s_cselect_b32 s36, 6, 7")
    else:
        a("s_mul_i32 s35, s32, 14")
        a("s_min_u32 s35, s35, 41")
        a("s_cmp_ge_u32 s32, 2")
        a("s_cselect_b32 s36, 13, 14")
    a("v_lshrrev_b32 v10, 3, v0")
    a("v_lshrrev_b32 v11, 1, v10")
    a("v_and_b32 v11, 3, v11")
    a("v_lshlrev_b32 v11, 1, v11")
    a("v_and_b32 v12, 7, v0")
    a("v_xor_b32 v12, v12, v11")
    a(f"s_movk_i32 s38, {WSTR}")
    a("v_mul_lo_u32 v5, v10, s38")
    a("v_lshl_add_u32 v44, v12, 4, v5")
    for jj in range(1, 4): a(f"v_add_u32 v{44+jj}, {jj*(8*WSTR-1024)}, v44")
    for dt in range(1, 5): a(f"v_add_u32 v{19+dt}, {dt*XDT}, v3")
    a(f"s_mul_i32 s40, s35, {32*WSTR}")
    a("s_lshl_b32 s41, s34, 7")
    a("s_add_u32 s40, s40, s41")
    a(f"s_mul_i32 s41, s33, {5*XDT}")
    a("s_lshl_b32 s42, s35, 10")
    a("s_add_u32 s41, s41, s42")
    a(f"s_add_u32 s41, s41, {XOFF}")
    a(f"s_sub_u32 s49, s36, {U}")
    a(f"s_mul_i32 s42, s32, {RING}")
    a("s_and_b32 s52, s32, 3")
    a("s_lshr_b32 s53, s32, 2")
    a("s_waitcnt lgkmcnt(0)")
    srd(a, 20, 4, 5, WBYTES)
    srd(a, 28, 12, 13, WS_SIZE)
    XR = 48
    XN = XR + 20 * U
    WF = XN + (40 if norm else 0)
    TT = WF + 32
    NV = max(TT + (16 if norm else 0), 176)
    TMP = 16
    TB = 36
    EB = 24
    if norm:
        a("s_lshl_b32 s37, s32, 11")
        a(f"s_add_u32 s37, s37, {ST_OFF}")
        a("v_lshlrev_b32 v4, 3, v0")
        for i2 in range(4):
            a(f"buffer_load_dwordx2 {vr(TB+2*i2,2)}, v4, s[28:31], s37 offen offset:{512*i2}")
    def w_ops(slot):
        ops = []
        for jj in range(4):
            op = [f"s_mov_b32 m0, s{64+slot}"] if jj == 0 else []
            if jj == 0: op.append("s_nop 0")
            op.append(f"buffer_load_dwordx4 v{44+jj}, s[20:23], s40 offen offset:{jj*1024} lds")
            ops.append(op)
        ops[-1] += [f"s_add_u32 s40, s40, {32*WSTR}"]
        return ops
    def x_ops(slot):
        ops = []
        for dt in range(5):
            va = 3 if dt == 0 else 19 + dt
            ops.append([f"buffer_load_dwordx4 {vr(XR+20*slot+4*dt,4)}, v{va}, s[60:63], s41 offen"])
        ops[-1] += ["s_add_u32 s41, s41, 1024"]
        return ops
    lab = [0]
    def emit_ops(ops, guard=False):
        for op in ops:
            for x in op: a(x)
    srd(a, 60, 12, 13, WS_SIZE)
    for u in range(U): a(f"s_add_u32 s{64+u}, s42, {u*4096}")
    emit_ops(w_ops(0)); emit_ops(x_ops(0))
    srd(a, 24, 6, 7, 1728 * 2 if norm else 2048 * 2)
    if not norm:
        if layer == 0:
            a(f"s_add_u32 s8, s12, {hex(X2_OFF)}")
            a(f"s_addc_u32 s9, s13, 0")
        srd(a, 16, 8, 9, XBYTES)
    a("s_lshl_b32 s43, s34, 7")
    a("s_lshl_b32 s44, s52, 5")
    a("s_add_u32 s43, s43, s44")
    a("v_lshlrev_b32 v10, 3, v2")
    a(f"buffer_load_dwordx2 {vr(EB,2)}, v10, s[24:27], s43 offen")
    NE = 1
    if not norm:
        a("s_mul_i32 s43, s33, 327680")
        a("s_mul_i32 s44, s53, 196608")
        a("s_add_u32 s43, s43, s44")
        a("s_lshl_b32 s44, s34, 11")
        a("s_add_u32 s43, s43, s44")
        a("s_lshr_b32 s44, s52, 1")
        a("s_lshl_b32 s44, s44, 10")
        a("s_add_u32 s43, s43, s44")
        a("s_and_b32 s44, s52, 1")
        a("s_lshl_b32 s44, s44, 3")
        a("s_add_u32 s43, s43, s44")
        a(f"s_add_u32 s43, s43, {X1T_OFF}")
        for j in range(MT):
            a(f"buffer_load_dwordx2 {vr(EB+2+2*j,2)}, v3, s[28:31], s43 offen")
            if j < MT - 1: a("s_add_u32 s43, s43, 65536")
        NE = 1 + MT
    for u in range(1, U):
        emit_ops(w_ops(u)); emit_ops(x_ops(u))
    S.stamp()
    a("v_lshrrev_b32 v10, 2, v1")
    a("v_lshl_add_u32 v10, v2, 2, v10")
    a("v_lshrrev_b32 v11, 1, v10")
    a("v_and_b32 v11, 3, v11")
    a("v_and_b32 v12, 3, v1")
    a("v_lshlrev_b32 v12, 3, v12")
    a("v_lshl_add_u32 v12, v10, 7, v12")
    a("v_add_u32 v12, s42, v12")
    for nt in range(4):
        a(f"v_xor_b32 v13, {nt}, v11")
        a(f"v_lshl_add_u32 v{6+nt}, v13, 5, v12")
    for r in range(80): a(f"v_accvgpr_write_b32 a{r}, 0")
    a("s_mov_b32 s46, 0xffff0000")
    if norm:
        a(f"s_waitcnt vmcnt({9*U+NE})")
        a("s_lshl_b32 s43, s32, 11")
        a(f"s_add_u32 s43, s43, {TAB}")
        a("v_lshlrev_b32 v14, 2, v0")
        a("v_add_u32 v14, s43, v14")
        a("v_lshlrev_b32 v15, 4, v2")
        a("v_add_u32 v15, s43, v15")
        a(f"s_mov_b32 s47, {hex(f2u(1.0/640))}")
        a(f"s_mov_b32 s48, {hex(f2u(1e-5))}")
        for i2 in range(4):
            m = TB + 2 * i2; q = m + 1
            a(f"v_mul_f32 v{m}, s47, v{m}")
            a(f"v_mul_f32 v{q}, s47, v{q}")
            a(f"v_fma_f32 v{q}, -v{m}, v{m}, v{q}")
            a(f"v_max_f32 v{q}, 0, v{q}")
            a(f"v_add_f32 v{TMP}, s48, v{q}")
            a(f"v_rsq_f32 v{TMP}, v{TMP}")
            a("s_nop 0")
            a(f"v_mul_f32 v{q}, v{q}, v{TMP}")
            a(f"v_fma_f32 v{q}, v{q}, v{TMP}, s48")
            a(f"v_rsq_f32 v{q}, v{q}")
            a("s_nop 0")
            a(f"v_mul_f32 v{q}, v{q}, v{TMP}")
            a(f"v_mul_f32 v{m}, v{m}, v{q}")
            a(f"v_sub_f32 v{m}, 0, v{m}")
            a(f"ds_write_b32 v14, v{q} offset:{256*i2}")
            a(f"ds_write_b32 v14, v{m} offset:{1024+256*i2}")
        a("s_waitcnt lgkmcnt(0)")
    def wreads(slot, fs):
        for nt in range(4):
            for half in range(2):
                a(f"ds_read_b64_tr_b16 {vr(WF+16*fs+4*nt+2*half,2)}, v{6+nt} offset:{slot*4096+half*2048}")
    def treads():
        a(f"ds_read_b128 {vr(TT,4)}, v15")
        a(f"ds_read_b128 {vr(TT+4,4)}, v15 offset:64")
        a(f"ds_read_b128 {vr(TT+8,4)}, v15 offset:1024")
        a(f"ds_read_b128 {vr(TT+12,4)}, v15 offset:1088")
        a("v_add_u32 v15, 128, v15")
    def norm_ops(slot, fs):
        ops = []
        for dt in range(5):
            for dw in range(4):
                r = XR + 20 * slot + 4 * dt + dw
                e = (dw % 2) * 2 + (dw // 2) * 4
                t0 = TMP + 2 * (dw % 2); t1 = t0 + 1
                ops.append(f"v_lshlrev_b32 v{t0}, 16, v{r}")
                ops.append(f"v_and_b32 v{t1}, s46, v{r}")
                ops.append(f"v_fma_f32 v{t0}, v{t0}, v{TT+e}, v{TT+8+e}")
                ops.append(f"v_fma_f32 v{t1}, v{t1}, v{TT+e+1}, v{TT+8+e+1}")
                ops.append(f"v_cvt_pk_bf16_f32 v{XN+20*fs+4*dt+dw}, v{t0}, v{t1}")
        return ops
    def mfma_list(slot, fs):
        l = []
        for dt in range(5):
            x = (XN + 20 * fs + 4 * dt) if norm else (XR + 20 * slot + 4 * dt)
            for nt in range(4):
                w = WF + 16 * fs + 4 * nt
                t = 4 * (dt * 4 + nt)
                l.append(f"v_mfma_f32_16x16x32_bf16 a[{t}:{t+3}], {vr(w,4)}, {vr(x,4)}, a[{t}:{t+3}]")
        return l
    def upd_loads():
        a("s_sub_i32 s49, s49, 1")
        a("s_cmp_gt_i32 s49, 0")
        a("s_cselect_b32 s22, s22, 0")
        a("s_cselect_b32 s62, s62, 0")
    def norm_step(nu, nfs, ml):
        treads()
        wreads(nu, nfs)
        ops = norm_ops(nu, nfs)
        xo = x_ops(nu); wo = w_ops(nu)
        k = 0
        for m in ml[:3]: a(m); k += 1
        a("s_waitcnt lgkmcnt(8)")
        for idx, op in enumerate(ops):
            a(op)
            if idx % 6 == 5 and k < len(ml):
                a(ml[k]); k += 1
            if idx % 20 == 19:
                emit_ops([xo.pop(0)], True)
            if idx == 30: a("s_waitcnt lgkmcnt(0)")
            if idx in (40, 55, 70, 85):
                emit_ops([wo.pop(0)], True)
        while k < len(ml): a(ml[k]); k += 1
        assert not xo and not wo
        upd_loads()
    def wait_vm(n):
        a(f"s_waitcnt vmcnt({n}) lgkmcnt(0)")
    if NW == 8 and os.environ.get("K4PRIO", "1") != "0":
        a("s_cmp_lt_u32 s32, 4")
        a(f"s_cbranch_scc1 L_{name}_np")
        a("s_setprio 1")
        a.label(f"L_{name}_np")
    a(f"s_waitcnt vmcnt({9*(U-1)+NE})")
    if norm:
        norm_step(0, 0, [])
    else:
        wreads(0, 0)
    S.stamp()
    a.label(f"L_{name}_loop")
    for u in range(U):
        fs = u % 2; nu = (u + 1) % U; nfs = 1 - fs
        if norm:
            if u == U - 1:
                a("s_cmp_eq_u32 s36, 1")
                a(f"s_cbranch_scc1 L_{name}_last")
            wait_vm(9*(U-1))
            norm_step(nu, nfs, mfma_list(u, fs))
        else:
            wait_vm(9*(U-2))
            wreads(nu, nfs)
            xo = x_ops(u); wo = w_ops(u)
            for idx, m in enumerate(mfma_list(u, fs)):
                a(m)
                if idx % 4 == 3: emit_ops([xo.pop(0)], True)
                if idx % 4 == 1 and wo: emit_ops([wo.pop(0)], True)
            assert not xo and not wo
            upd_loads()
        if NW == 8 and os.environ.get("K4PRIO", "1") != "0":
            a(f"s_cmp_lg_u32 s36, {int(os.environ.get('K4OFF', '3'))}")
            lab[0] += 1
            a(f"s_cbranch_scc1 L_{name}_g{lab[0]}")
            a("s_setprio 0")
            a.label(f"L_{name}_g{lab[0]}")
        a("s_sub_u32 s36, s36, 1")
        a("s_cmp_eq_u32 s36, 0")
        if u < U - 1: a(f"s_cbranch_scc1 L_{name}_done")
        else: a(f"s_cbranch_scc0 L_{name}_loop")
    if norm:
        a(f"s_branch L_{name}_done")
        a.label(f"L_{name}_last")
        a("s_waitcnt lgkmcnt(0)")
        for m in mfma_list(U - 1, (U - 1) % 2): a(m)
    a.label(f"L_{name}_done")
    S.stamp()
    a("s_waitcnt vmcnt(0) lgkmcnt(0)")
    if norm:
        srd(a, 56, 8, 9, WBYTES)
        a("s_lshr_b32 s43, s2, 3")
        a("s_lshl_b32 s43, s43, 3")
        a("s_add_u32 s43, s43, s32")
        a(f"s_mul_i32 s43, s43, {8*4096}")
        a("s_and_b32 s44, s2, 7")
        a("s_lshl_b32 s44, s44, 7")
        a("s_add_u32 s43, s43, s44")
        a("v_lshrrev_b32 v10, 3, v0")
        a("v_lshlrev_b32 v10, 12, v10")
        a("v_and_b32 v11, 7, v0")
        a("v_lshl_add_u32 v10, v11, 4, v10")
        for j in range(4):
            a(f"buffer_load_dwordx4 v[20:23], v10, s[56:59], s43 offen offset:{1024*j}")
    elif layer == 0:
        srd(a, 56, 10, 11, 819200)
        per = 819200 // (32 * NW)
        a("s_lshr_b32 s43, s2, 3")
        a(f"s_mul_i32 s43, s43, {NW}")
        a("s_add_u32 s43, s43, s32")
        a(f"s_mul_i32 s43, s43, {per}")
        for j in range((per + 1023) // 1024):
            if j == 4: a("s_add_u32 s43, s43, 4096")
            a(f"buffer_load_dwordx4 v[20:23], v3, s[56:59], s43 offen offset:{min(1024*j, per-1024) - (4096 if j >= 4 else 0)}")
    a("s_barrier")
    OWN = 88
    for o in range(NW):
        dts = own_dts(o); nt = o % 4
        a(f"s_cmp_eq_u32 s32, {o}")
        a(f"s_cbranch_scc1 L_{name}_own{o}")
        a(f"s_sub_u32 s43, s32, {o+1}")
        a(f"s_and_b32 s43, s43, {NW-1}")
        a(f"s_mul_i32 s43, s43, {len(dts)*1024}")
        a(f"s_add_u32 s43, s43, {own_base[o]}")
        a("v_add_u32 v10, s43, v3")
        for j, dt in enumerate(dts):
            t = 4 * (dt * 4 + nt)
            a(f"ds_write_b128 v10, a[{t}:{t+3}] offset:{j*1024}")
        a(f"s_branch L_{name}_nx{o}")
        a.label(f"L_{name}_own{o}")
        for j, dt in enumerate(dts):
            for r in range(4):
                a(f"v_accvgpr_read_b32 v{OWN+4*j+r}, a{4*(dt*4+nt)+r}")
        for r in range(4 * len(dts), 4 * MT): a(f"v_mov_b32 v{OWN+r}, 0")
        a(f"s_mov_b32 s54, {own_base[o]}")
        a(f"s_mov_b32 s55, {len(dts)*1024}")
        a.label(f"L_{name}_nx{o}")
    a("s_waitcnt lgkmcnt(0)")
    a("s_barrier")
    a("v_add_u32 v10, s54, v3")
    BI = 40
    a(f"v_lshlrev_b32 v{BI}, 16, v{EB}")
    a(f"v_and_b32 v{BI+1}, s46, v{EB}")
    a(f"v_lshlrev_b32 v{BI+2}, 16, v{EB+1}")
    a(f"v_and_b32 v{BI+3}, s46, v{EB+1}")
    if NW == 8: PRS = [108, 120, 132, 144, 156, 48, 60]
    else: PRS = [108, 128, 148]
    issued = 0; done = 0
    for sidx in range(NS):
        for j in range(MT):
            a(f"ds_read_b128 {vr(PRS[sidx]+4*j,4)}, v10 offset:{j*1024}")
        issued += 1
        if sidx < NS - 1: a("v_add_u32 v10, s55, v10")
        if (issued - done) * MT >= 12 and sidx < NS - 1:
            a(f"s_waitcnt lgkmcnt({(issued-done-1)*MT})")
            for r in range(4 * MT): a(f"v_add_f32 v{OWN+r}, v{OWN+r}, v{PRS[done]+r}")
            done += 1
    while done < NS:
        a(f"s_waitcnt lgkmcnt({(NS-done-1)*MT})")
        for r in range(4 * MT): a(f"v_add_f32 v{OWN+r}, v{OWN+r}, v{PRS[done]+r}")
        done += 1
    S.stamp()
    E0 = 112
    if norm:
        c1 = -2.0 * math.log2(math.e) * 0.7978845608028654
        c2 = c1 * 0.044715
        a(f"s_mov_b32 s47, {hex(f2u(c1))}")
        a(f"s_mov_b32 s48, {hex(f2u(c2))}")
        a("v_mov_b32 v44, s47")
        a(f"s_mul_i32 s43, s33, {5*55296}")
        a(f"s_mul_i32 s44, s53, {3*55296}")
        a("s_add_u32 s43, s43, s44")
        a("s_lshl_b32 s44, s34, 11")
        a("s_add_u32 s43, s43, s44")
        a("s_lshr_b32 s44, s52, 1")
        a("s_lshl_b32 s44, s44, 10")
        a("s_add_u32 s43, s43, s44")
        a("s_and_b32 s44, s52, 1")
        a("s_lshl_b32 s44, s44, 3")
        a("s_add_u32 s43, s43, s44")
        a(f"s_add_u32 s43, s43, {GF_OFF}")
        for j in range(MT):
            if NW == 8 and j == 2:
                a("s_cmp_lg_u32 s53, 0")
                a(f"s_cbranch_scc1 L_{name}_fin")
            for r in range(4):
                u = OWN + 4 * j + r
                a(f"v_add_f32 v{u}, v{u}, v{BI+r}")
            for r in range(4):
                u = OWN + 4 * j + r; t = E0 + r
                a(f"v_mul_f32 v{t}, v{u}, v{u}")
            for r in range(4):
                t = E0 + r
                a(f"v_fma_f32 v{t}, v{t}, s48, v44")
            for r in range(4):
                u = OWN + 4 * j + r; t = E0 + r
                a(f"v_mul_f32 v{t}, v{t}, v{u}")
            for r in range(4): a(f"v_exp_f32 v{E0+r}, v{E0+r}")
            for r in range(4): a(f"v_add_f32 v{E0+r}, 1.0, v{E0+r}")
            for r in range(4): a(f"v_rcp_f32 v{E0+r}, v{E0+r}")
            for r in range(4):
                u = OWN + 4 * j + r
                a(f"v_mul_f32 v{u}, v{u}, v{E0+r}")
            o = E0 + 6 + 2 * j
            a(f"v_cvt_pk_bf16_f32 v{o}, v{OWN+4*j}, v{OWN+4*j+1}")
            a(f"v_cvt_pk_bf16_f32 v{o+1}, v{OWN+4*j+2}, v{OWN+4*j+3}")
            a(f"buffer_store_dwordx2 {vr(o,2)}, v3, s[28:31], s43 offen")
            if j < MT - 1: a("s_add_u32 s43, s43, 55296")
    else:
        a("s_mul_i32 s43, s52, 2560")
        a(f"s_add_u32 s43, s43, {TR}")
        a("s_mul_i32 s44, s53, 96")
        a("s_add_u32 s44, s44, s43")
        a("v_mul_u32_u24 v10, 640, v2")
        a("v_lshl_add_u32 v10, v1, 1, v10")
        a("v_add_u32 v10, s44, v10")
        for j in range(MT):
            if NW == 8 and j == 2:
                a("s_cmp_lg_u32 s53, 0")
                a(f"s_cbranch_scc1 L_{name}_tr")
            for h in range(2):
                rr = EB + 2 + 2 * j + h
                a(f"v_lshlrev_b32 v{E0}, 16, v{rr}")
                a(f"v_and_b32 v{E0+1}, s46, v{rr}")
                u = OWN + 4 * j + 2 * h
                a(f"v_add_f32 v{u}, v{u}, v{BI+2*h}")
                a(f"v_add_f32 v{u+1}, v{u+1}, v{BI+2*h+1}")
                a(f"v_add_f32 v{E0}, v{E0}, v{u}")
                a(f"v_add_f32 v{E0+1}, v{E0+1}, v{u+1}")
                a(f"v_cvt_pk_bf16_f32 v{E0+2+h}, v{E0}, v{E0+1}")
                a(f"ds_write_b16 v10, v{E0+2+h} offset:{(2*h)*160 + 32*j}")
                a(f"ds_write_b16_d16_hi v10, v{E0+2+h} offset:{(2*h+1)*160 + 32*j}")
        a.label(f"L_{name}_tr")
        NCH = 2 if NW == 8 else 3
        LASTN = 16 if NW == 8 else 32
        a("s_lshl_b32 s44, s34, 6")
        a("s_lshl_b32 s45, s52, 4")
        a("s_add_u32 s44, s44, s45")
        a("s_mul_i32 s44, s44, 1280")
        a("s_mul_i32 s45, s33, 160")
        a("s_add_u32 s44, s44, s45")
        a("s_mov_b32 s47, 6554")
        a("s_movk_i32 s48, 1280")
        a("s_mul_i32 s45, s53, 80")
        a("v_add_u32 v12, s45, v0")
        a("v_lshlrev_b32 v11, 4, v12")
        a("v_add_u32 v11, s43, v11")
        for j in range(NCH):
            if j: a("v_add_u32 v12, 64, v12")
            a("v_mul_lo_u32 v13, v12, s47")
            a("v_lshrrev_b32 v13, 16, v13")
            a("v_mul_u32_u24 v14, 10, v13")
            a("v_sub_u32 v14, v12, v14")
            a("v_mul_lo_u32 v13, v13, s48")
            a(f"v_lshl_add_u32 v{16+j}, v14, 4, v13")
        a("s_waitcnt lgkmcnt(0)")
        if NW == 8: a("s_barrier")
        for j in range(NCH):
            a(f"ds_read_b128 {vr(120+4*j,4)}, v11 offset:{1024*j}")
        a("s_waitcnt lgkmcnt(0)")
        for j in range(NCH):
            if j == NCH - 1:
                a(f"v_cmp_gt_u32 vcc, {LASTN}, v0")
                a("s_and_saveexec_b64 s[46:47], vcc")
            a(f"buffer_store_dwordx4 {vr(120+4*j,4)}, v{16+j}, s[16:19], s44 offen")
    a.label(f"L_{name}_fin")
    S.stamp(); S.real(); S.flush()
    a.label(f"L_{name}_end")
    a("s_endpgm")
    kdt = kd(name, NV + 80).replace(f".amdhsa_accum_offset {NV+80}", f".amdhsa_accum_offset {NV}")
    return name, a.text(), kdt, f"; @launch kernel={name} grid=({NWG},1,1) block=({64*NW},1,1) lds={LDS}"

if "--stamps" in sys.argv:
    STAMPS = True; sys.argv.remove("--stamps")
KERNELS = []
ATT = gen_attn()
M1 = gen_mlp(1, 0)
for L in range(2):
    KERNELS += [gen_qkv(L), ATT[L], M1, gen_mlp(2, L)]

def emit(kernels, path, order=None):
    launches = [k[3] for k in kernels] if order is None else order
    hdr = open("interleave_layers__grouped_kv_mqa__mixer_token_mlp__prompt.s.ref").read().split("; Override")[0]
    out = hdr + "\n".join(launches) + "\n"
    out += '.amdgcn_target "amdgcn-amd-amdhsa--gfx950"\n.text\n'
    seen = set()
    for k in kernels:
        if k[0] in seen: continue
        seen.add(k[0]); out += k[1]
    out += '.section .rodata,"a"\n'
    seen = set()
    for k in kernels:
        if k[0] in seen: continue
        seen.add(k[0]); out += k[2]
    open(path, "w").write(out)

if __name__ == "__main__":
    emit(KERNELS, sys.argv[1] if len(sys.argv) > 1 else "k.s")
```

```python
import struct, sys, math, os

def f2u(x): return struct.unpack("<I", struct.pack("<f", x))[0]

QT_OFF   = 0
KV_OFF   = 0x300000
OF_OFF   = 0x400000
X1T_OFF  = 0x700000
ST_OFF   = 0xA00000
GF_OFF   = 0xB00000
X2_OFF   = 0xE00000
CNT_OFF  = 0xA80000
WS_SIZE  = 0x10000000
KVT = 2624
XBYTES = 2048 * 640 * 2

class Asm:
    def __init__(self): self.l = []
    def __call__(self, s):
        for x in s.strip("\n").split("\n"):
            self.l.append("    " + x.strip())
    def label(self, n): self.l.append(n + ":")
    def raw(self, s): self.l.append(s)
    def text(self): return "\n".join(self.l) + "\n"

def vr(b, n=1): return f"v{b}" if n == 1 else f"v[{b}:{b+n-1}]"
def sr(b, n=1): return f"s{b}" if n == 1 else f"s[{b}:{b+n-1}]"

def srd(a, d, lo, hi, nbytes):
    a(f"s_mov_b32 s{d}, s{lo}")
    a(f"s_and_b32 s{d+1}, s{hi}, 0xffff")
    a(f"s_mov_b32 s{d+2}, {hex(nbytes)}")
    a(f"s_mov_b32 s{d+3}, 0x00020000")

def header(a, name):
    a.raw(f".globl {name}\n.p2align 8\n.type {name},@function\n{name}:")

def kd(name, nv, ns=102):
    acc = (nv + 3) // 4 * 4
    return f""".p2align 6
.amdhsa_kernel {name}
  .amdhsa_next_free_vgpr {nv}
  .amdhsa_next_free_sgpr {ns}
  .amdhsa_accum_offset {acc}
  .amdhsa_group_segment_fixed_size 0
  .amdhsa_kernarg_size 104
  .amdhsa_user_sgpr_count 2
  .amdhsa_user_sgpr_kernarg_segment_ptr 1
  .amdhsa_system_sgpr_workgroup_id_x 1
.end_amdhsa_kernel
"""

STAMPS = False
DBG_OFF = 0x8000000
class Stamper:
    def __init__(self, a, kidx, maxw): self.a = a; self.n = 0; self.kidx = kidx; self.maxw = maxw
    def stamp(self):
        if not STAMPS: return
        self.a(f"s_memtime s[{72+2*self.n}:{73+2*self.n}]"); self.n += 1
    def real(self):
        if not STAMPS: return
        self.a(f"s_memrealtime s[{72+2*self.n}:{73+2*self.n}]"); self.n += 1
    def flush(self, wave_s="s32", srd_="s[28:31]"):
        if not STAMPS: return
        a = self.a
        a("s_mov_b64 exec, -1")
        a("s_waitcnt lgkmcnt(0) vmcnt(0)")
        a(f"s_mul_i32 s58, s2, {self.maxw}")
        a(f"s_add_u32 s58, s58, {wave_s}")
        a("s_lshl_b32 s58, s58, 6")
        a(f"s_add_u32 s58, s58, {DBG_OFF + self.kidx * 0x100000}")
        a("v_mov_b32 v0, 0")
        for i in range(self.n):
            a(f"v_mov_b32 v1, s{72+2*i}")
            a(f"buffer_store_dword v1, v0, {srd_}, s58 offen offset:{4*i}")
        a("s_waitcnt vmcnt(0)")

def mfma16(a, d, x, y, c=None):
    c = vr(d, 4) if c is None else c
    a(f"v_mfma_f32_16x16x32_bf16 {vr(d,4)}, {vr(x,4)}, {vr(y,4)}, {c}")

def gen_qkv(layer):
    name = f"qkv{layer}_kernel"
    a = Asm(); header(a, name)
    WB = 0; WST = 20480
    XB = 61440; XST = 16384
    WKV = 110592
    MISC = 136192
    LDS = MISC + 512
    a(f"s_cmp_ge_u32 s2, 256")
    a(f"s_cbranch_scc1 L_{name}_end")
    S = Stamper(a, 0 + 5*layer, 4); S.real(); S.stamp()
    a(f"s_load_dwordx2 s[4:5], s[0:1], 0")
    a(f"s_load_dwordx4 s[8:11], s[0:1], 16")
    a(f"s_load_dwordx2 s[6:7], s[0:1], 8")
    a(f"s_load_dwordx2 s[12:13], s[0:1], 96")
    a("v_lshrrev_b32 v1, 6, v0")
    a("v_and_b32 v0, 63, v0")
    a("v_readfirstlane_b32 s32, v1")
    a("s_and_b32 s33, s2, 7")
    a("s_lshr_b32 s34, s2, 3")
    a("s_and_b32 s34, s34, 3")
    a("s_lshl_b32 s34, s34, 3")
    a("s_add_u32 s33, s33, s34")
    a("s_lshr_b32 s34, s2, 5")
    a("s_waitcnt lgkmcnt(0)")
    if layer == 1:
        a(f"s_add_u32 s4, s12, {hex(X2_OFF)}")
        a(f"s_addc_u32 s5, s13, 0")
    srd(a, 16, 4, 5, XBYTES)
    srd(a, 20, 6, 7, 819200)
    a("s_cmp_eq_u32 s34, 0")
    a("s_cselect_b32 s14, s8, s10")
    a("s_cselect_b32 s15, s9, s11")
    srd(a, 24, 14, 15, 25600)
    srd(a, 28, 12, 13, WS_SIZE)
    a("v_and_b32 v1, 15, v0")
    a("v_lshrrev_b32 v2, 4, v0")
    a("s_mul_i32 s35, s32, 320")
    a("s_mul_i32 s36, s34, 160")
    a("s_mov_b32 s37, 6554")
    a("s_movk_i32 s38, 1280")
    for jj in range(5):
        a(f"v_add_u32 v10, s35, v0")
        if jj: a(f"v_add_u32 v10, {64*jj}, v10")
        a("v_mul_lo_u32 v11, v10, s37")
        a("v_lshrrev_b32 v11, 16, v11")
        a("v_mul_u32_u24 v12, 10, v11")
        a("v_sub_u32 v12, v10, v12")
        a("v_mul_lo_u32 v11, v11, s38")
        a("v_lshl_add_u32 v11, v12, 4, v11")
        a(f"v_add_u32 v{4+jj}, s36, v11")
    a("v_lshrrev_b32 v10, 3, v0")
    a("v_and_b32 v11, 7, v0")
    a("s_lshl_b32 s39, s32, 4")
    for rh, dst in ((0, 9), (1, 3)):
        a(f"v_add_u32 v12, {8*rh}, v10")
        a("v_lshrrev_b32 v13, 1, v12")
        a("v_and_b32 v13, 7, v13")
        a("v_xor_b32 v13, v13, v11")
        a("v_add_u32 v12, s39, v12")
        a("v_mul_lo_u32 v12, v12, s38")
        a(f"v_lshl_add_u32 v{dst}, v13, 4, v12")
    a("v_lshlrev_b32 v14, 4, v0")
    a("s_mul_i32 s40, s33, 81920")
    a("s_mul_i32 s41, s32, 5120")
    a("s_lshl_b32 s42, s32, 12")
    a("s_cmp_ge_u32 s34, 2")
    a(f"s_cbranch_scc1 L_{name}_nokv")
    for it in range(7):
        a(f"s_add_u32 s43, s32, {4*it}")
        a("s_min_u32 s43, s43, 24")
        a("s_lshl_b32 s43, s43, 10")
        a(f"s_add_u32 s44, s43, {WKV}")
        a("s_mov_b32 m0, s44")
        a("s_nop 0")
        a("buffer_load_dwordx4 v14, s[24:27], s43 offen lds")
    a.label(f"L_{name}_nokv")
    def stage_ops(st):
        buf = st % 3
        ops = []
        for jj in range(5):
            ops.append([f"s_add_u32 s44, s41, {WB + buf*WST + jj*1024}", "s_mov_b32 m0, s44",
                        f"s_mov_b32 s43, {st*128*1280}", f"buffer_load_dwordx4 v{4+jj}, s[20:23], s43 offen lds"])
        for kb in range(2):
            for rh, vo in ((0, 9), (1, 3)):
                ops.append([f"s_add_u32 s44, s42, {XB + buf*XST + kb*2048 + rh*1024}", "s_mov_b32 m0, s44",
                            f"s_add_u32 s43, s40, {st*256 + kb*128}", f"buffer_load_dwordx4 v{vo}, s[16:19], s43 offen lds"])
        return ops
    def issue_stage(st):
        for op in stage_ops(st):
            for x in op: a(x)
    for st in range(2): issue_stage(st)
    if layer == 0 and os.environ.get("CODEPF", "1") == "1":
        a("s_getpc_b64 s[90:91]")
        a.label("L_pc_ref")
        a("s_lshr_b32 s92, s2, 3")
        a("s_lshl_b32 s92, s92, 2")
        a("s_add_u32 s92, s92, s32")
        a("s_lshl_b32 s92, s92, 9")
        a("s_min_u32 s92, s92, L_text_end - L_pc_ref - 1024")
        a("s_add_u32 s90, s90, s92")
        a("s_addc_u32 s91, s91, 0")
        a("v_lshlrev_b32 v150, 3, v0")
        a("global_load_dwordx2 v[152:153], v150, s[90:91]")
    S.stamp()
    a("v_lshrrev_b32 v10, 1, v1")
    a("v_and_b32 v10, 7, v10")
    a("v_lshrrev_b32 v11, 1, v2")
    a("v_and_b32 v12, 1, v2")
    a("v_lshlrev_b32 v13, 7, v1")
    a("v_lshl_add_u32 v13, v12, 3, v13")
    a("v_add_u32 v13, s42, v13")
    a(f"v_add_u32 v13, {XB}, v13")
    for h in range(2):
        for sec in range(2):
            a(f"v_add_u32 v15, {4*h + 2*sec}, v11")
            a("v_xor_b32 v15, v15, v10")
            a(f"v_lshl_add_u32 v{16 + 2*h + sec}, v15, 4, v13")
    a("v_lshrrev_b32 v10, 2, v1")
    a("v_lshl_add_u32 v10, v2, 2, v10")
    a("v_and_b32 v11, 3, v1")
    a("v_lshlrev_b32 v11, 3, v11")
    a("v_mul_u32_u24 v12, 160, v10")
    a("v_add_u32 v20, v12, v11")
    a("s_lshl_b32 s43, s32, 5")
    a("v_add_u32 v21, s43, v20")
    a("v_mul_u32_u24 v12, 40, v10")
    a("v_add_u32 v12, v12, v11")
    a(f"v_add_u32 v22, {WKV}, v12")
    ONES = 24
    ACC = 28
    CS4 = 56; CS5 = 60; CS6 = 64; CSO = 68; RS = 72; GR = 76
    FR = 80
    for r in range(4): a(f"v_mov_b32 v{ONES+r}, 0x3f803f80")
    for r in range(ACC, 80): a(f"v_mov_b32 v{r}, 0")
    def reads(st, ks4, fs, kv):
        buf = st % 3
        b = FR + 36 * fs
        kb = ks4 // 2; h = ks4 % 2
        xo = buf * XST + kb * 2048
        a(f"ds_read_b64 {vr(b,2)}, v{16+2*h} offset:{xo}")
        a(f"ds_read_b64 {vr(b+2,2)}, v{17+2*h} offset:{xo}")
        for nt in range(5):
            for half in range(2):
                off = WB + buf * WST + (32 * ks4 + 16 * half) * 160 + 32 * nt
                a(f"ds_read_b64_tr_b16 {vr(b+4+4*nt+2*half,2)}, v20 offset:{off}")
        for half in range(2):
            off = WB + buf * WST + (32 * ks4 + 16 * half) * 160
            a(f"ds_read_b64_tr_b16 {vr(b+32+2*half,2)}, v21 offset:{off}")
        if kv:
            for t in range(2):
                for half in range(2):
                    off = (st * 128 + 32 * ks4 + 16 * half) * 40 + 32 * t
                    a(f"ds_read_b64_tr_b16 {vr(b+24+4*t+2*half,2)}, v22 offset:{off}")
    def mfmas(fs, kv, pend):
        b = FR + 36 * fs
        l = [(ACC + 4 * nt, b + 4 + 4 * nt, b) for nt in range(5)]
        l += [(CS4, b + 4 + 16, ONES), (CSO, b + 32, ONES), (RS, ONES, b), (GR, b, b)]
        if kv:
            l += [(ACC + 20, b + 24, b), (ACC + 24, b + 28, b), (CS5, b + 24, ONES), (CS6, b + 28, ONES)]
        for idx, (d, x, y) in enumerate(l):
            mfma16(a, d, x, y)
            if idx % 3 == 1 and pend:
                for x_ in pend.pop(0): a(x_)
    def main_loop(kv):
        waits = [9, 9, 9, 9, 0]
        for st in range(5):
            a(f"s_waitcnt vmcnt({waits[st]})")
            a("s_barrier")
            if st == 0:
                if kv: S.stamp(); S.n -= 1
                else: S.stamp()
            pend = stage_ops(st + 2) if st + 2 < 5 else []
            reads(st, 0, 0, kv)
            for ks4 in range(4):
                a("s_waitcnt lgkmcnt(0)")
                if ks4 < 3: reads(st, ks4 + 1, (ks4 + 1) % 2, kv)
                mfmas(ks4 % 2, kv, pend)
            assert not pend
    a("s_cmp_ge_u32 s34, 2")
    a(f"s_cbranch_scc1 L_{name}_loopq")
    main_loop(True)
    a(f"s_branch L_{name}_epi")
    a.label(f"L_{name}_loopq")
    main_loop(False)
    a.label(f"L_{name}_epi")
    S.stamp()
    a("s_nop 7")
    a("s_nop 7")
    a("v_lshlrev_b32 v10, 4, v2")
    a("s_lshl_b32 s43, s32, 6")
    a(f"s_add_u32 s43, s43, {MISC}")
    a("v_add_u32 v11, s43, v10")
    a("v_cmp_eq_u32 vcc, 0, v1")
    a("s_and_saveexec_b64 s[46:47], vcc")
    a(f"ds_write_b128 v11, {vr(CSO,4)}")
    a("s_mov_b64 exec, s[46:47]")
    a("v_and_b32 v12, 3, v1")
    a(f"v_mov_b32 v13, v{GR}")
    for r in range(1, 4):
        a(f"v_cmp_eq_u32 vcc, {r}, v12")
        a("s_nop 1")
        a(f"v_cndmask_b32 v13, v13, v{GR+r}, vcc")
    a("v_lshrrev_b32 v12, 2, v1")
    a("v_lshl_add_u32 v12, v12, 4, v1")
    a("v_lshlrev_b32 v12, 2, v12")
    a("ds_bpermute_b32 v13, v12, v13")
    a("s_waitcnt lgkmcnt(0)")
    a("s_barrier")
    a(f"v_add_u32 v11, {MISC}, v10")
    CSX = FR
    for nt in range(4): a(f"ds_read_b128 {vr(CSX+4*nt,4)}, v11 offset:{64*nt}")
    a(f"s_mov_b32 s43, {hex(f2u(1.0/640))}")
    a(f"v_mul_f32 v14, s43, v{RS}")
    a("v_mul_f32 v13, s43, v13")
    a("v_fma_f32 v13, -v14, v14, v13")
    a("v_max_f32 v13, 0, v13")
    a(f"v_add_f32 v13, {hex(f2u(1e-5))}, v13")
    a("v_rsq_f32 v15, v13")
    a("s_nop 0")
    qs = (20 ** -0.5) * math.log2(math.e)
    a(f"v_mul_f32 v23, {hex(f2u(qs))}, v15")
    a("s_waitcnt lgkmcnt(0)")
    a("s_lshl_b32 s43, s33, 2")
    a("s_add_u32 s43, s43, s32")
    a("s_mul_i32 s44, s43, 20480")
    a("s_mul_i32 s45, s34, 2560")
    a("s_add_u32 s44, s44, s45")
    a(f"s_add_u32 s44, s44, {QT_OFF}")
    a("v_lshlrev_b32 v10, 3, v0")
    T = FR + 16
    for nt in range(5):
        cs = CSX + 4 * nt if nt < 4 else CS4
        for r in range(4):
            a(f"v_fma_f32 v{T+r}, -v14, v{cs+r}, v{ACC+4*nt+r}")
            a(f"v_mul_f32 v{T+r}, v23, v{T+r}")
        a(f"v_cvt_pk_bf16_f32 v{T+4+2*nt}, v{T}, v{T+1}")
        a(f"v_cvt_pk_bf16_f32 v{T+5+2*nt}, v{T+2}, v{T+3}")
        a(f"buffer_store_dwordx2 {vr(T+4+2*nt,2)}, v10, s[28:31], s44 offen offset:{512*nt}")
    a("s_cmp_lg_u32 s32, 0")
    a(f"s_cbranch_scc1 L_{name}_nozero")
    a("v_cmp_gt_u32 vcc, 16, v0")
    a("s_and_saveexec_b64 s[46:47], vcc")
    a("v_mov_b32 v11, 0")
    a("v_lshlrev_b32 v12, 2, v0")
    a("s_lshl_b32 s45, s2, 6")
    a(f"s_add_u32 s45, s45, {ST_OFF}")
    a("buffer_store_dword v11, v12, s[28:31], s45 offen")
    a("s_and_b32 s45, s2, 63")
    a("s_lshl_b32 s45, s45, 8")
    a(f"s_add_u32 s45, s45, {CNT_OFF}")
    a("buffer_store_dword v11, v12, s[28:31], s45 offen")
    a("s_mov_b64 exec, s[46:47]")
    a.label(f"L_{name}_nozero")
    a("s_cmp_ge_u32 s34, 2")
    a(f"s_cbranch_scc1 L_{name}_fin")
    for t, cs in ((0, CS5), (1, CS6)):
        for r in range(4):
            a(f"v_fma_f32 v{T+4*t+r}, -v14, v{cs+r}, v{ACC+20+4*t+r}")
            a(f"v_mul_f32 v{T+4*t+r}, v15, v{T+4*t+r}")
    a("s_lshl_b32 s43, s33, 1")
    a("s_lshr_b32 s44, s32, 1")
    a("s_add_u32 s43, s43, s44")
    a(f"s_mul_i32 s43, s43, {KVT}")
    a(f"s_add_u32 s43, s43, {KV_OFF}")
    a("s_and_b32 s44, s32, 1")
    a("s_cmp_lg_u32 s34, 0")
    a(f"s_cbranch_scc1 L_{name}_vstore")
    a(f"v_cvt_pk_bf16_f32 v{T+8}, v{T}, v{T+1}")
    a(f"v_cvt_pk_bf16_f32 v{T+9}, v{T+2}, v{T+3}")
    a(f"v_cvt_pk_bf16_f32 v{T+10}, v{T+4}, v{T+5}")
    a(f"v_cvt_pk_bf16_f32 v{T+11}, v{T+6}, v{T+7}")
    a("s_lshl_b32 s45, s44, 4")
    a("v_add_u32 v10, s45, v1")
    a("v_lshrrev_b32 v11, 1, v2")
    a("v_lshlrev_b32 v11, 9, v11")
    a("v_lshl_add_u32 v11, v10, 4, v11")
    a("v_and_b32 v12, 1, v2")
    a("v_lshl_add_u32 v11, v12, 3, v11")
    a(f"buffer_store_dwordx2 {vr(T+8,2)}, v11, s[28:31], s43 offen")
    a("v_lshlrev_b32 v11, 2, v10")
    a("v_cmp_eq_u32 vcc, 0, v2")
    a("s_and_saveexec_b64 s[46:47], vcc")
    a(f"buffer_store_dword v{T+10}, v11, s[28:31], s43 offen offset:1024")
    a(f"buffer_store_dword v{T+11}, v11, s[28:31], s43 offen offset:1152")
    a("s_mov_b64 exec, s[46:47]")
    a(f"s_branch L_{name}_fin")
    a.label(f"L_{name}_vstore")
    for r in range(8): a(f"v_cvt_pk_bf16_f32 v{T+8+r}, v{T+r}, v{T+r}")
    a("s_mul_i32 s45, s44, 672")
    a("s_add_u32 s43, s43, s45")
    a("v_lshrrev_b32 v10, 3, v1")
    a("v_lshlrev_b32 v10, 2, v10")
    a("v_and_b32 v11, 3, v1")
    a("v_add_u32 v10, v10, v11")
    a("v_lshlrev_b32 v10, 1, v10")
    a("v_bfe_u32 v11, v1, 2, 1")
    a("v_mul_u32_u24 v11, 336, v11")
    a("v_add_u32 v10, v10, v11")
    a("v_lshl_add_u32 v11, v2, 6, v10")
    for r in range(4):
        a(f"buffer_store_short v{T+8+r}, v11, s[28:31], s43 offen offset:{1280 + 16*r}")
    a("v_cmp_eq_u32 vcc, 0, v2")
    a("s_and_saveexec_b64 s[46:47], vcc")
    for r in range(4):
        a(f"buffer_store_short v{T+12+r}, v10, s[28:31], s43 offen offset:{1280 + 16*(16+r)}")
    a(f"buffer_store_short v{ONES}, v10, s[28:31], s43 offen offset:{1280 + 16*20}")
    a("s_mov_b64 exec, s[46:47]")
    a.label(f"L_{name}_fin")
    S.stamp(); S.real(); S.flush()
    a.label(f"L_{name}_end")
    a("s_endpgm")
    return name, a.text(), kd(name, 160), f"; @launch kernel={name} grid=(256,1,1) block=(256,1,1) lds={LDS}"

def mfma32(a, d, x, y, c=None):
    c = vr(d, 16) if c is None else c
    a(f"v_mfma_f32_32x32x16_bf16 {vr(d,16)}, {vr(x,4)}, {vr(y,4)}, {c}")

def gen_attn():
    name = "attn0_kernel"
    a = Asm()
    header(a, "attn1_kernel")
    a("s_mov_b32 s99, 1")
    a("s_branch L_attn_body")
    header(a, name)
    a("s_mov_b32 s99, 0")
    a.label("L_attn_body")
    NLT = 60
    CH = 16 * KVT
    QL = 56 * KVT
    FLAG = 154 * 1024
    LDS = FLAG + 64
    QMAX = 153
    QF1 = 8; QF2 = 12; NEGM = 16; S_ = [32, 48]; O = 64; P = [80, 88]
    KB = [96, 104]
    VB = [112, 120]
    AC = 128
    VOFF = 134; K2OFF = 135; PFO = 136; DUM = 140
    RT = 144
    NV = RT + 64
    a(f"s_cmp_ge_u32 s2, 256")
    a(f"s_cbranch_scc1 L_{name}_end")
    S = Stamper(a, 1, 8); S.real(); S.stamp()
    a(f"s_load_dwordx2 s[12:13], s[0:1], 96")
    a("s_load_dwordx2 s[14:15], s[0:1], 32")
    a("s_load_dwordx2 s[16:17], s[0:1], 48")
    a("v_lshrrev_b32 v1, 6, v0")
    a("v_and_b32 v0, 63, v0")
    a("v_readfirstlane_b32 s32, v1")
    a("s_and_b32 s33, s2, 7")
    a("s_lshr_b32 s34, s2, 3")
    a("s_and_b32 s34, s34, 3")
    a("s_lshl_b32 s34, s34, 3")
    a("s_add_u32 s33, s33, s34")
    a("s_lshl_b32 s33, s33, 6")
    a("s_lshr_b32 s34, s2, 5")
    a("s_lshl_b32 s34, s34, 3")
    a("s_add_u32 s33, s33, s34")
    a("v_lshlrev_b32 v3, 4, v0")
    a("v_lshrrev_b32 v4, 2, v0")
    a("v_lshlrev_b32 v4, 7, v4")
    a("v_and_b32 v5, 3, v0")
    a("v_lshl_add_u32 v4, v5, 4, v4")
    a("s_lshr_b32 s34, s33, 4")
    a("s_mul_i32 s34, s34, 20480")
    a("s_and_b32 s35, s33, 15")
    a("s_lshl_b32 s36, s35, 3")
    a("s_add_u32 s34, s34, s36")
    a(f"s_add_u32 s34, s34, {QT_OFF}")
    a("s_lshl_b32 s36, s32, 11")
    a("s_add_u32 s36, s36, s34")
    a("s_lshl_b32 s37, s32, 10")
    a(f"s_add_u32 s37, s37, {QL}")
    a("s_lshl_b32 s50, s32, 10")
    a("s_waitcnt lgkmcnt(0)")
    srd(a, 28, 12, 13, WS_SIZE)
    a("s_mov_b32 m0, s37")
    a("s_add_u32 s33, s33, s32")
    a("buffer_load_dwordx4 v4, s[28:31], s36 offen lds")
    a("s_cmp_ge_u32 s32, 2")
    a(f"s_cbranch_scc1 L_{name}_q1")
    a("s_add_u32 s37, s37, 8192")
    a("s_mov_b32 m0, s37")
    a("s_add_u32 s36, s36, 16384")
    a("buffer_load_dwordx4 v4, s[28:31], s36 offen lds")
    a.label(f"L_{name}_q1")
    a("s_mov_b32 s40, 0")
    def dma_piece():
        a(f"s_min_u32 s43, s50, {QMAX*1024}")
        a("s_mov_b32 m0, s43")
        a(f"s_add_u32 s43, s43, {KV_OFF}")
        a("buffer_load_dwordx4 v3, s[28:31], s43 offen lds")
        a("s_add_u32 s50, s50, 8192")
    for i in range(6): dma_piece()
    a("s_and_b32 s35, s33, 15")
    srd(a, 20, 14, 15, 819200)
    srd(a, 24, 16, 17, 2048*1728*2)
    a("s_lshr_b32 s54, s2, 3")
    a("s_lshl_b32 s54, s54, 3")
    a("s_add_u32 s54, s54, s32")
    a("s_mul_i32 s55, s54, 3200")
    a("s_and_b32 s56, s2, 7")
    a("s_mul_i32 s56, s56, 27")
    a("s_lshr_b32 s56, s56, 3")
    a("s_lshl_b32 s56, s56, 7")
    a(f"s_mul_i32 s57, s54, {8*3456}")
    a("s_add_u32 s56, s56, s57")
    a("v_lshrrev_b32 v4, 3, v0")
    a("v_mul_u32_u24 v4, 3456, v4")
    a("v_and_b32 v5, 7, v0")
    a(f"v_lshl_add_u32 v{PFO}, v5, 4, v4")
    a("v_and_b32 v1, 31, v0")
    a("v_lshrrev_b32 v2, 5, v0")
    a("v_mov_b32 v4, 0")
    a(f"v_mov_b32 v5, {FLAG}")
    a("ds_write_b32 v5, v4")
    for r in range(1, 4): a(f"v_mov_b32 v{QF2+r}, 0")
    for kb in KB + [RT + 16 * j for j in range(4)]:
        for r in range(5, 8): a(f"v_mov_b32 v{kb+r}, 0")
    a("v_min_u32 v4, 20, v1")
    a("v_subrev_u32 v5, 12, v1")
    a("v_cmp_lt_u32 vcc, 27, v1")
    a("s_nop 1")
    a("v_cndmask_b32 v4, v4, v5, vcc")
    a("v_lshlrev_b32 v4, 4, v4")
    a("v_mul_u32_u24 v5, 336, v2")
    a("v_add_u32 v4, v4, v5")
    a(f"v_add_u32 v{VOFF}, 1280, v4")
    a(f"v_lshlrev_b32 v{K2OFF}, 2, v0")
    a(f"v_add_u32 v{K2OFF}, 1024, v{K2OFF}")
    a("v_mul_u32_u24 v4, 5, v1")
    a("v_lshl_add_u32 v5, v2, 1, v4")
    a("v_lshlrev_b32 v5, 6, v5")
    a("s_lshl_b32 s36, s32, 3")
    a(f"s_add_u32 s36, s36, {QL}")
    a("v_add_u32 v5, s36, v5")
    a("v_add_u32 v6, 4, v4")
    a("v_lshlrev_b32 v6, 6, v6")
    a("v_lshl_add_u32 v6, v2, 2, v6")
    a("v_add_u32 v6, s36, v6")
    a("s_waitcnt vmcnt(4) lgkmcnt(0)")
    a("s_barrier")
    a(f"ds_read_b64 {vr(QF1,2)}, v5")
    a(f"ds_read_b64 {vr(QF1+2,2)}, v5 offset:64")
    a(f"ds_read_b32 v{QF2}, v6")
    a(f"ds_read_b128 {vr(KB[0],4)}, v3")
    a(f"ds_read_b32 v{KB[0]+4}, v{K2OFF}")
    a("s_waitcnt lgkmcnt(0)")
    mfma32(a, S_[0], KB[0], QF1, "0")
    mfma32(a, S_[0], KB[0] + 4, QF2)
    a("s_nop 15")
    a("s_nop 3")
    a(f"v_max_f32 v7, v{S_[0]}, v{S_[0]+1}")
    for r in range(2, 16, 2): a(f"v_max3_f32 v7, v7, v{S_[0]+r}, v{S_[0]+r+1}")
    a(f"s_branch L_{name}_havemax")
    a.label(f"L_{name}_restart")
    a(f"v_mov_b32 v{AC}, v3")
    a(f"v_mov_b32 v{AC+1}, v{K2OFF}")
    a(f"v_mov_b32 v7, 0xff800000")
    a("s_mov_b32 s41, 0")
    a.label(f"L_{name}_mx")
    a(f"ds_read_b128 {vr(KB[0],4)}, v{AC}")
    a(f"ds_read_b32 v{KB[0]+4}, v{AC+1}")
    a(f"v_add_u32 v{AC}, {KVT}, v{AC}")
    a(f"v_add_u32 v{AC+1}, {KVT}, v{AC+1}")
    a("s_waitcnt lgkmcnt(0)")
    mfma32(a, S_[0], KB[0], QF1, "0")
    mfma32(a, S_[0], KB[0] + 4, QF2)
    a("s_nop 15")
    a("s_nop 3")
    for r in range(0, 16, 2): a(f"v_max3_f32 v7, v7, v{S_[0]+r}, v{S_[0]+r+1}")
    a("s_add_u32 s41, s41, 1")
    a(f"s_cmp_lt_u32 s41, {NLT}")
    a(f"s_cbranch_scc1 L_{name}_mx")
    for j in range(4):
        mfma32(a, S_[0], RT + 16 * j, QF1, "0")
        mfma32(a, S_[0], RT + 16 * j + 4, QF2)
        a("s_nop 15")
        a("s_nop 3")
        for r in range(0, 16, 2): a(f"v_max3_f32 v7, v7, v{S_[0]+r}, v{S_[0]+r+1}")
    a.label(f"L_{name}_havemax")
    S.stamp()
    a("v_mov_b32 v4, v7")
    a("v_mov_b32 v5, v7")
    a("s_nop 1")
    a("v_permlane32_swap_b32 v4, v5")
    a("s_nop 1")
    a("v_max_f32 v7, v4, v5")
    a("v_sub_f32 v7, 0, v7")
    for r in range(16): a(f"v_mov_b32 v{NEGM+r}, v7")
    for r in range(16): a(f"v_mov_b32 v{O+r}, 0")
    for r in range(8): a(f"v_mov_b32 v{P[1]+r}, 0")
    for r in range(8): a(f"v_mov_b32 v{VB[1]+r}, 0")
    a(f"v_mov_b32 v{AC}, v3"); a(f"v_mov_b32 v{AC+1}, v{K2OFF}"); a(f"v_mov_b32 v{AC+2}, v{VOFF}")
    a(f"ds_read_b128 {vr(KB[0],4)}, v{AC}")
    a(f"ds_read_b32 v{KB[0]+4}, v{AC+1}")
    a(f"ds_read_b128 {vr(KB[1],4)}, v{AC} offset:{KVT}")
    a(f"ds_read_b32 v{KB[1]+4}, v{AC+1} offset:{KVT}")
    a("s_waitcnt lgkmcnt(2)")
    mfma32(a, S_[0], KB[0], QF1, vr(NEGM, 16))
    mfma32(a, S_[0], KB[0] + 4, QF2)
    a("s_lshl_b32 s41, s40, 3")
    a("s_mov_b32 s42, 0")
    PON = int(os.environ.get("PON", "0")); POFF = int(os.environ.get("POFF", "12"))
    def body(t, last):
        sc = S_[t % 2]; sn = S_[(t + 1) % 2]
        kl = KB[t % 2]; vl = VB[t % 2]
        pp = P[(t + 1) % 2]; pc = P[t % 2]
        gt = 48 + t if last else None
        kn = KB[(t + 1) % 2] if not (last and gt + 1 >= NLT) else RT + 16 * (gt + 1 - NLT)
        vp = VB[(t + 1) % 2] if not (last and gt - 1 >= NLT) else RT + 16 * (gt - 1 - NLT) + 8
        tag = "L" if last else ""
        if not last:
            if t == 4:
                a("s_cmp_lg_u32 s41, 0")
                a(f"s_cbranch_scc1 L_{name}_nb4")
                a("s_waitcnt vmcnt(4)")
                a("s_barrier")
                a.label(f"L_{name}_nb4")
            if t == 14:
                a("s_cmp_lg_u32 s41, 0")
                a(f"s_cbranch_scc1 L_{name}_nb14")
                a("s_waitcnt vmcnt(0)")
                a("s_barrier")
                a.label(f"L_{name}_nb14")
            if t in (0, 5, 8, 11):
                a("s_cmp_lg_u32 s41, 0")
                a(f"s_cbranch_scc1 L_{name}_sk{t}")
                for i in range(4 if t < 11 else 2): dma_piece()
                a.label(f"L_{name}_sk{t}")
            if t in (2, 9):
                a("s_cmp_lg_u32 s41, 1")
                a(f"s_cbranch_scc1 L_{name}_pf{t}")
                if t == 2:
                    for j in range(4):
                        a(f"s_mov_b32 s43, {KV_OFF + (NLT+j)*KVT}")
                        a(f"buffer_load_dwordx4 {vr(RT+16*j,4)}, v3, s[28:31], s43 offen")
                        a(f"buffer_load_dword v{RT+16*j+4}, v{K2OFF}, s[28:31], s43 offen")
                        a(f"buffer_load_dwordx4 {vr(RT+16*j+8,4)}, v{VOFF}, s[28:31], s43 offen")
                        a(f"buffer_load_dwordx4 {vr(RT+16*j+12,4)}, v{VOFF}, s[28:31], s43 offen offset:672")
                else:
                    for k in range(4):
                        a(f"buffer_load_dwordx4 {vr(DUM,4)}, v3, s[20:23], s55 offen offset:{min(k*1024, 3200-1024)}")
                    for k in range(5):
                        a(f"buffer_load_dwordx4 {vr(DUM,4)}, v{PFO}, s[24:27], s56 offen offset:{k*128}")
                a.label(f"L_{name}_pf{t}")
        if t == PON:
            a("s_cmp_lt_u32 s32, 4")
            a(f"s_cbranch_scc1 L_{name}_np{tag}")
            a("s_setprio 1")
            a.label(f"L_{name}_np{tag}")
        if t == POFF: a("s_setprio 0")
        a("s_waitcnt lgkmcnt(0)")
        ldk = not (last and gt + 2 >= NLT)
        ldv = not (last and gt >= NLT)
        dos = not (last and t == 15)
        if dos: mfma32(a, sn, kn, QF1, vr(NEGM, 16))
        if ldk:
            a(f"ds_read_b128 {vr(kl,4)}, v{AC} offset:{(t+2)*KVT}")
            a(f"ds_read_b32 v{kl+4}, v{AC+1} offset:{(t+2)*KVT}")
        for r in range(0, 4): a(f"v_exp_f32 v{sc+r}, v{sc+r}")
        mfma32(a, O, vp, pp)
        if ldv:
            a(f"ds_read_b128 {vr(vl,4)}, v{AC+2} offset:{t*KVT}")
            a(f"ds_read_b128 {vr(vl+4,4)}, v{AC+2} offset:{t*KVT+672}")
        for r in range(4, 8): a(f"v_exp_f32 v{sc+r}, v{sc+r}")
        for r in range(4): a(f"v_cvt_pk_bf16_f32 v{pc+r}, v{sc+2*r}, v{sc+2*r+1}")
        if dos: mfma32(a, sn, kn + 4, QF2)
        for r in range(8, 12): a(f"v_exp_f32 v{sc+r}, v{sc+r}")
        mfma32(a, O, vp + 4, pp + 4)
        for r in range(12, 16): a(f"v_exp_f32 v{sc+r}, v{sc+r}")
        for r in range(4): a(f"v_cvt_pk_bf16_f32 v{pc+4+r}, v{sc+8+2*r}, v{sc+8+2*r+1}")
    a.label(f"L_{name}_chunk")
    for t in range(16): body(t, False)
    for r in range(3): a(f"v_add_u32 v{AC+r}, {CH}, v{AC+r}")
    a("s_add_u32 s41, s41, 1")
    a("s_add_u32 s42, s42, 1")
    a("s_cmp_lt_u32 s42, 3")
    a(f"s_cbranch_scc1 L_{name}_chunk")
    a("s_waitcnt vmcnt(0)")
    for t in range(16): body(t, True)
    a("s_setprio 0")
    a("s_nop 1")
    mfma32(a, O, RT + 48 + 8, P[1])
    mfma32(a, O, RT + 48 + 12, P[1] + 4)
    S.stamp()
    a("s_nop 15")
    a("s_nop 3")
    a(f"v_mov_b32 v4, v{O+8}")
    a(f"v_mov_b32 v5, v{O+8}")
    a("s_nop 1")
    a("v_permlane32_swap_b32 v4, v5")
    a("v_mov_b32 v6, 0")
    for r in range(12): a(f"v_fma_f32 v6, v{O+r}, 0, v6")
    a(f"v_fma_f32 v6, v5, 0, v6")
    a(f"s_mov_b32 s43, {hex(f2u(2.0**100))}")
    a("v_cmp_neq_f32 vcc, 0, v6")
    a("v_cmp_nlt_f32 s[46:47], v5, s43")
    a("s_or_b64 vcc, vcc, s[46:47]")
    a("s_cmp_lg_u32 s40, 0")
    a(f"s_cbranch_scc1 L_{name}_store")
    a(f"s_cbranch_vccz L_{name}_store")
    a("s_mov_b32 s40, 1")
    a(f"s_branch L_{name}_restart")
    a.label(f"L_{name}_store")
    a("v_rcp_f32 v5, v5")
    a("s_nop 0")
    for r in range(12): a(f"v_mul_f32 v{O+r}, v5, v{O+r}")
    for r in range(6): a(f"v_cvt_pk_bf16_f32 v{S_[0]+r}, v{O+2*r}, v{O+2*r+1}")
    OST = 140000 // 1024 * 1024
    a("v_mul_u32_u24 v4, 20, v1")
    a("v_lshl_add_u32 v4, v2, 2, v4")
    a("s_lshl_b32 s36, s32, 4")
    a(f"s_add_u32 s36, s36, {OST}")
    for grp in range(3):
        a(f"v_add_u32 v5, {8*grp}, v4")
        a("v_lshrrev_b32 v6, 5, v5")
        a("v_lshlrev_b32 v6, 9, v6")
        a("v_bfe_u32 v7, v5, 2, 2")
        a("v_lshl_add_u32 v6, v7, 7, v6")
        a("v_bfe_u32 v7, v5, 4, 1")
        a("v_lshl_add_u32 v6, v7, 3, v6")
        a(f"v_add_u32 v{10+grp}, s36, v6")
    a("s_barrier")
    for grp in range(3):
        if grp == 2:
            a("v_cmp_eq_u32 vcc, 0, v2")
            a("s_and_saveexec_b64 s[46:47], vcc")
        a(f"ds_write_b64 v{10+grp}, {vr(S_[0]+2*grp,2)}")
    a("s_mov_b64 exec, -1")
    S.stamp()
    RES = 102400; RED = RES + 10240
    a("s_load_dwordx2 s[4:5], s[0:1], 0")
    a("s_lshr_b32 s33, s33, 6")
    a("s_lshr_b32 s34, s2, 5")
    a("v_and_b32 v1, 15, v0")
    a("v_lshrrev_b32 v2, 4, v0")
    a("s_mul_i32 s36, s34, 160")
    a("s_mov_b32 s37, 6554")
    a("s_movk_i32 s38, 1280")
    for r in range(5):
        a(f"v_add_u32 v10, {64*r}, v0")
        a("v_mul_lo_u32 v11, v10, s37")
        a("v_lshrrev_b32 v11, 16, v11")
        a("v_mul_u32_u24 v12, 10, v11")
        a("v_sub_u32 v12, v10, v12")
        a("v_mul_lo_u32 v11, v11, s38")
        a("v_lshl_add_u32 v11, v12, 4, v11")
        a(f"v_add_u32 v11, s36, v11")
        a(f"v_subrev_u32 v{4+r}, {1024*(r%4)}, v11")
    a("s_waitcnt lgkmcnt(0)")
    a(f"s_add_u32 s8, s12, {hex(X2_OFF)}")
    a("s_addc_u32 s9, s13, 0")
    a("s_cmp_eq_u32 s99, 0")
    a("s_cselect_b32 s4, s4, s8")
    a("s_cselect_b32 s5, s5, s9")
    srd(a, 16, 4, 5, XBYTES)
    a("s_waitcnt lgkmcnt(0)")
    a("s_barrier")
    a("s_lshl_b32 s43, s32, 10")
    a(f"s_add_u32 s43, s43, {OST}")
    a("v_add_u32 v10, s43, v3")
    a(f"ds_read_b128 v[32:35], v10")
    a(f"ds_read_b128 v[36:39], v10 offset:8192")
    a("v_lshrrev_b32 v11, 3, v0")
    a("v_lshlrev_b32 v11, 8, v11")
    a("v_and_b32 v12, 7, v0")
    a("v_lshl_add_u32 v11, v12, 4, v11")
    a("s_lshl_b32 s44, s33, 2")
    a("s_lshr_b32 s45, s34, 1")
    a("s_add_u32 s44, s44, s45")
    a("s_mul_i32 s44, s44, 20480")
    a("s_and_b32 s45, s34, 1")
    a("s_lshl_b32 s45, s45, 7")
    a("s_add_u32 s44, s44, s45")
    a("s_lshl_b32 s45, s32, 11")
    a("s_add_u32 s44, s44, s45")
    a(f"s_add_u32 s44, s44, {OF_OFF}")
    a("s_waitcnt lgkmcnt(0)")
    a("buffer_store_dwordx4 v[32:35], v11, s[28:31], s44 offen sc1")
    a("s_cmp_ge_u32 s32, 2")
    a(f"s_cbranch_scc1 L_{name}_os")
    a("s_add_u32 s44, s44, 16384")
    a("buffer_store_dwordx4 v[36:39], v11, s[28:31], s44 offen sc1")
    a.label(f"L_{name}_os")
    def wgroup(srd_, soff, ldsb):
        a(f"s_mov_b32 m0, {ldsb}")
        a(f"s_add_u32 s45, {ldsb}, 4096")
        for r in range(4):
            a(f"buffer_load_dwordx4 v{4+r}, {srd_}, {soff} offen offset:{1024*r} lds")
        a("s_mov_b32 m0, s45")
        a("s_nop 0")
        a(f"buffer_load_dwordx4 v8, {srd_}, {soff} offen lds")
    a(f"s_mul_i32 s40, s32, {32*1280}")
    a("s_add_u32 s40, s40, 4096")
    a("s_mul_i32 s41, s32, 5120")
    a("s_sub_u32 s60, s20, 4096")
    a("s_subb_u32 s61, s21, 0")
    a(f"s_mov_b32 s62, {819200+4096}")
    a("s_mov_b32 s63, 0x00020000")
    a("s_sub_u32 s64, s16, 4096")
    a("s_subb_u32 s65, s17, 0")
    a(f"s_mov_b32 s66, {XBYTES+4096}")
    a("s_mov_b32 s67, 0x00020000")
    for r in range(5): a(f"v_add_u32 v{4+r}, 4096, v{4+r}")
    a(f"s_mul_i32 s40, s32, {32*1280}")
    wgroup("s[60:63]", "s40", "s41")
    a(f"s_add_u32 s40, s40, {8*32*1280}")
    a(f"s_add_u32 s41, s41, {8*5120}")
    wgroup("s[60:63]", "s40", "s41")
    a("s_cmp_ge_u32 s32, 4")
    a(f"s_cbranch_scc1 L_{name}_w3")
    a(f"s_add_u32 s40, s40, {8*32*1280}")
    a(f"s_add_u32 s41, s41, {8*5120}")
    wgroup("s[60:63]", "s40", "s41")
    a(f"s_branch L_{name}_w4")
    a.label(f"L_{name}_w3")
    a("s_cmp_ge_u32 s32, 6")
    a(f"s_cbranch_scc1 L_{name}_w4")
    a("s_sub_u32 s43, s32, 4")
    a(f"s_mul_i32 s40, s43, {32*1280}")
    a("s_mul_i32 s44, s33, 81920")
    a("s_add_u32 s40, s40, s44")
    a("s_mul_i32 s41, s43, 5120")
    a(f"s_add_u32 s41, s41, {RES}")
    wgroup("s[64:67]", "s40", "s41")
    a.label(f"L_{name}_w4")
    a("s_waitcnt vmcnt(10)")
    a("s_barrier")
    a("s_cmp_lg_u32 s32, 0")
    a(f"s_cbranch_scc1 L_{name}_nopoll")
    a("s_lshl_b32 s43, s33, 8")
    a(f"s_add_u32 s43, s43, {CNT_OFF}")
    a("v_mov_b32 v10, s43")
    a("v_mov_b32 v11, 1")
    a("s_mov_b64 exec, 1")
    a("buffer_atomic_add v11, v10, s[28:31], 0 offen")
    a.label(f"L_{name}_poll")
    a("buffer_load_dword v12, v10, s[28:31], 0 offen sc1")
    a("s_waitcnt vmcnt(0)")
    a("v_readfirstlane_b32 s43, v12")
    a("s_cmp_ge_u32 s43, 8")
    a(f"s_cbranch_scc1 L_{name}_polled")
    a("s_sleep 1")
    a(f"s_branch L_{name}_poll")
    a.label(f"L_{name}_polled")
    a("s_mov_b64 exec, -1")
    a.label(f"L_{name}_nopoll")
    a("s_and_b32 s52, s32, 3")
    a("s_lshr_b32 s53, s32, 2")
    a("s_lshl_b32 s42, s33, 2")
    a("s_add_u32 s42, s42, s52")
    a("s_mul_i32 s43, s42, 20480")
    a("s_mul_i32 s44, s53, 10240")
    a("s_add_u32 s43, s43, s44")
    a(f"s_add_u32 s43, s43, {OF_OFF}")
    a("v_lshrrev_b32 v10, 2, v1")
    a("v_lshl_add_u32 v10, v2, 2, v10")
    a("v_and_b32 v11, 3, v1")
    a("v_lshlrev_b32 v11, 3, v11")
    a("v_mul_u32_u24 v12, 160, v10")
    a("v_add_u32 v20, v12, v11")
    a("s_mul_i32 s48, s52, 2560")
    a(f"s_add_u32 s48, s48, {RES}")
    a("v_add_u32 v22, s48, v20")
    a("s_mul_i32 s48, s53, 51200")
    a("v_add_u32 v20, s48, v20")
    ACC = 24; XF = 64; WF = 104
    for r in range(ACC, ACC + 20): a(f"v_mov_b32 v{r}, 0")
    a("s_waitcnt vmcnt(0)")
    a("s_barrier")
    S.stamp()
    for j in range(10):
        if j == 4: a("s_add_u32 s43, s43, 4096")
        if j == 8: a("s_add_u32 s43, s43, 4096")
        a(f"buffer_load_dwordx4 {vr(XF+4*j,4)}, v3, s[28:31], s43 offen offset:{1024*(j%4)} sc1")
    def reads(ks, fs):
        b = WF + 20 * fs
        for nt in range(5):
            for half in range(2):
                off = (32 * ks + 16 * half) * 160 + 32 * nt
                a(f"ds_read_b64_tr_b16 {vr(b+4*nt+2*half,2)}, v20 offset:{off}")
    reads(0, 0)
    for j in range(10):
        a(f"s_waitcnt lgkmcnt(0) vmcnt({9-j})")
        if j < 9: reads(j + 1, (j + 1) % 2)
        b = WF + 20 * (j % 2)
        for nt in range(5): mfma16(a, ACC + 4 * nt, XF + 4 * j, b + 4 * nt)
    a("s_mul_i32 s44, s52, 5120")
    a(f"s_add_u32 s44, s44, {RED}")
    a("v_add_u32 v10, s44, v3")
    a("s_cmp_eq_u32 s53, 0")
    a(f"s_cbranch_scc1 L_{name}_kh0")
    a("s_nop 7")
    for nt in range(5): a(f"ds_write_b128 v10, {vr(ACC+4*nt,4)} offset:{1024*nt}")
    a("s_waitcnt lgkmcnt(0)")
    a("s_barrier")
    a(f"s_branch L_{name}_fin")
    a.label(f"L_{name}_kh0")
    RS = 144
    for nt in range(5): a(f"ds_read_b64_tr_b16 {vr(RS+2*nt,2)}, v22 offset:{32*nt}")
    SUM = 44; SQ = 48; T = 52
    for r in range(8): a(f"v_mov_b32 v{SUM+r}, 0")
    a("s_mul_i32 s44, s34, 327680")
    a("s_lshr_b32 s45, s42, 1")
    a("s_lshl_b32 s45, s45, 10")
    a("s_add_u32 s44, s44, s45")
    a("s_and_b32 s45, s42, 1")
    a("s_lshl_b32 s45, s45, 3")
    a("s_add_u32 s44, s44, s45")
    a(f"s_add_u32 s44, s44, {X1T_OFF}")
    a("s_mov_b32 s46, 0xffff0000")
    a("s_barrier")
    for nt in range(5): a(f"ds_read_b128 {vr(XF+4*nt,4)}, v10 offset:{1024*nt}")
    a("s_waitcnt lgkmcnt(0)")
    for r in range(20): a(f"v_add_f32 v{ACC+r}, v{ACC+r}, v{XF+r}")
    OUT = 160
    for nt in range(5):
        for h in range(2):
            a(f"v_lshlrev_b32 v{T}, 16, v{RS+2*nt+h}")
            a(f"v_and_b32 v{T+1}, s46, v{RS+2*nt+h}")
            a(f"v_add_f32 v{T}, v{T}, v{ACC+4*nt+2*h}")
            a(f"v_add_f32 v{T+1}, v{T+1}, v{ACC+4*nt+2*h+1}")
            o = OUT + 2 * nt + h
            a(f"v_cvt_pk_bf16_f32 v{o}, v{T}, v{T+1}")
            a(f"v_lshlrev_b32 v{T}, 16, v{o}")
            a(f"v_and_b32 v{T+1}, s46, v{o}")
            a(f"v_add_f32 v{SUM+2*h}, v{SUM+2*h}, v{T}")
            a(f"v_add_f32 v{SUM+2*h+1}, v{SUM+2*h+1}, v{T+1}")
            a(f"v_fma_f32 v{SQ+2*h}, v{T}, v{T}, v{SQ+2*h}")
            a(f"v_fma_f32 v{SQ+2*h+1}, v{T+1}, v{T+1}, v{SQ+2*h+1}")
        a(f"buffer_store_dwordx2 {vr(OUT+2*nt,2)}, v3, s[28:31], s44 offen")
        if nt < 4: a("s_add_u32 s44, s44, 65536")
    for sh in (8, 4, 2, 1):
        a("s_nop 1")
        for r in range(8):
            a(f"v_add_f32_dpp v{SUM+r}, v{SUM+r}, v{SUM+r} row_ror:{sh} row_mask:0xf bank_mask:0xf")
    a("s_lshl_b32 s44, s42, 7")
    a(f"s_add_u32 s44, s44, {ST_OFF}")
    a("v_lshlrev_b32 v10, 5, v2")
    a("v_cmp_eq_u32 vcc, 0, v1")
    a("s_and_saveexec_b64 s[46:47], vcc")
    for r in range(4):
        a(f"buffer_atomic_add_f32 v{SUM+r}, v10, s[28:31], s44 offen offset:{8*r}")
        a(f"buffer_atomic_add_f32 v{SQ+r}, v10, s[28:31], s44 offen offset:{8*r+4}")
    a.label(f"L_{name}_fin")
    S.stamp(); S.real(); S.flush()
    a.label(f"L_{name}_end")
    a("s_endpgm")
    ll = lambda n: f"; @launch kernel={n} grid=(256,1,1) block=(512,1,1) lds={LDS}"
    return (name, a.text(), kd(name, NV) + kd("attn1_kernel", NV), ll(name)), ("attn1_kernel", "", "", ll("attn1_kernel"))

def gen_oproj(layer):
    name = f"oproj{layer}_kernel"
    a = Asm(); header(a, name)
    RES = 102400
    LDS = RES + 10240
    a(f"s_cmp_ge_u32 s2, 256")
    a(f"s_cbranch_scc1 L_{name}_end")
    S = Stamper(a, 2 + 5*layer, 4); S.real(); S.stamp()
    a(f"s_load_dwordx2 s[4:5], s[0:1], 0")
    a(f"s_load_dwordx2 s[6:7], s[0:1], 32")
    a(f"s_load_dwordx2 s[12:13], s[0:1], 96")
    a("v_lshrrev_b32 v1, 6, v0")
    a("v_and_b32 v0, 63, v0")
    a("v_readfirstlane_b32 s32, v1")
    a("s_and_b32 s33, s2, 7")
    a("s_lshr_b32 s34, s2, 3")
    a("s_and_b32 s34, s34, 3")
    a("s_lshl_b32 s34, s34, 3")
    a("s_add_u32 s33, s33, s34")
    a("s_lshr_b32 s34, s2, 5")
    a("s_waitcnt lgkmcnt(0)")
    if layer == 1:
        a(f"s_add_u32 s4, s12, {hex(X2_OFF)}")
        a(f"s_addc_u32 s5, s13, 0")
    srd(a, 16, 4, 5, XBYTES)
    srd(a, 20, 6, 7, 819200)
    srd(a, 28, 12, 13, WS_SIZE)
    a("v_and_b32 v1, 15, v0")
    a("v_lshrrev_b32 v2, 4, v0")
    a("s_mul_i32 s35, s32, 320")
    a("s_mul_i32 s36, s34, 160")
    a("s_mov_b32 s37, 6554")
    a("s_movk_i32 s38, 1280")
    for jj in range(5):
        a(f"v_add_u32 v10, s35, v0")
        if jj: a(f"v_add_u32 v10, {64*jj}, v10")
        a("v_mul_lo_u32 v11, v10, s37")
        a("v_lshrrev_b32 v11, 16, v11")
        a("v_mul_u32_u24 v12, 10, v11")
        a("v_sub_u32 v12, v10, v12")
        a("v_mul_lo_u32 v11, v11, s38")
        a("v_lshl_add_u32 v11, v12, 4, v11")
        a(f"v_add_u32 v{4+jj}, s36, v11")
    a("v_lshlrev_b32 v3, 4, v0")
    a("s_mul_i32 s40, s33, 81920")
    a("s_mul_i32 s41, s32, 5120")
    a("s_cmp_ge_u32 s32, 2")
    a(f"s_cbranch_scc1 L_{name}_nores")
    for jj in range(5):
        a(f"s_add_u32 s44, s41, {RES + jj*1024}")
        a("s_mov_b32 m0, s44")
        a("s_nop 0")
        a(f"buffer_load_dwordx4 v{4+jj}, s[16:19], s40 offen lds")
    a.label(f"L_{name}_nores")
    a("s_lshl_b32 s42, s33, 2")
    a("s_add_u32 s42, s42, s32")
    a("s_mul_i32 s43, s42, 20480")
    a(f"s_add_u32 s43, s43, {OF_OFF}")
    XF = 64
    def stage_ops(st):
        ops = []
        for jj in range(5):
            ops.append([f"s_add_u32 s44, s41, {st*20480 + jj*1024}", "s_mov_b32 m0, s44",
                        f"s_mov_b32 s45, {st*128*1280}", f"buffer_load_dwordx4 v{4+jj}, s[20:23], s45 offen lds"])
        for k4 in range(4):
            ops.append([f"s_add_u32 s45, s43, {st*4096}",
                        f"buffer_load_dwordx4 {vr(XF+4*(4*st+k4),4)}, v3, s[28:31], s45 offen offset:{1024*k4}"])
        return ops
    for st in range(2):
        for op in stage_ops(st):
            for x in op: a(x)
    S.stamp()
    a("v_lshrrev_b32 v10, 2, v1")
    a("v_lshl_add_u32 v10, v2, 2, v10")
    a("v_and_b32 v11, 3, v1")
    a("v_lshlrev_b32 v11, 3, v11")
    a("v_mul_u32_u24 v12, 160, v10")
    a("v_add_u32 v20, v12, v11")
    a(f"v_add_u32 v21, {51200}, v20")
    a("s_mul_i32 s48, s32, 2560")
    a(f"s_add_u32 s48, s48, {RES}")
    a("v_add_u32 v22, s48, v20")
    ACC = 24
    WF = 144
    for r in range(ACC, ACC + 20): a(f"v_mov_b32 v{r}, 0")
    def reads(ks, fs):
        b = WF + 20 * fs
        for nt in range(5):
            for half in range(2):
                off = (32 * ks + 16 * half) * 160 + 32 * nt
                va = 20
                if off >= 51200: off -= 51200; va = 21
                a(f"ds_read_b64_tr_b16 {vr(b+4*nt+2*half,2)}, v{va} offset:{off}")
    for st in range(5):
        a(f"s_waitcnt vmcnt({9 if st < 4 else 0})")
        a("s_barrier")
        if st == 0: S.stamp()
        pend = stage_ops(st + 2) if st + 2 < 5 else []
        reads(4 * st, 0)
        for k4 in range(4):
            a("s_waitcnt lgkmcnt(0)")
            if k4 < 3: reads(4 * st + k4 + 1, (k4 + 1) % 2)
            b = WF + 20 * (k4 % 2)
            for nt in range(5):
                mfma16(a, ACC + 4 * nt, XF + 4 * (4 * st + k4), b + 4 * nt)
                if nt % 2 == 0 and pend:
                    for x_ in pend.pop(0): a(x_)
        assert not pend
    S.stamp()
    RS = WF
    for nt in range(5): a(f"ds_read_b64_tr_b16 {vr(RS+2*nt,2)}, v22 offset:{32*nt}")
    SUM = 44; SQ = 48; T = 52
    for r in range(8): a(f"v_mov_b32 v{SUM+r}, 0")
    a("s_mul_i32 s44, s34, 327680")
    a("s_lshr_b32 s45, s42, 1")
    a("s_lshl_b32 s45, s45, 10")
    a("s_add_u32 s44, s44, s45")
    a("s_and_b32 s45, s42, 1")
    a("s_lshl_b32 s45, s45, 3")
    a("s_add_u32 s44, s44, s45")
    a(f"s_add_u32 s44, s44, {X1T_OFF}")
    a("s_mov_b32 s46, 0xffff0000")
    a("s_waitcnt lgkmcnt(0)")
    a("s_nop 7")
    OUT = WF + 12
    for nt in range(5):
        for h in range(2):
            a(f"v_lshlrev_b32 v{T}, 16, v{RS+2*nt+h}")
            a(f"v_and_b32 v{T+1}, s46, v{RS+2*nt+h}")
            a(f"v_add_f32 v{T}, v{T}, v{ACC+4*nt+2*h}")
            a(f"v_add_f32 v{T+1}, v{T+1}, v{ACC+4*nt+2*h+1}")
            o = OUT + 2 * nt + h
            a(f"v_cvt_pk_bf16_f32 v{o}, v{T}, v{T+1}")
            a(f"v_lshlrev_b32 v{T}, 16, v{o}")
            a(f"v_and_b32 v{T+1}, s46, v{o}")
            a(f"v_add_f32 v{SUM+2*h}, v{SUM+2*h}, v{T}")
            a(f"v_add_f32 v{SUM+2*h+1}, v{SUM+2*h+1}, v{T+1}")
            a(f"v_fma_f32 v{SQ+2*h}, v{T}, v{T}, v{SQ+2*h}")
            a(f"v_fma_f32 v{SQ+2*h+1}, v{T+1}, v{T+1}, v{SQ+2*h+1}")
        a(f"buffer_store_dwordx2 {vr(OUT+2*nt,2)}, v3, s[28:31], s44 offen")
        if nt < 4: a("s_add_u32 s44, s44, 65536")
    for sh in (8, 4, 2, 1):
        a("s_nop 1")
        for r in range(8):
            a(f"v_add_f32_dpp v{SUM+r}, v{SUM+r}, v{SUM+r} row_ror:{sh} row_mask:0xf bank_mask:0xf")
    a("s_lshl_b32 s44, s42, 7")
    a(f"s_add_u32 s44, s44, {ST_OFF}")
    a("v_lshlrev_b32 v10, 5, v2")
    a("v_cmp_eq_u32 vcc, 0, v1")
    a("s_and_saveexec_b64 s[46:47], vcc")
    for r in range(4):
        a(f"buffer_atomic_add_f32 v{SUM+r}, v10, s[28:31], s44 offen offset:{8*r}")
        a(f"buffer_atomic_add_f32 v{SQ+r}, v10, s[28:31], s44 offen offset:{8*r+4}")
    S.stamp(); S.real(); S.flush()
    a.label(f"L_{name}_end")
    a("s_endpgm")
    return name, a.text(), kd(name, 192), f"; @launch kernel={name} grid=(256,1,1) block=(256,1,1) lds={LDS}"

def mfma16a(a, d, x, y):
    a(f"v_mfma_f32_16x16x32_bf16 a[{d}:{d+3}], {vr(x,4)}, {vr(y,4)}, a[{d}:{d+3}]")

def gen_mlp(which, layer):
    name = f"mlp{which}_{layer}_kernel"
    a = Asm(); header(a, name)
    norm = which == 1
    NW = 8 if norm else int(os.environ.get("K5NW", "4"))
    U = 2 if norm else int(os.environ.get("K5U", "4"))
    RING = U * 4096
    TAB = NW * RING
    NWG = 216 if norm else 256
    WSTR = 3456 if norm else 4096
    WBYTES = 2048 * 1728 * 2
    XDT = 65536 if norm else 55296
    XOFF = X1T_OFF if norm else GF_OFF
    if NW == 8: own_dts = lambda w: (0, 1, 2) if w < 4 else (3, 4)
    else: own_dts = lambda w: (0, 1, 2, 3, 4)
    MT = 3 if NW == 8 else 5
    NS = NW - 1
    own_base = []; off = 0
    for w in range(NW):
        own_base.append(off); off += NS * len(own_dts(w)) * 1024
    REDSZ = off
    TR = REDSZ + 1024
    LDS = max(TAB + NW * 2048, TR + 4 * 2560)
    a(f"s_cmp_ge_u32 s2, {NWG}")
    a(f"s_cbranch_scc1 L_{name}_end")
    S = Stamper(a, 2 + which + 5*layer, 8); S.real(); S.stamp()
    a(f"s_load_dwordx4 s[4:7], s[0:1], {48 if norm else 64}")
    a(f"s_load_dwordx2 s[12:13], s[0:1], 96")
    if not norm:
        a(f"s_load_dwordx2 s[8:9], s[0:1], 80")
    a("v_lshrrev_b32 v1, 6, v0")
    a("v_and_b32 v0, 63, v0")
    a("v_readfirstlane_b32 s32, v1")
    if norm:
        a("s_and_b32 s33, s2, 7")
        a(f"s_mul_i32 s33, s33, {NWG//8}")
        a("s_lshr_b32 s34, s2, 3")
        a("s_add_u32 s33, s33, s34")
        a("s_lshr_b32 s34, s33, 3")
        a("s_and_b32 s33, s33, 7")
        a(f"s_load_dwordx2 s[8:9], s[0:1], 64")
    else:
        a("s_and_b32 s34, s2, 7")
        a("s_lshr_b32 s33, s2, 3")
        a("s_and_b32 s33, s33, 3")
        a("s_lshl_b32 s33, s33, 3")
        a("s_add_u32 s34, s34, s33")
        a("s_lshr_b32 s33, s2, 5")
        a(f"s_load_dwordx2 s[10:11], s[0:1], 8")
    a("v_and_b32 v1, 15, v0")
    a("v_lshrrev_b32 v2, 4, v0")
    a("v_lshlrev_b32 v3, 4, v0")
    if norm:
        a("s_lshl_b32 s35, s32, 3")
        a("s_mov_b32 s36, 8")
    elif NW == 8:
        a("s_mul_i32 s35, s32, 7")
        a("s_min_u32 s35, s35, 48")
        a("s_cmp_ge_u32 s32, 6")
        a("s_cselect_b32 s36, 6, 7")
    else:
        a("s_mul_i32 s35, s32, 14")
        a("s_min_u32 s35, s35, 41")
        a("s_cmp_ge_u32 s32, 2")
        a("s_cselect_b32 s36, 13, 14")
    a("v_lshrrev_b32 v10, 3, v0")
    a("v_lshrrev_b32 v11, 1, v10")
    a("v_and_b32 v11, 3, v11")
    a("v_lshlrev_b32 v11, 1, v11")
    a("v_and_b32 v12, 7, v0")
    a("v_xor_b32 v12, v12, v11")
    a(f"s_movk_i32 s38, {WSTR}")
    a("v_mul_lo_u32 v5, v10, s38")
    a("v_lshl_add_u32 v44, v12, 4, v5")
    for jj in range(1, 4): a(f"v_add_u32 v{44+jj}, {jj*(8*WSTR-1024)}, v44")
    for dt in range(1, 5): a(f"v_add_u32 v{19+dt}, {dt*XDT}, v3")
    a(f"s_mul_i32 s40, s35, {32*WSTR}")
    a("s_lshl_b32 s41, s34, 7")
    a("s_add_u32 s40, s40, s41")
    a(f"s_mul_i32 s41, s33, {5*XDT}")
    a("s_lshl_b32 s42, s35, 10")
    a("s_add_u32 s41, s41, s42")
    a(f"s_add_u32 s41, s41, {XOFF}")
    a(f"s_sub_u32 s49, s36, {U}")
    a(f"s_mul_i32 s42, s32, {RING}")
    a("s_and_b32 s52, s32, 3")
    a("s_lshr_b32 s53, s32, 2")
    a("s_waitcnt lgkmcnt(0)")
    srd(a, 20, 4, 5, WBYTES)
    srd(a, 28, 12, 13, WS_SIZE)
    XR = 48
    XN = XR + 20 * U
    WF = XN + (40 if norm else 0)
    TT = WF + 32
    NV = max(TT + (16 if norm else 0), 176)
    TMP = 16
    TB = 36
    EB = 24
    if norm:
        a("s_lshl_b32 s37, s32, 11")
        a(f"s_add_u32 s37, s37, {ST_OFF}")
        a("v_lshlrev_b32 v4, 3, v0")
        for i2 in range(4):
            a(f"buffer_load_dwordx2 {vr(TB+2*i2,2)}, v4, s[28:31], s37 offen offset:{512*i2}")
    def w_ops(slot):
        ops = []
        for jj in range(4):
            op = [f"s_mov_b32 m0, s{64+slot}"] if jj == 0 else []
            if jj == 0: op.append("s_nop 0")
            op.append(f"buffer_load_dwordx4 v{44+jj}, s[20:23], s40 offen offset:{jj*1024} lds")
            ops.append(op)
        ops[-1] += [f"s_add_u32 s40, s40, {32*WSTR}"]
        return ops
    def x_ops(slot):
        ops = []
        for dt in range(5):
            va = 3 if dt == 0 else 19 + dt
            ops.append([f"buffer_load_dwordx4 {vr(XR+20*slot+4*dt,4)}, v{va}, s[60:63], s41 offen"])
        ops[-1] += ["s_add_u32 s41, s41, 1024"]
        return ops
    lab = [0]
    def emit_ops(ops, guard=False):
        for op in ops:
            for x in op: a(x)
    srd(a, 60, 12, 13, WS_SIZE)
    for u in range(U): a(f"s_add_u32 s{64+u}, s42, {u*4096}")
    emit_ops(w_ops(0)); emit_ops(x_ops(0))
    srd(a, 24, 6, 7, 1728 * 2 if norm else 2048 * 2)
    if not norm:
        if layer == 0:
            a(f"s_add_u32 s8, s12, {hex(X2_OFF)}")
            a(f"s_addc_u32 s9, s13, 0")
        srd(a, 16, 8, 9, XBYTES)
    a("s_lshl_b32 s43, s34, 7")
    a("s_lshl_b32 s44, s52, 5")
    a("s_add_u32 s43, s43, s44")
    a("v_lshlrev_b32 v10, 3, v2")
    a(f"buffer_load_dwordx2 {vr(EB,2)}, v10, s[24:27], s43 offen")
    NE = 1
    if not norm:
        a("s_mul_i32 s43, s33, 327680")
        a("s_mul_i32 s44, s53, 196608")
        a("s_add_u32 s43, s43, s44")
        a("s_lshl_b32 s44, s34, 11")
        a("s_add_u32 s43, s43, s44")
        a("s_lshr_b32 s44, s52, 1")
        a("s_lshl_b32 s44, s44, 10")
        a("s_add_u32 s43, s43, s44")
        a("s_and_b32 s44, s52, 1")
        a("s_lshl_b32 s44, s44, 3")
        a("s_add_u32 s43, s43, s44")
        a(f"s_add_u32 s43, s43, {X1T_OFF}")
        for j in range(MT):
            a(f"buffer_load_dwordx2 {vr(EB+2+2*j,2)}, v3, s[28:31], s43 offen")
            if j < MT - 1: a("s_add_u32 s43, s43, 65536")
        NE = 1 + MT
    for u in range(1, U):
        emit_ops(w_ops(u)); emit_ops(x_ops(u))
    S.stamp()
    a("v_lshrrev_b32 v10, 2, v1")
    a("v_lshl_add_u32 v10, v2, 2, v10")
    a("v_lshrrev_b32 v11, 1, v10")
    a("v_and_b32 v11, 3, v11")
    a("v_and_b32 v12, 3, v1")
    a("v_lshlrev_b32 v12, 3, v12")
    a("v_lshl_add_u32 v12, v10, 7, v12")
    a("v_add_u32 v12, s42, v12")
    for nt in range(4):
        a(f"v_xor_b32 v13, {nt}, v11")
        a(f"v_lshl_add_u32 v{6+nt}, v13, 5, v12")
    for r in range(80): a(f"v_accvgpr_write_b32 a{r}, 0")
    a("s_mov_b32 s46, 0xffff0000")
    if norm:
        a(f"s_waitcnt vmcnt({9*U+NE})")
        a("s_lshl_b32 s43, s32, 11")
        a(f"s_add_u32 s43, s43, {TAB}")
        a("v_lshlrev_b32 v14, 2, v0")
        a("v_add_u32 v14, s43, v14")
        a("v_lshlrev_b32 v15, 4, v2")
        a("v_add_u32 v15, s43, v15")
        a(f"s_mov_b32 s47, {hex(f2u(1.0/640))}")
        a(f"s_mov_b32 s48, {hex(f2u(1e-5))}")
        for i2 in range(4):
            m = TB + 2 * i2; q = m + 1
            a(f"v_mul_f32 v{m}, s47, v{m}")
            a(f"v_mul_f32 v{q}, s47, v{q}")
            a(f"v_fma_f32 v{q}, -v{m}, v{m}, v{q}")
            a(f"v_max_f32 v{q}, 0, v{q}")
            a(f"v_add_f32 v{TMP}, s48, v{q}")
            a(f"v_rsq_f32 v{TMP}, v{TMP}")
            a("s_nop 0")
            a(f"v_mul_f32 v{q}, v{q}, v{TMP}")
            a(f"v_fma_f32 v{q}, v{q}, v{TMP}, s48")
            a(f"v_rsq_f32 v{q}, v{q}")
            a("s_nop 0")
            a(f"v_mul_f32 v{q}, v{q}, v{TMP}")
            a(f"v_mul_f32 v{m}, v{m}, v{q}")
            a(f"v_sub_f32 v{m}, 0, v{m}")
            a(f"ds_write_b32 v14, v{q} offset:{256*i2}")
            a(f"ds_write_b32 v14, v{m} offset:{1024+256*i2}")
        a("s_waitcnt lgkmcnt(0)")
    def wreads(slot, fs):
        for nt in range(4):
            for half in range(2):
                a(f"ds_read_b64_tr_b16 {vr(WF+16*fs+4*nt+2*half,2)}, v{6+nt} offset:{slot*4096+half*2048}")
    def treads():
        a(f"ds_read_b128 {vr(TT,4)}, v15")
        a(f"ds_read_b128 {vr(TT+4,4)}, v15 offset:64")
        a(f"ds_read_b128 {vr(TT+8,4)}, v15 offset:1024")
        a(f"ds_read_b128 {vr(TT+12,4)}, v15 offset:1088")
        a("v_add_u32 v15, 128, v15")
    def norm_ops(slot, fs):
        ops = []
        for dt in range(5):
            for dw in range(4):
                r = XR + 20 * slot + 4 * dt + dw
                e = (dw % 2) * 2 + (dw // 2) * 4
                t0 = TMP + 2 * (dw % 2); t1 = t0 + 1
                ops.append(f"v_lshlrev_b32 v{t0}, 16, v{r}")
                ops.append(f"v_and_b32 v{t1}, s46, v{r}")
                ops.append(f"v_fma_f32 v{t0}, v{t0}, v{TT+e}, v{TT+8+e}")
                ops.append(f"v_fma_f32 v{t1}, v{t1}, v{TT+e+1}, v{TT+8+e+1}")
                ops.append(f"v_cvt_pk_bf16_f32 v{XN+20*fs+4*dt+dw}, v{t0}, v{t1}")
        return ops
    def mfma_list(slot, fs):
        l = []
        for dt in range(5):
            x = (XN + 20 * fs + 4 * dt) if norm else (XR + 20 * slot + 4 * dt)
            for nt in range(4):
                w = WF + 16 * fs + 4 * nt
                t = 4 * (dt * 4 + nt)
                l.append(f"v_mfma_f32_16x16x32_bf16 a[{t}:{t+3}], {vr(w,4)}, {vr(x,4)}, a[{t}:{t+3}]")
        return l
    def upd_loads():
        a("s_sub_i32 s49, s49, 1")
        a("s_cmp_gt_i32 s49, 0")
        a("s_cselect_b32 s22, s22, 0")
        a("s_cselect_b32 s62, s62, 0")
    def norm_step(nu, nfs, ml):
        treads()
        wreads(nu, nfs)
        ops = norm_ops(nu, nfs)
        xo = x_ops(nu); wo = w_ops(nu)
        k = 0
        for m in ml[:3]: a(m); k += 1
        a("s_waitcnt lgkmcnt(8)")
        for idx, op in enumerate(ops):
            a(op)
            if idx % 6 == 5 and k < len(ml):
                a(ml[k]); k += 1
            if idx % 20 == 19:
                emit_ops([xo.pop(0)], True)
            if idx == 30: a("s_waitcnt lgkmcnt(0)")
            if idx in (40, 55, 70, 85):
                emit_ops([wo.pop(0)], True)
        while k < len(ml): a(ml[k]); k += 1
        assert not xo and not wo
        upd_loads()
    def wait_vm(n):
        a(f"s_waitcnt vmcnt({n}) lgkmcnt(0)")
    if NW == 8 and os.environ.get("K4PRIO", "1") != "0":
        a("s_cmp_lt_u32 s32, 4")
        a(f"s_cbranch_scc1 L_{name}_np")
        a("s_setprio 1")
        a.label(f"L_{name}_np")
    a(f"s_waitcnt vmcnt({9*(U-1)+NE})")
    if norm:
        norm_step(0, 0, [])
    else:
        wreads(0, 0)
    S.stamp()
    a.label(f"L_{name}_loop")
    for u in range(U):
        fs = u % 2; nu = (u + 1) % U; nfs = 1 - fs
        if norm:
            if u == U - 1:
                a("s_cmp_eq_u32 s36, 1")
                a(f"s_cbranch_scc1 L_{name}_last")
            wait_vm(9*(U-1))
            norm_step(nu, nfs, mfma_list(u, fs))
        else:
            wait_vm(9*(U-2))
            wreads(nu, nfs)
            xo = x_ops(u); wo = w_ops(u)
            for idx, m in enumerate(mfma_list(u, fs)):
                a(m)
                if idx % 4 == 3: emit_ops([xo.pop(0)], True)
                if idx % 4 == 1 and wo: emit_ops([wo.pop(0)], True)
            assert not xo and not wo
            upd_loads()
        if NW == 8 and os.environ.get("K4PRIO", "1") != "0":
            a(f"s_cmp_lg_u32 s36, {int(os.environ.get('K4OFF', '3'))}")
            lab[0] += 1
            a(f"s_cbranch_scc1 L_{name}_g{lab[0]}")
            a("s_setprio 0")
            a.label(f"L_{name}_g{lab[0]}")
        a("s_sub_u32 s36, s36, 1")
        a("s_cmp_eq_u32 s36, 0")
        if u < U - 1: a(f"s_cbranch_scc1 L_{name}_done")
        else: a(f"s_cbranch_scc0 L_{name}_loop")
    if norm:
        a(f"s_branch L_{name}_done")
        a.label(f"L_{name}_last")
        a("s_waitcnt lgkmcnt(0)")
        for m in mfma_list(U - 1, (U - 1) % 2): a(m)
    a.label(f"L_{name}_done")
    S.stamp()
    a("s_waitcnt vmcnt(0) lgkmcnt(0)")
    if norm:
        srd(a, 56, 8, 9, WBYTES)
        a("s_lshr_b32 s43, s2, 3")
        a("s_lshl_b32 s43, s43, 3")
        a("s_add_u32 s43, s43, s32")
        a(f"s_mul_i32 s43, s43, {8*4096}")
        a("s_and_b32 s44, s2, 7")
        a("s_lshl_b32 s44, s44, 7")
        a("s_add_u32 s43, s43, s44")
        a("v_lshrrev_b32 v10, 3, v0")
        a("v_lshlrev_b32 v10, 12, v10")
        a("v_and_b32 v11, 7, v0")
        a("v_lshl_add_u32 v10, v11, 4, v10")
        for j in range(4):
            a(f"buffer_load_dwordx4 v[20:23], v10, s[56:59], s43 offen offset:{1024*j}")
    elif layer == 0:
        srd(a, 56, 10, 11, 819200)
        per = 819200 // (32 * NW)
        a("s_lshr_b32 s43, s2, 3")
        a(f"s_mul_i32 s43, s43, {NW}")
        a("s_add_u32 s43, s43, s32")
        a(f"s_mul_i32 s43, s43, {per}")
        for j in range((per + 1023) // 1024):
            if j == 4: a("s_add_u32 s43, s43, 4096")
            a(f"buffer_load_dwordx4 v[20:23], v3, s[56:59], s43 offen offset:{min(1024*j, per-1024) - (4096 if j >= 4 else 0)}")
    a("s_barrier")
    OWN = 88
    for o in range(NW):
        dts = own_dts(o); nt = o % 4
        a(f"s_cmp_eq_u32 s32, {o}")
        a(f"s_cbranch_scc1 L_{name}_own{o}")
        a(f"s_sub_u32 s43, s32, {o+1}")
        a(f"s_and_b32 s43, s43, {NW-1}")
        a(f"s_mul_i32 s43, s43, {len(dts)*1024}")
        a(f"s_add_u32 s43, s43, {own_base[o]}")
        a("v_add_u32 v10, s43, v3")
        for j, dt in enumerate(dts):
            t = 4 * (dt * 4 + nt)
            a(f"ds_write_b128 v10, a[{t}:{t+3}] offset:{j*1024}")
        a(f"s_branch L_{name}_nx{o}")
        a.label(f"L_{name}_own{o}")
        for j, dt in enumerate(dts):
            for r in range(4):
                a(f"v_accvgpr_read_b32 v{OWN+4*j+r}, a{4*(dt*4+nt)+r}")
        for r in range(4 * len(dts), 4 * MT): a(f"v_mov_b32 v{OWN+r}, 0")
        a(f"s_mov_b32 s54, {own_base[o]}")
        a(f"s_mov_b32 s55, {len(dts)*1024}")
        a.label(f"L_{name}_nx{o}")
    a("s_waitcnt lgkmcnt(0)")
    a("s_barrier")
    a("v_add_u32 v10, s54, v3")
    BI = 40
    a(f"v_lshlrev_b32 v{BI}, 16, v{EB}")
    a(f"v_and_b32 v{BI+1}, s46, v{EB}")
    a(f"v_lshlrev_b32 v{BI+2}, 16, v{EB+1}")
    a(f"v_and_b32 v{BI+3}, s46, v{EB+1}")
    if NW == 8: PRS = [108, 120, 132, 144, 156, 48, 60]
    else: PRS = [108, 128, 148]
    issued = 0; done = 0
    for sidx in range(NS):
        for j in range(MT):
            a(f"ds_read_b128 {vr(PRS[sidx]+4*j,4)}, v10 offset:{j*1024}")
        issued += 1
        if sidx < NS - 1: a("v_add_u32 v10, s55, v10")
        if (issued - done) * MT >= 12 and sidx < NS - 1:
            a(f"s_waitcnt lgkmcnt({(issued-done-1)*MT})")
            for r in range(4 * MT): a(f"v_add_f32 v{OWN+r}, v{OWN+r}, v{PRS[done]+r}")
            done += 1
    while done < NS:
        a(f"s_waitcnt lgkmcnt({(NS-done-1)*MT})")
        for r in range(4 * MT): a(f"v_add_f32 v{OWN+r}, v{OWN+r}, v{PRS[done]+r}")
        done += 1
    S.stamp()
    E0 = 112
    if norm:
        c1 = -2.0 * math.log2(math.e) * 0.7978845608028654
        c2 = c1 * 0.044715
        a(f"s_mov_b32 s47, {hex(f2u(c1))}")
        a(f"s_mov_b32 s48, {hex(f2u(c2))}")
        a("v_mov_b32 v44, s47")
        a(f"s_mul_i32 s43, s33, {5*55296}")
        a(f"s_mul_i32 s44, s53, {3*55296}")
        a("s_add_u32 s43, s43, s44")
        a("s_lshl_b32 s44, s34, 11")
        a("s_add_u32 s43, s43, s44")
        a("s_lshr_b32 s44, s52, 1")
        a("s_lshl_b32 s44, s44, 10")
        a("s_add_u32 s43, s43, s44")
        a("s_and_b32 s44, s52, 1")
        a("s_lshl_b32 s44, s44, 3")
        a("s_add_u32 s43, s43, s44")
        a(f"s_add_u32 s43, s43, {GF_OFF}")
        for j in range(MT):
            if NW == 8 and j == 2:
                a("s_cmp_lg_u32 s53, 0")
                a(f"s_cbranch_scc1 L_{name}_fin")
            for r in range(4):
                u = OWN + 4 * j + r
                a(f"v_add_f32 v{u}, v{u}, v{BI+r}")
            for r in range(4):
                u = OWN + 4 * j + r; t = E0 + r
                a(f"v_mul_f32 v{t}, v{u}, v{u}")
            for r in range(4):
                t = E0 + r
                a(f"v_fma_f32 v{t}, v{t}, s48, v44")
            for r in range(4):
                u = OWN + 4 * j + r; t = E0 + r
                a(f"v_mul_f32 v{t}, v{t}, v{u}")
            for r in range(4): a(f"v_exp_f32 v{E0+r}, v{E0+r}")
            for r in range(4): a(f"v_add_f32 v{E0+r}, 1.0, v{E0+r}")
            for r in range(4): a(f"v_rcp_f32 v{E0+r}, v{E0+r}")
            for r in range(4):
                u = OWN + 4 * j + r
                a(f"v_mul_f32 v{u}, v{u}, v{E0+r}")
            o = E0 + 6 + 2 * j
            a(f"v_cvt_pk_bf16_f32 v{o}, v{OWN+4*j}, v{OWN+4*j+1}")
            a(f"v_cvt_pk_bf16_f32 v{o+1}, v{OWN+4*j+2}, v{OWN+4*j+3}")
            a(f"buffer_store_dwordx2 {vr(o,2)}, v3, s[28:31], s43 offen")
            if j < MT - 1: a("s_add_u32 s43, s43, 55296")
    else:
        a("s_mul_i32 s43, s52, 2560")
        a(f"s_add_u32 s43, s43, {TR}")
        a("s_mul_i32 s44, s53, 96")
        a("s_add_u32 s44, s44, s43")
        a("v_mul_u32_u24 v10, 640, v2")
        a("v_lshl_add_u32 v10, v1, 1, v10")
        a("v_add_u32 v10, s44, v10")
        for j in range(MT):
            if NW == 8 and j == 2:
                a("s_cmp_lg_u32 s53, 0")
                a(f"s_cbranch_scc1 L_{name}_tr")
            for h in range(2):
                rr = EB + 2 + 2 * j + h
                a(f"v_lshlrev_b32 v{E0}, 16, v{rr}")
                a(f"v_and_b32 v{E0+1}, s46, v{rr}")
                u = OWN + 4 * j + 2 * h
                a(f"v_add_f32 v{u}, v{u}, v{BI+2*h}")
                a(f"v_add_f32 v{u+1}, v{u+1}, v{BI+2*h+1}")
                a(f"v_add_f32 v{E0}, v{E0}, v{u}")
                a(f"v_add_f32 v{E0+1}, v{E0+1}, v{u+1}")
                a(f"v_cvt_pk_bf16_f32 v{E0+2+h}, v{E0}, v{E0+1}")
                a(f"ds_write_b16 v10, v{E0+2+h} offset:{(2*h)*160 + 32*j}")
                a(f"ds_write_b16_d16_hi v10, v{E0+2+h} offset:{(2*h+1)*160 + 32*j}")
        a.label(f"L_{name}_tr")
        NCH = 2 if NW == 8 else 3
        LASTN = 16 if NW == 8 else 32
        a("s_lshl_b32 s44, s34, 6")
        a("s_lshl_b32 s45, s52, 4")
        a("s_add_u32 s44, s44, s45")
        a("s_mul_i32 s44, s44, 1280")
        a("s_mul_i32 s45, s33, 160")
        a("s_add_u32 s44, s44, s45")
        a("s_mov_b32 s47, 6554")
        a("s_movk_i32 s48, 1280")
        a("s_mul_i32 s45, s53, 80")
        a("v_add_u32 v12, s45, v0")
        a("v_lshlrev_b32 v11, 4, v12")
        a("v_add_u32 v11, s43, v11")
        for j in range(NCH):
            if j: a("v_add_u32 v12, 64, v12")
            a("v_mul_lo_u32 v13, v12, s47")
            a("v_lshrrev_b32 v13, 16, v13")
            a("v_mul_u32_u24 v14, 10, v13")
            a("v_sub_u32 v14, v12, v14")
            a("v_mul_lo_u32 v13, v13, s48")
            a(f"v_lshl_add_u32 v{16+j}, v14, 4, v13")
        a("s_waitcnt lgkmcnt(0)")
        if NW == 8: a("s_barrier")
        for j in range(NCH):
            a(f"ds_read_b128 {vr(120+4*j,4)}, v11 offset:{1024*j}")
        a("s_waitcnt lgkmcnt(0)")
        for j in range(NCH):
            if j == NCH - 1:
                a(f"v_cmp_gt_u32 vcc, {LASTN}, v0")
                a("s_and_saveexec_b64 s[46:47], vcc")
            a(f"buffer_store_dwordx4 {vr(120+4*j,4)}, v{16+j}, s[16:19], s44 offen")
    a.label(f"L_{name}_fin")
    S.stamp(); S.real(); S.flush()
    a.label(f"L_{name}_end")
    a("s_endpgm")
    kdt = kd(name, NV + 80).replace(f".amdhsa_accum_offset {NV+80}", f".amdhsa_accum_offset {NV}")
    return name, a.text(), kdt, f"; @launch kernel={name} grid=({NWG},1,1) block=({64*NW},1,1) lds={LDS}"

if "--stamps" in sys.argv:
    STAMPS = True; sys.argv.remove("--stamps")
KERNELS = []
ATT = gen_attn()
M1 = gen_mlp(1, 0)
for L in range(2):
    KERNELS += [gen_qkv(L), ATT[L], M1, gen_mlp(2, L)]

def emit(kernels, path, order=None):
    launches = [k[3] for k in kernels] if order is None else order
    hdr = open("interleave_layers__grouped_kv_mqa__mixer_token_mlp__prompt.s.ref").read().split("; Override")[0]
    out = hdr + "\n".join(launches) + "\n"
    out += '.amdgcn_target "amdgcn-amd-amdhsa--gfx950"\n.text\n'
    seen = set()
    for k in kernels:
        if k[0] in seen: continue
        seen.add(k[0]); out += k[1]
    out += 'L_text_end:\n'
    out += '.section .rodata,"a"\n'
    seen = set()
    for k in kernels:
        if k[0] in seen: continue
        seen.add(k[0]); out += k[2]
    open(path, "w").write(out)

if __name__ == "__main__":
    emit(KERNELS, sys.argv[1] if len(sys.argv) > 1 else "k.s")
```

```python
import struct, sys, math, os

def f2u(x): return struct.unpack("<I", struct.pack("<f", x))[0]

QT_OFF   = 0
KV_OFF   = 0x300000
OF_OFF   = 0x400000
X1T_OFF  = 0x700000
ST_OFF   = 0xA00000
GF_OFF   = 0xB00000
X2_OFF   = 0xE00000
CNT_OFF  = 0xA80000
WS_SIZE  = 0x10000000
KVT = 2624
XBYTES = 2048 * 640 * 2

class Asm:
    def __init__(self): self.l = []
    def __call__(self, s):
        for x in s.strip("\n").split("\n"):
            self.l.append("    " + x.strip())
    def label(self, n): self.l.append(n + ":")
    def raw(self, s): self.l.append(s)
    def text(self): return "\n".join(self.l) + "\n"

def vr(b, n=1): return f"v{b}" if n == 1 else f"v[{b}:{b+n-1}]"
def sr(b, n=1): return f"s{b}" if n == 1 else f"s[{b}:{b+n-1}]"

def srd(a, d, lo, hi, nbytes):
    a(f"s_mov_b32 s{d}, s{lo}")
    a(f"s_and_b32 s{d+1}, s{hi}, 0xffff")
    a(f"s_mov_b32 s{d+2}, {hex(nbytes)}")
    a(f"s_mov_b32 s{d+3}, 0x00020000")

def header(a, name):
    a.raw(f".globl {name}\n.p2align 8\n.type {name},@function\n{name}:")

def kd(name, nv, ns=102):
    acc = (nv + 3) // 4 * 4
    return f""".p2align 6
.amdhsa_kernel {name}
  .amdhsa_next_free_vgpr {nv}
  .amdhsa_next_free_sgpr {ns}
  .amdhsa_accum_offset {acc}
  .amdhsa_group_segment_fixed_size 0
  .amdhsa_kernarg_size 104
  .amdhsa_user_sgpr_count 2
  .amdhsa_user_sgpr_kernarg_segment_ptr 1
  .amdhsa_system_sgpr_workgroup_id_x 1
.end_amdhsa_kernel
"""

STAMPS = False
DBG_OFF = 0x8000000
class Stamper:
    def __init__(self, a, kidx, maxw): self.a = a; self.n = 0; self.kidx = kidx; self.maxw = maxw
    def stamp(self):
        if not STAMPS: return
        self.a(f"s_memtime s[{72+2*self.n}:{73+2*self.n}]"); self.n += 1
    def real(self):
        if not STAMPS: return
        self.a(f"s_memrealtime s[{72+2*self.n}:{73+2*self.n}]"); self.n += 1
    def flush(self, wave_s="s32", srd_="s[28:31]"):
        if not STAMPS: return
        a = self.a
        a("s_mov_b64 exec, -1")
        a("s_waitcnt lgkmcnt(0) vmcnt(0)")
        a(f"s_mul_i32 s58, s2, {self.maxw}")
        a(f"s_add_u32 s58, s58, {wave_s}")
        a("s_lshl_b32 s58, s58, 6")
        a(f"s_add_u32 s58, s58, {DBG_OFF + self.kidx * 0x100000}")
        a("v_mov_b32 v0, 0")
        for i in range(self.n):
            a(f"v_mov_b32 v1, s{72+2*i}")
            a(f"buffer_store_dword v1, v0, {srd_}, s58 offen offset:{4*i}")
        a("s_waitcnt vmcnt(0)")

_pfn = [0]
def code_prefetch(a, nw, vaddr, vdst):
    if os.environ.get("CODEPF", "1") != "1": return
    _pfn[0] += 1
    L = f"L_pc_ref{_pfn[0]}"
    a("s_getpc_b64 s[90:91]")
    a.label(L)
    a(f"s_sub_u32 s90, s90, {L} - L_text_start")
    a("s_subb_u32 s91, s91, 0")
    a("s_lshr_b32 s92, s2, 3")
    a(f"s_mul_i32 s92, s92, {nw}")
    a("s_add_u32 s92, s92, s32")
    a("s_lshl_b32 s92, s92, 9")
    a("s_min_u32 s92, s92, L_text_end - L_text_start - 512")
    a("s_add_u32 s90, s90, s92")
    a("s_addc_u32 s91, s91, 0")
    a(f"v_lshlrev_b32 v{vaddr}, 3, v0")
    a(f"global_load_dwordx2 v[{vdst}:{vdst+1}], v{vaddr}, s[90:91]")

def mfma16(a, d, x, y, c=None):
    c = vr(d, 4) if c is None else c
    a(f"v_mfma_f32_16x16x32_bf16 {vr(d,4)}, {vr(x,4)}, {vr(y,4)}, {c}")

def gen_qkv(layer):
    name = f"qkv{layer}_kernel"
    a = Asm(); header(a, name)
    WB = 0; WST = 20480
    XB = 61440; XST = 16384
    WKV = 110592
    MISC = 136192
    LDS = MISC + 512
    a(f"s_cmp_ge_u32 s2, 256")
    a(f"s_cbranch_scc1 L_{name}_end")
    S = Stamper(a, 0 + 5*layer, 4); S.real(); S.stamp()
    a(f"s_load_dwordx2 s[4:5], s[0:1], 0")
    a(f"s_load_dwordx4 s[8:11], s[0:1], 16")
    a(f"s_load_dwordx2 s[6:7], s[0:1], 8")
    a(f"s_load_dwordx2 s[12:13], s[0:1], 96")
    a("v_lshrrev_b32 v1, 6, v0")
    a("v_and_b32 v0, 63, v0")
    a("v_readfirstlane_b32 s32, v1")
    a("s_and_b32 s33, s2, 7")
    a("s_lshr_b32 s34, s2, 3")
    a("s_and_b32 s34, s34, 3")
    a("s_lshl_b32 s34, s34, 3")
    a("s_add_u32 s33, s33, s34")
    a("s_lshr_b32 s34, s2, 5")
    a("s_waitcnt lgkmcnt(0)")
    if layer == 1:
        a(f"s_add_u32 s4, s12, {hex(X2_OFF)}")
        a(f"s_addc_u32 s5, s13, 0")
    srd(a, 16, 4, 5, XBYTES)
    srd(a, 20, 6, 7, 819200)
    a("s_cmp_eq_u32 s34, 0")
    a("s_cselect_b32 s14, s8, s10")
    a("s_cselect_b32 s15, s9, s11")
    srd(a, 24, 14, 15, 25600)
    srd(a, 28, 12, 13, WS_SIZE)
    a("v_and_b32 v1, 15, v0")
    a("v_lshrrev_b32 v2, 4, v0")
    a("s_mul_i32 s35, s32, 320")
    a("s_mul_i32 s36, s34, 160")
    a("s_mov_b32 s37, 6554")
    a("s_movk_i32 s38, 1280")
    for jj in range(5):
        a(f"v_add_u32 v10, s35, v0")
        if jj: a(f"v_add_u32 v10, {64*jj}, v10")
        a("v_mul_lo_u32 v11, v10, s37")
        a("v_lshrrev_b32 v11, 16, v11")
        a("v_mul_u32_u24 v12, 10, v11")
        a("v_sub_u32 v12, v10, v12")
        a("v_mul_lo_u32 v11, v11, s38")
        a("v_lshl_add_u32 v11, v12, 4, v11")
        a(f"v_add_u32 v{4+jj}, s36, v11")
    a("v_lshrrev_b32 v10, 3, v0")
    a("v_and_b32 v11, 7, v0")
    a("s_lshl_b32 s39, s32, 4")
    for rh, dst in ((0, 9), (1, 3)):
        a(f"v_add_u32 v12, {8*rh}, v10")
        a("v_lshrrev_b32 v13, 1, v12")
        a("v_and_b32 v13, 7, v13")
        a("v_xor_b32 v13, v13, v11")
        a("v_add_u32 v12, s39, v12")
        a("v_mul_lo_u32 v12, v12, s38")
        a(f"v_lshl_add_u32 v{dst}, v13, 4, v12")
    a("v_lshlrev_b32 v14, 4, v0")
    a("s_mul_i32 s40, s33, 81920")
    a("s_mul_i32 s41, s32, 5120")
    a("s_lshl_b32 s42, s32, 12")
    a("s_cmp_ge_u32 s34, 2")
    a(f"s_cbranch_scc1 L_{name}_nokv")
    for it in range(7):
        a(f"s_add_u32 s43, s32, {4*it}")
        a("s_min_u32 s43, s43, 24")
        a("s_lshl_b32 s43, s43, 10")
        a(f"s_add_u32 s44, s43, {WKV}")
        a("s_mov_b32 m0, s44")
        a("s_nop 0")
        a("buffer_load_dwordx4 v14, s[24:27], s43 offen lds")
    a.label(f"L_{name}_nokv")
    def stage_ops(st):
        buf = st % 3
        ops = []
        for jj in range(5):
            ops.append([f"s_add_u32 s44, s41, {WB + buf*WST + jj*1024}", "s_mov_b32 m0, s44",
                        f"s_mov_b32 s43, {st*128*1280}", f"buffer_load_dwordx4 v{4+jj}, s[20:23], s43 offen lds"])
        for kb in range(2):
            for rh, vo in ((0, 9), (1, 3)):
                ops.append([f"s_add_u32 s44, s42, {XB + buf*XST + kb*2048 + rh*1024}", "s_mov_b32 m0, s44",
                            f"s_add_u32 s43, s40, {st*256 + kb*128}", f"buffer_load_dwordx4 v{vo}, s[16:19], s43 offen lds"])
        return ops
    def issue_stage(st):
        for op in stage_ops(st):
            for x in op: a(x)
    for st in range(2): issue_stage(st)
    code_prefetch(a, 4, 154, 152)
    S.stamp()
    a("v_lshrrev_b32 v10, 1, v1")
    a("v_and_b32 v10, 7, v10")
    a("v_lshrrev_b32 v11, 1, v2")
    a("v_and_b32 v12, 1, v2")
    a("v_lshlrev_b32 v13, 7, v1")
    a("v_lshl_add_u32 v13, v12, 3, v13")
    a("v_add_u32 v13, s42, v13")
    a(f"v_add_u32 v13, {XB}, v13")
    for h in range(2):
        for sec in range(2):
            a(f"v_add_u32 v15, {4*h + 2*sec}, v11")
            a("v_xor_b32 v15, v15, v10")
            a(f"v_lshl_add_u32 v{16 + 2*h + sec}, v15, 4, v13")
    a("v_lshrrev_b32 v10, 2, v1")
    a("v_lshl_add_u32 v10, v2, 2, v10")
    a("v_and_b32 v11, 3, v1")
    a("v_lshlrev_b32 v11, 3, v11")
    a("v_mul_u32_u24 v12, 160, v10")
    a("v_add_u32 v20, v12, v11")
    a("s_lshl_b32 s43, s32, 5")
    a("v_add_u32 v21, s43, v20")
    a("v_mul_u32_u24 v12, 40, v10")
    a("v_add_u32 v12, v12, v11")
    a(f"v_add_u32 v22, {WKV}, v12")
    ONES = 24
    ACC = 28
    CS4 = 56; CS5 = 60; CS6 = 64; CSO = 68; RS = 72; GR = 76
    FR = 80
    for r in range(4): a(f"v_mov_b32 v{ONES+r}, 0x3f803f80")
    for r in range(ACC, 80): a(f"v_mov_b32 v{r}, 0")
    def reads(st, ks4, fs, kv):
        buf = st % 3
        b = FR + 36 * fs
        kb = ks4 // 2; h = ks4 % 2
        xo = buf * XST + kb * 2048
        a(f"ds_read_b64 {vr(b,2)}, v{16+2*h} offset:{xo}")
        a(f"ds_read_b64 {vr(b+2,2)}, v{17+2*h} offset:{xo}")
        for nt in range(5):
            for half in range(2):
                off = WB + buf * WST + (32 * ks4 + 16 * half) * 160 + 32 * nt
                a(f"ds_read_b64_tr_b16 {vr(b+4+4*nt+2*half,2)}, v20 offset:{off}")
        for half in range(2):
            off = WB + buf * WST + (32 * ks4 + 16 * half) * 160
            a(f"ds_read_b64_tr_b16 {vr(b+32+2*half,2)}, v21 offset:{off}")
        if kv:
            for t in range(2):
                for half in range(2):
                    off = (st * 128 + 32 * ks4 + 16 * half) * 40 + 32 * t
                    a(f"ds_read_b64_tr_b16 {vr(b+24+4*t+2*half,2)}, v22 offset:{off}")
    def mfmas(fs, kv, pend):
        b = FR + 36 * fs
        l = [(ACC + 4 * nt, b + 4 + 4 * nt, b) for nt in range(5)]
        l += [(CS4, b + 4 + 16, ONES), (CSO, b + 32, ONES), (RS, ONES, b), (GR, b, b)]
        if kv:
            l += [(ACC + 20, b + 24, b), (ACC + 24, b + 28, b), (CS5, b + 24, ONES), (CS6, b + 28, ONES)]
        for idx, (d, x, y) in enumerate(l):
            mfma16(a, d, x, y)
            if idx % 3 == 1 and pend:
                for x_ in pend.pop(0): a(x_)
    def main_loop(kv):
        waits = [9, 9, 9, 9, 0]
        for st in range(5):
            a(f"s_waitcnt vmcnt({waits[st]})")
            a("s_barrier")
            if st == 0:
                if kv: S.stamp(); S.n -= 1
                else: S.stamp()
            pend = stage_ops(st + 2) if st + 2 < 5 else []
            reads(st, 0, 0, kv)
            for ks4 in range(4):
                a("s_waitcnt lgkmcnt(0)")
                if ks4 < 3: reads(st, ks4 + 1, (ks4 + 1) % 2, kv)
                mfmas(ks4 % 2, kv, pend)
            assert not pend
    a("s_cmp_ge_u32 s34, 2")
    a(f"s_cbranch_scc1 L_{name}_loopq")
    main_loop(True)
    a(f"s_branch L_{name}_epi")
    a.label(f"L_{name}_loopq")
    main_loop(False)
    a.label(f"L_{name}_epi")
    S.stamp()
    a("s_nop 7")
    a("s_nop 7")
    a("v_lshlrev_b32 v10, 4, v2")
    a("s_lshl_b32 s43, s32, 6")
    a(f"s_add_u32 s43, s43, {MISC}")
    a("v_add_u32 v11, s43, v10")
    a("v_cmp_eq_u32 vcc, 0, v1")
    a("s_and_saveexec_b64 s[46:47], vcc")
    a(f"ds_write_b128 v11, {vr(CSO,4)}")
    a("s_mov_b64 exec, s[46:47]")
    a("v_and_b32 v12, 3, v1")
    a(f"v_mov_b32 v13, v{GR}")
    for r in range(1, 4):
        a(f"v_cmp_eq_u32 vcc, {r}, v12")
        a("s_nop 1")
        a(f"v_cndmask_b32 v13, v13, v{GR+r}, vcc")
    a("v_lshrrev_b32 v12, 2, v1")
    a("v_lshl_add_u32 v12, v12, 4, v1")
    a("v_lshlrev_b32 v12, 2, v12")
    a("ds_bpermute_b32 v13, v12, v13")
    a("s_waitcnt lgkmcnt(0)")
    a("s_barrier")
    a(f"v_add_u32 v11, {MISC}, v10")
    CSX = FR
    for nt in range(4): a(f"ds_read_b128 {vr(CSX+4*nt,4)}, v11 offset:{64*nt}")
    a(f"s_mov_b32 s43, {hex(f2u(1.0/640))}")
    a(f"v_mul_f32 v14, s43, v{RS}")
    a("v_mul_f32 v13, s43, v13")
    a("v_fma_f32 v13, -v14, v14, v13")
    a("v_max_f32 v13, 0, v13")
    a(f"v_add_f32 v13, {hex(f2u(1e-5))}, v13")
    a("v_rsq_f32 v15, v13")
    a("s_nop 0")
    qs = (20 ** -0.5) * math.log2(math.e)
    a(f"v_mul_f32 v23, {hex(f2u(qs))}, v15")
    a("s_waitcnt lgkmcnt(0)")
    a("s_lshl_b32 s43, s33, 2")
    a("s_add_u32 s43, s43, s32")
    a("s_mul_i32 s44, s43, 20480")
    a("s_mul_i32 s45, s34, 2560")
    a("s_add_u32 s44, s44, s45")
    a(f"s_add_u32 s44, s44, {QT_OFF}")
    a("v_lshlrev_b32 v10, 3, v0")
    T = FR + 16
    for nt in range(5):
        cs = CSX + 4 * nt if nt < 4 else CS4
        for r in range(4):
            a(f"v_fma_f32 v{T+r}, -v14, v{cs+r}, v{ACC+4*nt+r}")
            a(f"v_mul_f32 v{T+r}, v23, v{T+r}")
        a(f"v_cvt_pk_bf16_f32 v{T+4+2*nt}, v{T}, v{T+1}")
        a(f"v_cvt_pk_bf16_f32 v{T+5+2*nt}, v{T+2}, v{T+3}")
        a(f"buffer_store_dwordx2 {vr(T+4+2*nt,2)}, v10, s[28:31], s44 offen offset:{512*nt}")
    a("s_cmp_lg_u32 s32, 0")
    a(f"s_cbranch_scc1 L_{name}_nozero")
    a("v_cmp_gt_u32 vcc, 16, v0")
    a("s_and_saveexec_b64 s[46:47], vcc")
    a("v_mov_b32 v11, 0")
    a("v_lshlrev_b32 v12, 2, v0")
    a("s_lshl_b32 s45, s2, 6")
    a(f"s_add_u32 s45, s45, {ST_OFF}")
    a("buffer_store_dword v11, v12, s[28:31], s45 offen")
    a("s_and_b32 s45, s2, 63")
    a("s_lshl_b32 s45, s45, 8")
    a(f"s_add_u32 s45, s45, {CNT_OFF}")
    a("buffer_store_dword v11, v12, s[28:31], s45 offen")
    a("s_mov_b64 exec, s[46:47]")
    a.label(f"L_{name}_nozero")
    a("s_cmp_ge_u32 s34, 2")
    a(f"s_cbranch_scc1 L_{name}_fin")
    for t, cs in ((0, CS5), (1, CS6)):
        for r in range(4):
            a(f"v_fma_f32 v{T+4*t+r}, -v14, v{cs+r}, v{ACC+20+4*t+r}")
            a(f"v_mul_f32 v{T+4*t+r}, v15, v{T+4*t+r}")
    a("s_lshl_b32 s43, s33, 1")
    a("s_lshr_b32 s44, s32, 1")
    a("s_add_u32 s43, s43, s44")
    a(f"s_mul_i32 s43, s43, {KVT}")
    a(f"s_add_u32 s43, s43, {KV_OFF}")
    a("s_and_b32 s44, s32, 1")
    a("s_cmp_lg_u32 s34, 0")
    a(f"s_cbranch_scc1 L_{name}_vstore")
    a(f"v_cvt_pk_bf16_f32 v{T+8}, v{T}, v{T+1}")
    a(f"v_cvt_pk_bf16_f32 v{T+9}, v{T+2}, v{T+3}")
    a(f"v_cvt_pk_bf16_f32 v{T+10}, v{T+4}, v{T+5}")
    a(f"v_cvt_pk_bf16_f32 v{T+11}, v{T+6}, v{T+7}")
    a("s_lshl_b32 s45, s44, 4")
    a("v_add_u32 v10, s45, v1")
    a("v_lshrrev_b32 v11, 1, v2")
    a("v_lshlrev_b32 v11, 9, v11")
    a("v_lshl_add_u32 v11, v10, 4, v11")
    a("v_and_b32 v12, 1, v2")
    a("v_lshl_add_u32 v11, v12, 3, v11")
    a(f"buffer_store_dwordx2 {vr(T+8,2)}, v11, s[28:31], s43 offen")
    a("v_lshlrev_b32 v11, 2, v10")
    a("v_cmp_eq_u32 vcc, 0, v2")
    a("s_and_saveexec_b64 s[46:47], vcc")
    a(f"buffer_store_dword v{T+10}, v11, s[28:31], s43 offen offset:1024")
    a(f"buffer_store_dword v{T+11}, v11, s[28:31], s43 offen offset:1152")
    a("s_mov_b64 exec, s[46:47]")
    a(f"s_branch L_{name}_fin")
    a.label(f"L_{name}_vstore")
    for r in range(8): a(f"v_cvt_pk_bf16_f32 v{T+8+r}, v{T+r}, v{T+r}")
    a("s_mul_i32 s45, s44, 672")
    a("s_add_u32 s43, s43, s45")
    a("v_lshrrev_b32 v10, 3, v1")
    a("v_lshlrev_b32 v10, 2, v10")
    a("v_and_b32 v11, 3, v1")
    a("v_add_u32 v10, v10, v11")
    a("v_lshlrev_b32 v10, 1, v10")
    a("v_bfe_u32 v11, v1, 2, 1")
    a("v_mul_u32_u24 v11, 336, v11")
    a("v_add_u32 v10, v10, v11")
    a("v_lshl_add_u32 v11, v2, 6, v10")
    for r in range(4):
        a(f"buffer_store_short v{T+8+r}, v11, s[28:31], s43 offen offset:{1280 + 16*r}")
    a("v_cmp_eq_u32 vcc, 0, v2")
    a("s_and_saveexec_b64 s[46:47], vcc")
    for r in range(4):
        a(f"buffer_store_short v{T+12+r}, v10, s[28:31], s43 offen offset:{1280 + 16*(16+r)}")
    a(f"buffer_store_short v{ONES}, v10, s[28:31], s43 offen offset:{1280 + 16*20}")
    a("s_mov_b64 exec, s[46:47]")
    a.label(f"L_{name}_fin")
    S.stamp(); S.real(); S.flush()
    a.label(f"L_{name}_end")
    a("s_endpgm")
    return name, a.text(), kd(name, 160), f"; @launch kernel={name} grid=(256,1,1) block=(256,1,1) lds={LDS}"

def mfma32(a, d, x, y, c=None):
    c = vr(d, 16) if c is None else c
    a(f"v_mfma_f32_32x32x16_bf16 {vr(d,16)}, {vr(x,4)}, {vr(y,4)}, {c}")

def gen_attn():
    name = "attn0_kernel"
    a = Asm()
    header(a, "attn1_kernel")
    a("s_mov_b32 s99, 1")
    a("s_branch L_attn_body")
    header(a, name)
    a("s_mov_b32 s99, 0")
    a.label("L_attn_body")
    NLT = 60
    CH = 16 * KVT
    QL = 56 * KVT
    FLAG = 154 * 1024
    LDS = FLAG + 64
    QMAX = 153
    QF1 = 8; QF2 = 12; NEGM = 16; S_ = [32, 48]; O = 64; P = [80, 88]
    KB = [96, 104]
    VB = [112, 120]
    AC = 128
    VOFF = 134; K2OFF = 135; PFO = 136; DUM = 140
    RT = 144
    NV = RT + 64
    a(f"s_cmp_ge_u32 s2, 256")
    a(f"s_cbranch_scc1 L_{name}_end")
    S = Stamper(a, 1, 8); S.real(); S.stamp()
    a(f"s_load_dwordx2 s[12:13], s[0:1], 96")
    a("s_load_dwordx2 s[14:15], s[0:1], 32")
    a("s_load_dwordx2 s[16:17], s[0:1], 48")
    a("v_lshrrev_b32 v1, 6, v0")
    a("v_and_b32 v0, 63, v0")
    a("v_readfirstlane_b32 s32, v1")
    a("s_and_b32 s33, s2, 7")
    a("s_lshr_b32 s34, s2, 3")
    a("s_and_b32 s34, s34, 3")
    a("s_lshl_b32 s34, s34, 3")
    a("s_add_u32 s33, s33, s34")
    a("s_lshl_b32 s33, s33, 6")
    a("s_lshr_b32 s34, s2, 5")
    a("s_lshl_b32 s34, s34, 3")
    a("s_add_u32 s33, s33, s34")
    a("v_lshlrev_b32 v3, 4, v0")
    a("v_lshrrev_b32 v4, 2, v0")
    a("v_lshlrev_b32 v4, 7, v4")
    a("v_and_b32 v5, 3, v0")
    a("v_lshl_add_u32 v4, v5, 4, v4")
    a("s_lshr_b32 s34, s33, 4")
    a("s_mul_i32 s34, s34, 20480")
    a("s_and_b32 s35, s33, 15")
    a("s_lshl_b32 s36, s35, 3")
    a("s_add_u32 s34, s34, s36")
    a(f"s_add_u32 s34, s34, {QT_OFF}")
    a("s_lshl_b32 s36, s32, 11")
    a("s_add_u32 s36, s36, s34")
    a("s_lshl_b32 s37, s32, 10")
    a(f"s_add_u32 s37, s37, {QL}")
    a("s_lshl_b32 s50, s32, 10")
    a("s_waitcnt lgkmcnt(0)")
    srd(a, 28, 12, 13, WS_SIZE)
    a("s_mov_b32 m0, s37")
    a("s_add_u32 s33, s33, s32")
    a("buffer_load_dwordx4 v4, s[28:31], s36 offen lds")
    a("s_cmp_ge_u32 s32, 2")
    a(f"s_cbranch_scc1 L_{name}_q1")
    a("s_add_u32 s37, s37, 8192")
    a("s_mov_b32 m0, s37")
    a("s_add_u32 s36, s36, 16384")
    a("buffer_load_dwordx4 v4, s[28:31], s36 offen lds")
    a.label(f"L_{name}_q1")
    a("s_mov_b32 s40, 0")
    def dma_piece():
        a(f"s_min_u32 s43, s50, {QMAX*1024}")
        a("s_mov_b32 m0, s43")
        a(f"s_add_u32 s43, s43, {KV_OFF}")
        a("buffer_load_dwordx4 v3, s[28:31], s43 offen lds")
        a("s_add_u32 s50, s50, 8192")
    for i in range(6): dma_piece()
    a("s_and_b32 s35, s33, 15")
    srd(a, 20, 14, 15, 819200)
    srd(a, 24, 16, 17, 2048*1728*2)
    a("s_lshr_b32 s54, s2, 3")
    a("s_lshl_b32 s54, s54, 3")
    a("s_add_u32 s54, s54, s32")
    a("s_mul_i32 s55, s54, 3200")
    a("s_and_b32 s56, s2, 7")
    a("s_mul_i32 s56, s56, 27")
    a("s_lshr_b32 s56, s56, 3")
    a("s_lshl_b32 s56, s56, 7")
    a(f"s_mul_i32 s57, s54, {8*3456}")
    a("s_add_u32 s56, s56, s57")
    a("v_lshrrev_b32 v4, 3, v0")
    a("v_mul_u32_u24 v4, 3456, v4")
    a("v_and_b32 v5, 7, v0")
    a(f"v_lshl_add_u32 v{PFO}, v5, 4, v4")
    a("v_and_b32 v1, 31, v0")
    a("v_lshrrev_b32 v2, 5, v0")
    a("v_mov_b32 v4, 0")
    a(f"v_mov_b32 v5, {FLAG}")
    a("ds_write_b32 v5, v4")
    for r in range(1, 4): a(f"v_mov_b32 v{QF2+r}, 0")
    for kb in KB + [RT + 16 * j for j in range(4)]:
        for r in range(5, 8): a(f"v_mov_b32 v{kb+r}, 0")
    a("v_min_u32 v4, 20, v1")
    a("v_subrev_u32 v5, 12, v1")
    a("v_cmp_lt_u32 vcc, 27, v1")
    a("s_nop 1")
    a("v_cndmask_b32 v4, v4, v5, vcc")
    a("v_lshlrev_b32 v4, 4, v4")
    a("v_mul_u32_u24 v5, 336, v2")
    a("v_add_u32 v4, v4, v5")
    a(f"v_add_u32 v{VOFF}, 1280, v4")
    a(f"v_lshlrev_b32 v{K2OFF}, 2, v0")
    a(f"v_add_u32 v{K2OFF}, 1024, v{K2OFF}")
    a("v_mul_u32_u24 v4, 5, v1")
    a("v_lshl_add_u32 v5, v2, 1, v4")
    a("v_lshlrev_b32 v5, 6, v5")
    a("s_lshl_b32 s36, s32, 3")
    a(f"s_add_u32 s36, s36, {QL}")
    a("v_add_u32 v5, s36, v5")
    a("v_add_u32 v6, 4, v4")
    a("v_lshlrev_b32 v6, 6, v6")
    a("v_lshl_add_u32 v6, v2, 2, v6")
    a("v_add_u32 v6, s36, v6")
    a("s_waitcnt vmcnt(4) lgkmcnt(0)")
    a("s_barrier")
    a(f"ds_read_b64 {vr(QF1,2)}, v5")
    a(f"ds_read_b64 {vr(QF1+2,2)}, v5 offset:64")
    a(f"ds_read_b32 v{QF2}, v6")
    a(f"ds_read_b128 {vr(KB[0],4)}, v3")
    a(f"ds_read_b32 v{KB[0]+4}, v{K2OFF}")
    a("s_waitcnt lgkmcnt(0)")
    mfma32(a, S_[0], KB[0], QF1, "0")
    mfma32(a, S_[0], KB[0] + 4, QF2)
    a("s_nop 15")
    a("s_nop 3")
    a(f"v_max_f32 v7, v{S_[0]}, v{S_[0]+1}")
    for r in range(2, 16, 2): a(f"v_max3_f32 v7, v7, v{S_[0]+r}, v{S_[0]+r+1}")
    a(f"s_branch L_{name}_havemax")
    a.label(f"L_{name}_restart")
    a(f"v_mov_b32 v{AC}, v3")
    a(f"v_mov_b32 v{AC+1}, v{K2OFF}")
    a(f"v_mov_b32 v7, 0xff800000")
    a("s_mov_b32 s41, 0")
    a.label(f"L_{name}_mx")
    a(f"ds_read_b128 {vr(KB[0],4)}, v{AC}")
    a(f"ds_read_b32 v{KB[0]+4}, v{AC+1}")
    a(f"v_add_u32 v{AC}, {KVT}, v{AC}")
    a(f"v_add_u32 v{AC+1}, {KVT}, v{AC+1}")
    a("s_waitcnt lgkmcnt(0)")
    mfma32(a, S_[0], KB[0], QF1, "0")
    mfma32(a, S_[0], KB[0] + 4, QF2)
    a("s_nop 15")
    a("s_nop 3")
    for r in range(0, 16, 2): a(f"v_max3_f32 v7, v7, v{S_[0]+r}, v{S_[0]+r+1}")
    a("s_add_u32 s41, s41, 1")
    a(f"s_cmp_lt_u32 s41, {NLT}")
    a(f"s_cbranch_scc1 L_{name}_mx")
    for j in range(4):
        mfma32(a, S_[0], RT + 16 * j, QF1, "0")
        mfma32(a, S_[0], RT + 16 * j + 4, QF2)
        a("s_nop 15")
        a("s_nop 3")
        for r in range(0, 16, 2): a(f"v_max3_f32 v7, v7, v{S_[0]+r}, v{S_[0]+r+1}")
    a.label(f"L_{name}_havemax")
    S.stamp()
    a("v_mov_b32 v4, v7")
    a("v_mov_b32 v5, v7")
    a("s_nop 1")
    a("v_permlane32_swap_b32 v4, v5")
    a("s_nop 1")
    a("v_max_f32 v7, v4, v5")
    a("v_sub_f32 v7, 0, v7")
    for r in range(16): a(f"v_mov_b32 v{NEGM+r}, v7")
    for r in range(16): a(f"v_mov_b32 v{O+r}, 0")
    for r in range(8): a(f"v_mov_b32 v{P[1]+r}, 0")
    for r in range(8): a(f"v_mov_b32 v{VB[1]+r}, 0")
    a(f"v_mov_b32 v{AC}, v3"); a(f"v_mov_b32 v{AC+1}, v{K2OFF}"); a(f"v_mov_b32 v{AC+2}, v{VOFF}")
    a(f"ds_read_b128 {vr(KB[0],4)}, v{AC}")
    a(f"ds_read_b32 v{KB[0]+4}, v{AC+1}")
    a(f"ds_read_b128 {vr(KB[1],4)}, v{AC} offset:{KVT}")
    a(f"ds_read_b32 v{KB[1]+4}, v{AC+1} offset:{KVT}")
    a("s_waitcnt lgkmcnt(2)")
    mfma32(a, S_[0], KB[0], QF1, vr(NEGM, 16))
    mfma32(a, S_[0], KB[0] + 4, QF2)
    a("s_lshl_b32 s41, s40, 3")
    a("s_mov_b32 s42, 0")
    PON = int(os.environ.get("PON", "0")); POFF = int(os.environ.get("POFF", "12"))
    def body(t, last):
        sc = S_[t % 2]; sn = S_[(t + 1) % 2]
        kl = KB[t % 2]; vl = VB[t % 2]
        pp = P[(t + 1) % 2]; pc = P[t % 2]
        gt = 48 + t if last else None
        kn = KB[(t + 1) % 2] if not (last and gt + 1 >= NLT) else RT + 16 * (gt + 1 - NLT)
        vp = VB[(t + 1) % 2] if not (last and gt - 1 >= NLT) else RT + 16 * (gt - 1 - NLT) + 8
        tag = "L" if last else ""
        if not last:
            if t == 4:
                a("s_cmp_lg_u32 s41, 0")
                a(f"s_cbranch_scc1 L_{name}_nb4")
                a("s_waitcnt vmcnt(4)")
                a("s_barrier")
                a.label(f"L_{name}_nb4")
            if t == 14:
                a("s_cmp_lg_u32 s41, 0")
                a(f"s_cbranch_scc1 L_{name}_nb14")
                a("s_waitcnt vmcnt(0)")
                a("s_barrier")
                a.label(f"L_{name}_nb14")
            if t in (0, 5, 8, 11):
                a("s_cmp_lg_u32 s41, 0")
                a(f"s_cbranch_scc1 L_{name}_sk{t}")
                for i in range(4 if t < 11 else 2): dma_piece()
                a.label(f"L_{name}_sk{t}")
            if t in (2, 9):
                a("s_cmp_lg_u32 s41, 1")
                a(f"s_cbranch_scc1 L_{name}_pf{t}")
                if t == 2:
                    for j in range(4):
                        a(f"s_mov_b32 s43, {KV_OFF + (NLT+j)*KVT}")
                        a(f"buffer_load_dwordx4 {vr(RT+16*j,4)}, v3, s[28:31], s43 offen")
                        a(f"buffer_load_dword v{RT+16*j+4}, v{K2OFF}, s[28:31], s43 offen")
                        a(f"buffer_load_dwordx4 {vr(RT+16*j+8,4)}, v{VOFF}, s[28:31], s43 offen")
                        a(f"buffer_load_dwordx4 {vr(RT+16*j+12,4)}, v{VOFF}, s[28:31], s43 offen offset:672")
                else:
                    for k in range(4):
                        a(f"buffer_load_dwordx4 {vr(DUM,4)}, v3, s[20:23], s55 offen offset:{min(k*1024, 3200-1024)}")
                    for k in range(5):
                        a(f"buffer_load_dwordx4 {vr(DUM,4)}, v{PFO}, s[24:27], s56 offen offset:{k*128}")
                    code_prefetch(a, 8, PFO + 1, DUM)
                a.label(f"L_{name}_pf{t}")
        if t == PON:
            a("s_cmp_lt_u32 s32, 4")
            a(f"s_cbranch_scc1 L_{name}_np{tag}")
            a("s_setprio 1")
            a.label(f"L_{name}_np{tag}")
        if t == POFF: a("s_setprio 0")
        a("s_waitcnt lgkmcnt(0)")
        ldk = not (last and gt + 2 >= NLT)
        ldv = not (last and gt >= NLT)
        dos = not (last and t == 15)
        if dos: mfma32(a, sn, kn, QF1, vr(NEGM, 16))
        if ldk:
            a(f"ds_read_b128 {vr(kl,4)}, v{AC} offset:{(t+2)*KVT}")
            a(f"ds_read_b32 v{kl+4}, v{AC+1} offset:{(t+2)*KVT}")
        for r in range(0, 4): a(f"v_exp_f32 v{sc+r}, v{sc+r}")
        mfma32(a, O, vp, pp)
        if ldv:
            a(f"ds_read_b128 {vr(vl,4)}, v{AC+2} offset:{t*KVT}")
            a(f"ds_read_b128 {vr(vl+4,4)}, v{AC+2} offset:{t*KVT+672}")
        for r in range(4, 8): a(f"v_exp_f32 v{sc+r}, v{sc+r}")
        for r in range(4): a(f"v_cvt_pk_bf16_f32 v{pc+r}, v{sc+2*r}, v{sc+2*r+1}")
        if dos: mfma32(a, sn, kn + 4, QF2)
        for r in range(8, 12): a(f"v_exp_f32 v{sc+r}, v{sc+r}")
        mfma32(a, O, vp + 4, pp + 4)
        for r in range(12, 16): a(f"v_exp_f32 v{sc+r}, v{sc+r}")
        for r in range(4): a(f"v_cvt_pk_bf16_f32 v{pc+4+r}, v{sc+8+2*r}, v{sc+8+2*r+1}")
    a.label(f"L_{name}_chunk")
    for t in range(16): body(t, False)
    for r in range(3): a(f"v_add_u32 v{AC+r}, {CH}, v{AC+r}")
    a("s_add_u32 s41, s41, 1")
    a("s_add_u32 s42, s42, 1")
    a("s_cmp_lt_u32 s42, 3")
    a(f"s_cbranch_scc1 L_{name}_chunk")
    a("s_waitcnt vmcnt(0)")
    for t in range(16): body(t, True)
    a("s_setprio 0")
    a("s_nop 1")
    mfma32(a, O, RT + 48 + 8, P[1])
    mfma32(a, O, RT + 48 + 12, P[1] + 4)
    S.stamp()
    a("s_nop 15")
    a("s_nop 3")
    a(f"v_mov_b32 v4, v{O+8}")
    a(f"v_mov_b32 v5, v{O+8}")
    a("s_nop 1")
    a("v_permlane32_swap_b32 v4, v5")
    a("v_mov_b32 v6, 0")
    for r in range(12): a(f"v_fma_f32 v6, v{O+r}, 0, v6")
    a(f"v_fma_f32 v6, v5, 0, v6")
    a(f"s_mov_b32 s43, {hex(f2u(2.0**100))}")
    a("v_cmp_neq_f32 vcc, 0, v6")
    a("v_cmp_nlt_f32 s[46:47], v5, s43")
    a("s_or_b64 vcc, vcc, s[46:47]")
    a("s_cmp_lg_u32 s40, 0")
    a(f"s_cbranch_scc1 L_{name}_store")
    a(f"s_cbranch_vccz L_{name}_store")
    a("s_mov_b32 s40, 1")
    a(f"s_branch L_{name}_restart")
    a.label(f"L_{name}_store")
    a("v_rcp_f32 v5, v5")
    a("s_nop 0")
    for r in range(12): a(f"v_mul_f32 v{O+r}, v5, v{O+r}")
    for r in range(6): a(f"v_cvt_pk_bf16_f32 v{S_[0]+r}, v{O+2*r}, v{O+2*r+1}")
    OST = 140000 // 1024 * 1024
    a("v_mul_u32_u24 v4, 20, v1")
    a("v_lshl_add_u32 v4, v2, 2, v4")
    a("s_lshl_b32 s36, s32, 4")
    a(f"s_add_u32 s36, s36, {OST}")
    for grp in range(3):
        a(f"v_add_u32 v5, {8*grp}, v4")
        a("v_lshrrev_b32 v6, 5, v5")
        a("v_lshlrev_b32 v6, 9, v6")
        a("v_bfe_u32 v7, v5, 2, 2")
        a("v_lshl_add_u32 v6, v7, 7, v6")
        a("v_bfe_u32 v7, v5, 4, 1")
        a("v_lshl_add_u32 v6, v7, 3, v6")
        a(f"v_add_u32 v{10+grp}, s36, v6")
    a("s_barrier")
    for grp in range(3):
        if grp == 2:
            a("v_cmp_eq_u32 vcc, 0, v2")
            a("s_and_saveexec_b64 s[46:47], vcc")
        a(f"ds_write_b64 v{10+grp}, {vr(S_[0]+2*grp,2)}")
    a("s_mov_b64 exec, -1")
    S.stamp()
    RES = 102400; RED = RES + 10240
    a("s_load_dwordx2 s[4:5], s[0:1], 0")
    a("s_lshr_b32 s33, s33, 6")
    a("s_lshr_b32 s34, s2, 5")
    a("v_and_b32 v1, 15, v0")
    a("v_lshrrev_b32 v2, 4, v0")
    a("s_mul_i32 s36, s34, 160")
    a("s_mov_b32 s37, 6554")
    a("s_movk_i32 s38, 1280")
    for r in range(5):
        a(f"v_add_u32 v10, {64*r}, v0")
        a("v_mul_lo_u32 v11, v10, s37")
        a("v_lshrrev_b32 v11, 16, v11")
        a("v_mul_u32_u24 v12, 10, v11")
        a("v_sub_u32 v12, v10, v12")
        a("v_mul_lo_u32 v11, v11, s38")
        a("v_lshl_add_u32 v11, v12, 4, v11")
        a(f"v_add_u32 v11, s36, v11")
        a(f"v_subrev_u32 v{4+r}, {1024*(r%4)}, v11")
    a("s_waitcnt lgkmcnt(0)")
    a(f"s_add_u32 s8, s12, {hex(X2_OFF)}")
    a("s_addc_u32 s9, s13, 0")
    a("s_cmp_eq_u32 s99, 0")
    a("s_cselect_b32 s4, s4, s8")
    a("s_cselect_b32 s5, s5, s9")
    srd(a, 16, 4, 5, XBYTES)
    a("s_waitcnt lgkmcnt(0)")
    a("s_barrier")
    a("s_lshl_b32 s43, s32, 10")
    a(f"s_add_u32 s43, s43, {OST}")
    a("v_add_u32 v10, s43, v3")
    a(f"ds_read_b128 v[32:35], v10")
    a(f"ds_read_b128 v[36:39], v10 offset:8192")
    a("v_lshrrev_b32 v11, 3, v0")
    a("v_lshlrev_b32 v11, 8, v11")
    a("v_and_b32 v12, 7, v0")
    a("v_lshl_add_u32 v11, v12, 4, v11")
    a("s_lshl_b32 s44, s33, 2")
    a("s_lshr_b32 s45, s34, 1")
    a("s_add_u32 s44, s44, s45")
    a("s_mul_i32 s44, s44, 20480")
    a("s_and_b32 s45, s34, 1")
    a("s_lshl_b32 s45, s45, 7")
    a("s_add_u32 s44, s44, s45")
    a("s_lshl_b32 s45, s32, 11")
    a("s_add_u32 s44, s44, s45")
    a(f"s_add_u32 s44, s44, {OF_OFF}")
    a("s_waitcnt lgkmcnt(0)")
    a("buffer_store_dwordx4 v[32:35], v11, s[28:31], s44 offen sc1")
    a("s_cmp_ge_u32 s32, 2")
    a(f"s_cbranch_scc1 L_{name}_os")
    a("s_add_u32 s44, s44, 16384")
    a("buffer_store_dwordx4 v[36:39], v11, s[28:31], s44 offen sc1")
    a.label(f"L_{name}_os")
    def wgroup(srd_, soff, ldsb):
        a(f"s_mov_b32 m0, {ldsb}")
        a(f"s_add_u32 s45, {ldsb}, 4096")
        for r in range(4):
            a(f"buffer_load_dwordx4 v{4+r}, {srd_}, {soff} offen offset:{1024*r} lds")
        a("s_mov_b32 m0, s45")
        a("s_nop 0")
        a(f"buffer_load_dwordx4 v8, {srd_}, {soff} offen lds")
    a(f"s_mul_i32 s40, s32, {32*1280}")
    a("s_add_u32 s40, s40, 4096")
    a("s_mul_i32 s41, s32, 5120")
    a("s_sub_u32 s60, s20, 4096")
    a("s_subb_u32 s61, s21, 0")
    a(f"s_mov_b32 s62, {819200+4096}")
    a("s_mov_b32 s63, 0x00020000")
    a("s_sub_u32 s64, s16, 4096")
    a("s_subb_u32 s65, s17, 0")
    a(f"s_mov_b32 s66, {XBYTES+4096}")
    a("s_mov_b32 s67, 0x00020000")
    for r in range(5): a(f"v_add_u32 v{4+r}, 4096, v{4+r}")
    a(f"s_mul_i32 s40, s32, {32*1280}")
    wgroup("s[60:63]", "s40", "s41")
    a(f"s_add_u32 s40, s40, {8*32*1280}")
    a(f"s_add_u32 s41, s41, {8*5120}")
    wgroup("s[60:63]", "s40", "s41")
    a("s_cmp_ge_u32 s32, 4")
    a(f"s_cbranch_scc1 L_{name}_w3")
    a(f"s_add_u32 s40, s40, {8*32*1280}")
    a(f"s_add_u32 s41, s41, {8*5120}")
    wgroup("s[60:63]", "s40", "s41")
    a(f"s_branch L_{name}_w4")
    a.label(f"L_{name}_w3")
    a("s_cmp_ge_u32 s32, 6")
    a(f"s_cbranch_scc1 L_{name}_w4")
    a("s_sub_u32 s43, s32, 4")
    a(f"s_mul_i32 s40, s43, {32*1280}")
    a("s_mul_i32 s44, s33, 81920")
    a("s_add_u32 s40, s40, s44")
    a("s_mul_i32 s41, s43, 5120")
    a(f"s_add_u32 s41, s41, {RES}")
    wgroup("s[64:67]", "s40", "s41")
    a.label(f"L_{name}_w4")
    a("s_waitcnt vmcnt(10)")
    a("s_barrier")
    a("s_cmp_lg_u32 s32, 0")
    a(f"s_cbranch_scc1 L_{name}_nopoll")
    a("s_lshl_b32 s43, s33, 8")
    a(f"s_add_u32 s43, s43, {CNT_OFF}")
    a("v_mov_b32 v10, s43")
    a("v_mov_b32 v11, 1")
    a("s_mov_b64 exec, 1")
    a("buffer_atomic_add v11, v10, s[28:31], 0 offen")
    a.label(f"L_{name}_poll")
    a("buffer_load_dword v12, v10, s[28:31], 0 offen sc1")
    a("s_waitcnt vmcnt(0)")
    a("v_readfirstlane_b32 s43, v12")
    a("s_cmp_ge_u32 s43, 8")
    a(f"s_cbranch_scc1 L_{name}_polled")
    a("s_sleep 1")
    a(f"s_branch L_{name}_poll")
    a.label(f"L_{name}_polled")
    a("s_mov_b64 exec, -1")
    a.label(f"L_{name}_nopoll")
    a("s_and_b32 s52, s32, 3")
    a("s_lshr_b32 s53, s32, 2")
    a("s_lshl_b32 s42, s33, 2")
    a("s_add_u32 s42, s42, s52")
    a("s_mul_i32 s43, s42, 20480")
    a("s_mul_i32 s44, s53, 10240")
    a("s_add_u32 s43, s43, s44")
    a(f"s_add_u32 s43, s43, {OF_OFF}")
    a("v_lshrrev_b32 v10, 2, v1")
    a("v_lshl_add_u32 v10, v2, 2, v10")
    a("v_and_b32 v11, 3, v1")
    a("v_lshlrev_b32 v11, 3, v11")
    a("v_mul_u32_u24 v12, 160, v10")
    a("v_add_u32 v20, v12, v11")
    a("s_mul_i32 s48, s52, 2560")
    a(f"s_add_u32 s48, s48, {RES}")
    a("v_add_u32 v22, s48, v20")
    a("s_mul_i32 s48, s53, 51200")
    a("v_add_u32 v20, s48, v20")
    ACC = 24; XF = 64; WF = 104
    for r in range(ACC, ACC + 20): a(f"v_mov_b32 v{r}, 0")
    a("s_waitcnt vmcnt(0)")
    a("s_barrier")
    S.stamp()
    for j in range(10):
        if j == 4: a("s_add_u32 s43, s43, 4096")
        if j == 8: a("s_add_u32 s43, s43, 4096")
        a(f"buffer_load_dwordx4 {vr(XF+4*j,4)}, v3, s[28:31], s43 offen offset:{1024*(j%4)} sc1")
    def reads(ks, fs):
        b = WF + 20 * fs
        for nt in range(5):
            for half in range(2):
                off = (32 * ks + 16 * half) * 160 + 32 * nt
                a(f"ds_read_b64_tr_b16 {vr(b+4*nt+2*half,2)}, v20 offset:{off}")
    reads(0, 0)
    for j in range(10):
        a(f"s_waitcnt lgkmcnt(0) vmcnt({9-j})")
        if j < 9: reads(j + 1, (j + 1) % 2)
        b = WF + 20 * (j % 2)
        for nt in range(5): mfma16(a, ACC + 4 * nt, XF + 4 * j, b + 4 * nt)
    a("s_mul_i32 s44, s52, 5120")
    a(f"s_add_u32 s44, s44, {RED}")
    a("v_add_u32 v10, s44, v3")
    a("s_cmp_eq_u32 s53, 0")
    a(f"s_cbranch_scc1 L_{name}_kh0")
    a("s_nop 7")
    for nt in range(5): a(f"ds_write_b128 v10, {vr(ACC+4*nt,4)} offset:{1024*nt}")
    a("s_waitcnt lgkmcnt(0)")
    a("s_barrier")
    a(f"s_branch L_{name}_fin")
    a.label(f"L_{name}_kh0")
    RS = 144
    for nt in range(5): a(f"ds_read_b64_tr_b16 {vr(RS+2*nt,2)}, v22 offset:{32*nt}")
    SUM = 44; SQ = 48; T = 52
    for r in range(8): a(f"v_mov_b32 v{SUM+r}, 0")
    a("s_mul_i32 s44, s34, 327680")
    a("s_lshr_b32 s45, s42, 1")
    a("s_lshl_b32 s45, s45, 10")
    a("s_add_u32 s44, s44, s45")
    a("s_and_b32 s45, s42, 1")
    a("s_lshl_b32 s45, s45, 3")
    a("s_add_u32 s44, s44, s45")
    a(f"s_add_u32 s44, s44, {X1T_OFF}")
    a("s_mov_b32 s46, 0xffff0000")
    a("s_barrier")
    for nt in range(5): a(f"ds_read_b128 {vr(XF+4*nt,4)}, v10 offset:{1024*nt}")
    a("s_waitcnt lgkmcnt(0)")
    for r in range(20): a(f"v_add_f32 v{ACC+r}, v{ACC+r}, v{XF+r}")
    OUT = 160
    for nt in range(5):
        for h in range(2):
            a(f"v_lshlrev_b32 v{T}, 16, v{RS+2*nt+h}")
            a(f"v_and_b32 v{T+1}, s46, v{RS+2*nt+h}")
            a(f"v_add_f32 v{T}, v{T}, v{ACC+4*nt+2*h}")
            a(f"v_add_f32 v{T+1}, v{T+1}, v{ACC+4*nt+2*h+1}")
            o = OUT + 2 * nt + h
            a(f"v_cvt_pk_bf16_f32 v{o}, v{T}, v{T+1}")
            a(f"v_lshlrev_b32 v{T}, 16, v{o}")
            a(f"v_and_b32 v{T+1}, s46, v{o}")
            a(f"v_add_f32 v{SUM+2*h}, v{SUM+2*h}, v{T}")
            a(f"v_add_f32 v{SUM+2*h+1}, v{SUM+2*h+1}, v{T+1}")
            a(f"v_fma_f32 v{SQ+2*h}, v{T}, v{T}, v{SQ+2*h}")
            a(f"v_fma_f32 v{SQ+2*h+1}, v{T+1}, v{T+1}, v{SQ+2*h+1}")
        a(f"buffer_store_dwordx2 {vr(OUT+2*nt,2)}, v3, s[28:31], s44 offen")
        if nt < 4: a("s_add_u32 s44, s44, 65536")
    for sh in (8, 4, 2, 1):
        a("s_nop 1")
        for r in range(8):
            a(f"v_add_f32_dpp v{SUM+r}, v{SUM+r}, v{SUM+r} row_ror:{sh} row_mask:0xf bank_mask:0xf")
    a("s_lshl_b32 s44, s42, 7")
    a(f"s_add_u32 s44, s44, {ST_OFF}")
    a("v_lshlrev_b32 v10, 5, v2")
    a("v_cmp_eq_u32 vcc, 0, v1")
    a("s_and_saveexec_b64 s[46:47], vcc")
    for r in range(4):
        a(f"buffer_atomic_add_f32 v{SUM+r}, v10, s[28:31], s44 offen offset:{8*r}")
        a(f"buffer_atomic_add_f32 v{SQ+r}, v10, s[28:31], s44 offen offset:{8*r+4}")
    a.label(f"L_{name}_fin")
    S.stamp(); S.real(); S.flush()
    a.label(f"L_{name}_end")
    a("s_endpgm")
    ll = lambda n: f"; @launch kernel={n} grid=(256,1,1) block=(512,1,1) lds={LDS}"
    return (name, a.text(), kd(name, NV) + kd("attn1_kernel", NV), ll(name)), ("attn1_kernel", "", "", ll("attn1_kernel"))

def gen_oproj(layer):
    name = f"oproj{layer}_kernel"
    a = Asm(); header(a, name)
    RES = 102400
    LDS = RES + 10240
    a(f"s_cmp_ge_u32 s2, 256")
    a(f"s_cbranch_scc1 L_{name}_end")
    S = Stamper(a, 2 + 5*layer, 4); S.real(); S.stamp()
    a(f"s_load_dwordx2 s[4:5], s[0:1], 0")
    a(f"s_load_dwordx2 s[6:7], s[0:1], 32")
    a(f"s_load_dwordx2 s[12:13], s[0:1], 96")
    a("v_lshrrev_b32 v1, 6, v0")
    a("v_and_b32 v0, 63, v0")
    a("v_readfirstlane_b32 s32, v1")
    a("s_and_b32 s33, s2, 7")
    a("s_lshr_b32 s34, s2, 3")
    a("s_and_b32 s34, s34, 3")
    a("s_lshl_b32 s34, s34, 3")
    a("s_add_u32 s33, s33, s34")
    a("s_lshr_b32 s34, s2, 5")
    a("s_waitcnt lgkmcnt(0)")
    if layer == 1:
        a(f"s_add_u32 s4, s12, {hex(X2_OFF)}")
        a(f"s_addc_u32 s5, s13, 0")
    srd(a, 16, 4, 5, XBYTES)
    srd(a, 20, 6, 7, 819200)
    srd(a, 28, 12, 13, WS_SIZE)
    a("v_and_b32 v1, 15, v0")
    a("v_lshrrev_b32 v2, 4, v0")
    a("s_mul_i32 s35, s32, 320")
    a("s_mul_i32 s36, s34, 160")
    a("s_mov_b32 s37, 6554")
    a("s_movk_i32 s38, 1280")
    for jj in range(5):
        a(f"v_add_u32 v10, s35, v0")
        if jj: a(f"v_add_u32 v10, {64*jj}, v10")
        a("v_mul_lo_u32 v11, v10, s37")
        a("v_lshrrev_b32 v11, 16, v11")
        a("v_mul_u32_u24 v12, 10, v11")
        a("v_sub_u32 v12, v10, v12")
        a("v_mul_lo_u32 v11, v11, s38")
        a("v_lshl_add_u32 v11, v12, 4, v11")
        a(f"v_add_u32 v{4+jj}, s36, v11")
    a("v_lshlrev_b32 v3, 4, v0")
    a("s_mul_i32 s40, s33, 81920")
    a("s_mul_i32 s41, s32, 5120")
    a("s_cmp_ge_u32 s32, 2")
    a(f"s_cbranch_scc1 L_{name}_nores")
    for jj in range(5):
        a(f"s_add_u32 s44, s41, {RES + jj*1024}")
        a("s_mov_b32 m0, s44")
        a("s_nop 0")
        a(f"buffer_load_dwordx4 v{4+jj}, s[16:19], s40 offen lds")
    a.label(f"L_{name}_nores")
    a("s_lshl_b32 s42, s33, 2")
    a("s_add_u32 s42, s42, s32")
    a("s_mul_i32 s43, s42, 20480")
    a(f"s_add_u32 s43, s43, {OF_OFF}")
    XF = 64
    def stage_ops(st):
        ops = []
        for jj in range(5):
            ops.append([f"s_add_u32 s44, s41, {st*20480 + jj*1024}", "s_mov_b32 m0, s44",
                        f"s_mov_b32 s45, {st*128*1280}", f"buffer_load_dwordx4 v{4+jj}, s[20:23], s45 offen lds"])
        for k4 in range(4):
            ops.append([f"s_add_u32 s45, s43, {st*4096}",
                        f"buffer_load_dwordx4 {vr(XF+4*(4*st+k4),4)}, v3, s[28:31], s45 offen offset:{1024*k4}"])
        return ops
    for st in range(2):
        for op in stage_ops(st):
            for x in op: a(x)
    S.stamp()
    a("v_lshrrev_b32 v10, 2, v1")
    a("v_lshl_add_u32 v10, v2, 2, v10")
    a("v_and_b32 v11, 3, v1")
    a("v_lshlrev_b32 v11, 3, v11")
    a("v_mul_u32_u24 v12, 160, v10")
    a("v_add_u32 v20, v12, v11")
    a(f"v_add_u32 v21, {51200}, v20")
    a("s_mul_i32 s48, s32, 2560")
    a(f"s_add_u32 s48, s48, {RES}")
    a("v_add_u32 v22, s48, v20")
    ACC = 24
    WF = 144
    for r in range(ACC, ACC + 20): a(f"v_mov_b32 v{r}, 0")
    def reads(ks, fs):
        b = WF + 20 * fs
        for nt in range(5):
            for half in range(2):
                off = (32 * ks + 16 * half) * 160 + 32 * nt
                va = 20
                if off >= 51200: off -= 51200; va = 21
                a(f"ds_read_b64_tr_b16 {vr(b+4*nt+2*half,2)}, v{va} offset:{off}")
    for st in range(5):
        a(f"s_waitcnt vmcnt({9 if st < 4 else 0})")
        a("s_barrier")
        if st == 0: S.stamp()
        pend = stage_ops(st + 2) if st + 2 < 5 else []
        reads(4 * st, 0)
        for k4 in range(4):
            a("s_waitcnt lgkmcnt(0)")
            if k4 < 3: reads(4 * st + k4 + 1, (k4 + 1) % 2)
            b = WF + 20 * (k4 % 2)
            for nt in range(5):
                mfma16(a, ACC + 4 * nt, XF + 4 * (4 * st + k4), b + 4 * nt)
                if nt % 2 == 0 and pend:
                    for x_ in pend.pop(0): a(x_)
        assert not pend
    S.stamp()
    RS = WF
    for nt in range(5): a(f"ds_read_b64_tr_b16 {vr(RS+2*nt,2)}, v22 offset:{32*nt}")
    SUM = 44; SQ = 48; T = 52
    for r in range(8): a(f"v_mov_b32 v{SUM+r}, 0")
    a("s_mul_i32 s44, s34, 327680")
    a("s_lshr_b32 s45, s42, 1")
    a("s_lshl_b32 s45, s45, 10")
    a("s_add_u32 s44, s44, s45")
    a("s_and_b32 s45, s42, 1")
    a("s_lshl_b32 s45, s45, 3")
    a("s_add_u32 s44, s44, s45")
    a(f"s_add_u32 s44, s44, {X1T_OFF}")
    a("s_mov_b32 s46, 0xffff0000")
    a("s_waitcnt lgkmcnt(0)")
    a("s_nop 7")
    OUT = WF + 12
    for nt in range(5):
        for h in range(2):
            a(f"v_lshlrev_b32 v{T}, 16, v{RS+2*nt+h}")
            a(f"v_and_b32 v{T+1}, s46, v{RS+2*nt+h}")
            a(f"v_add_f32 v{T}, v{T}, v{ACC+4*nt+2*h}")
            a(f"v_add_f32 v{T+1}, v{T+1}, v{ACC+4*nt+2*h+1}")
            o = OUT + 2 * nt + h
            a(f"v_cvt_pk_bf16_f32 v{o}, v{T}, v{T+1}")
            a(f"v_lshlrev_b32 v{T}, 16, v{o}")
            a(f"v_and_b32 v{T+1}, s46, v{o}")
            a(f"v_add_f32 v{SUM+2*h}, v{SUM+2*h}, v{T}")
            a(f"v_add_f32 v{SUM+2*h+1}, v{SUM+2*h+1}, v{T+1}")
            a(f"v_fma_f32 v{SQ+2*h}, v{T}, v{T}, v{SQ+2*h}")
            a(f"v_fma_f32 v{SQ+2*h+1}, v{T+1}, v{T+1}, v{SQ+2*h+1}")
        a(f"buffer_store_dwordx2 {vr(OUT+2*nt,2)}, v3, s[28:31], s44 offen")
        if nt < 4: a("s_add_u32 s44, s44, 65536")
    for sh in (8, 4, 2, 1):
        a("s_nop 1")
        for r in range(8):
            a(f"v_add_f32_dpp v{SUM+r}, v{SUM+r}, v{SUM+r} row_ror:{sh} row_mask:0xf bank_mask:0xf")
    a("s_lshl_b32 s44, s42, 7")
    a(f"s_add_u32 s44, s44, {ST_OFF}")
    a("v_lshlrev_b32 v10, 5, v2")
    a("v_cmp_eq_u32 vcc, 0, v1")
    a("s_and_saveexec_b64 s[46:47], vcc")
    for r in range(4):
        a(f"buffer_atomic_add_f32 v{SUM+r}, v10, s[28:31], s44 offen offset:{8*r}")
        a(f"buffer_atomic_add_f32 v{SQ+r}, v10, s[28:31], s44 offen offset:{8*r+4}")
    S.stamp(); S.real(); S.flush()
    a.label(f"L_{name}_end")
    a("s_endpgm")
    return name, a.text(), kd(name, 192), f"; @launch kernel={name} grid=(256,1,1) block=(256,1,1) lds={LDS}"

def mfma16a(a, d, x, y):
    a(f"v_mfma_f32_16x16x32_bf16 a[{d}:{d+3}], {vr(x,4)}, {vr(y,4)}, a[{d}:{d+3}]")

def gen_mlp(which, layer):
    name = f"mlp{which}_{layer}_kernel"
    a = Asm(); header(a, name)
    norm = which == 1
    NW = 8 if norm else int(os.environ.get("K5NW", "4"))
    U = 2 if norm else int(os.environ.get("K5U", "4"))
    RING = U * 4096
    TAB = NW * RING
    NWG = 216 if norm else 256
    WSTR = 3456 if norm else 4096
    WBYTES = 2048 * 1728 * 2
    XDT = 65536 if norm else 55296
    XOFF = X1T_OFF if norm else GF_OFF
    if NW == 8: own_dts = lambda w: (0, 1, 2) if w < 4 else (3, 4)
    else: own_dts = lambda w: (0, 1, 2, 3, 4)
    MT = 3 if NW == 8 else 5
    NS = NW - 1
    own_base = []; off = 0
    for w in range(NW):
        own_base.append(off); off += NS * len(own_dts(w)) * 1024
    REDSZ = off
    TR = REDSZ + 1024
    LDS = max(TAB + NW * 2048, TR + 4 * 2560)
    a(f"s_cmp_ge_u32 s2, {NWG}")
    a(f"s_cbranch_scc1 L_{name}_end")
    S = Stamper(a, 2 + which + 5*layer, 8); S.real(); S.stamp()
    a(f"s_load_dwordx4 s[4:7], s[0:1], {48 if norm else 64}")
    a(f"s_load_dwordx2 s[12:13], s[0:1], 96")
    if not norm:
        a(f"s_load_dwordx2 s[8:9], s[0:1], 80")
    a("v_lshrrev_b32 v1, 6, v0")
    a("v_and_b32 v0, 63, v0")
    a("v_readfirstlane_b32 s32, v1")
    if norm:
        a("s_and_b32 s33, s2, 7")
        a(f"s_mul_i32 s33, s33, {NWG//8}")
        a("s_lshr_b32 s34, s2, 3")
        a("s_add_u32 s33, s33, s34")
        a("s_lshr_b32 s34, s33, 3")
        a("s_and_b32 s33, s33, 7")
        a(f"s_load_dwordx2 s[8:9], s[0:1], 64")
    else:
        a("s_and_b32 s34, s2, 7")
        a("s_lshr_b32 s33, s2, 3")
        a("s_and_b32 s33, s33, 3")
        a("s_lshl_b32 s33, s33, 3")
        a("s_add_u32 s34, s34, s33")
        a("s_lshr_b32 s33, s2, 5")
        a(f"s_load_dwordx2 s[10:11], s[0:1], 8")
    a("v_and_b32 v1, 15, v0")
    a("v_lshrrev_b32 v2, 4, v0")
    a("v_lshlrev_b32 v3, 4, v0")
    if norm:
        a("s_lshl_b32 s35, s32, 3")
        a("s_mov_b32 s36, 8")
    elif NW == 8:
        a("s_mul_i32 s35, s32, 7")
        a("s_min_u32 s35, s35, 48")
        a("s_cmp_ge_u32 s32, 6")
        a("s_cselect_b32 s36, 6, 7")
    else:
        a("s_mul_i32 s35, s32, 14")
        a("s_min_u32 s35, s35, 41")
        a("s_cmp_ge_u32 s32, 2")
        a("s_cselect_b32 s36, 13, 14")
    a("v_lshrrev_b32 v10, 3, v0")
    a("v_lshrrev_b32 v11, 1, v10")
    a("v_and_b32 v11, 3, v11")
    a("v_lshlrev_b32 v11, 1, v11")
    a("v_and_b32 v12, 7, v0")
    a("v_xor_b32 v12, v12, v11")
    a(f"s_movk_i32 s38, {WSTR}")
    a("v_mul_lo_u32 v5, v10, s38")
    a("v_lshl_add_u32 v44, v12, 4, v5")
    for jj in range(1, 4): a(f"v_add_u32 v{44+jj}, {jj*(8*WSTR-1024)}, v44")
    for dt in range(1, 5): a(f"v_add_u32 v{19+dt}, {dt*XDT}, v3")
    a(f"s_mul_i32 s40, s35, {32*WSTR}")
    a("s_lshl_b32 s41, s34, 7")
    a("s_add_u32 s40, s40, s41")
    a(f"s_mul_i32 s41, s33, {5*XDT}")
    a("s_lshl_b32 s42, s35, 10")
    a("s_add_u32 s41, s41, s42")
    a(f"s_add_u32 s41, s41, {XOFF}")
    a(f"s_sub_u32 s49, s36, {U}")
    a(f"s_mul_i32 s42, s32, {RING}")
    a("s_and_b32 s52, s32, 3")
    a("s_lshr_b32 s53, s32, 2")
    a("s_waitcnt lgkmcnt(0)")
    srd(a, 20, 4, 5, WBYTES)
    srd(a, 28, 12, 13, WS_SIZE)
    XR = 48
    XN = XR + 20 * U
    WF = XN + (40 if norm else 0)
    TT = WF + 32
    NV = max(TT + (16 if norm else 0), 176)
    TMP = 16
    TB = 36
    EB = 24
    if norm:
        a("s_lshl_b32 s37, s32, 11")
        a(f"s_add_u32 s37, s37, {ST_OFF}")
        a("v_lshlrev_b32 v4, 3, v0")
        for i2 in range(4):
            a(f"buffer_load_dwordx2 {vr(TB+2*i2,2)}, v4, s[28:31], s37 offen offset:{512*i2}")
    def w_ops(slot):
        ops = []
        for jj in range(4):
            op = [f"s_mov_b32 m0, s{64+slot}"] if jj == 0 else []
            if jj == 0: op.append("s_nop 0")
            op.append(f"buffer_load_dwordx4 v{44+jj}, s[20:23], s40 offen offset:{jj*1024} lds")
            ops.append(op)
        ops[-1] += [f"s_add_u32 s40, s40, {32*WSTR}"]
        return ops
    def x_ops(slot):
        ops = []
        for dt in range(5):
            va = 3 if dt == 0 else 19 + dt
            ops.append([f"buffer_load_dwordx4 {vr(XR+20*slot+4*dt,4)}, v{va}, s[60:63], s41 offen"])
        ops[-1] += ["s_add_u32 s41, s41, 1024"]
        return ops
    lab = [0]
    def emit_ops(ops, guard=False):
        for op in ops:
            for x in op: a(x)
    srd(a, 60, 12, 13, WS_SIZE)
    for u in range(U): a(f"s_add_u32 s{64+u}, s42, {u*4096}")
    emit_ops(w_ops(0)); emit_ops(x_ops(0))
    srd(a, 24, 6, 7, 1728 * 2 if norm else 2048 * 2)
    if not norm:
        if layer == 0:
            a(f"s_add_u32 s8, s12, {hex(X2_OFF)}")
            a(f"s_addc_u32 s9, s13, 0")
        srd(a, 16, 8, 9, XBYTES)
    a("s_lshl_b32 s43, s34, 7")
    a("s_lshl_b32 s44, s52, 5")
    a("s_add_u32 s43, s43, s44")
    a("v_lshlrev_b32 v10, 3, v2")
    a(f"buffer_load_dwordx2 {vr(EB,2)}, v10, s[24:27], s43 offen")
    NE = 1
    if not norm:
        a("s_mul_i32 s43, s33, 327680")
        a("s_mul_i32 s44, s53, 196608")
        a("s_add_u32 s43, s43, s44")
        a("s_lshl_b32 s44, s34, 11")
        a("s_add_u32 s43, s43, s44")
        a("s_lshr_b32 s44, s52, 1")
        a("s_lshl_b32 s44, s44, 10")
        a("s_add_u32 s43, s43, s44")
        a("s_and_b32 s44, s52, 1")
        a("s_lshl_b32 s44, s44, 3")
        a("s_add_u32 s43, s43, s44")
        a(f"s_add_u32 s43, s43, {X1T_OFF}")
        for j in range(MT):
            a(f"buffer_load_dwordx2 {vr(EB+2+2*j,2)}, v3, s[28:31], s43 offen")
            if j < MT - 1: a("s_add_u32 s43, s43, 65536")
        NE = 1 + MT
    for u in range(1, U):
        emit_ops(w_ops(u)); emit_ops(x_ops(u))
    S.stamp()
    a("v_lshrrev_b32 v10, 2, v1")
    a("v_lshl_add_u32 v10, v2, 2, v10")
    a("v_lshrrev_b32 v11, 1, v10")
    a("v_and_b32 v11, 3, v11")
    a("v_and_b32 v12, 3, v1")
    a("v_lshlrev_b32 v12, 3, v12")
    a("v_lshl_add_u32 v12, v10, 7, v12")
    a("v_add_u32 v12, s42, v12")
    for nt in range(4):
        a(f"v_xor_b32 v13, {nt}, v11")
        a(f"v_lshl_add_u32 v{6+nt}, v13, 5, v12")
    for r in range(80): a(f"v_accvgpr_write_b32 a{r}, 0")
    a("s_mov_b32 s46, 0xffff0000")
    if norm:
        a(f"s_waitcnt vmcnt({9*U+NE})")
        a("s_lshl_b32 s43, s32, 11")
        a(f"s_add_u32 s43, s43, {TAB}")
        a("v_lshlrev_b32 v14, 2, v0")
        a("v_add_u32 v14, s43, v14")
        a("v_lshlrev_b32 v15, 4, v2")
        a("v_add_u32 v15, s43, v15")
        a(f"s_mov_b32 s47, {hex(f2u(1.0/640))}")
        a(f"s_mov_b32 s48, {hex(f2u(1e-5))}")
        for i2 in range(4):
            m = TB + 2 * i2; q = m + 1
            a(f"v_mul_f32 v{m}, s47, v{m}")
            a(f"v_mul_f32 v{q}, s47, v{q}")
            a(f"v_fma_f32 v{q}, -v{m}, v{m}, v{q}")
            a(f"v_max_f32 v{q}, 0, v{q}")
            a(f"v_add_f32 v{TMP}, s48, v{q}")
            a(f"v_rsq_f32 v{TMP}, v{TMP}")
            a("s_nop 0")
            a(f"v_mul_f32 v{q}, v{q}, v{TMP}")
            a(f"v_fma_f32 v{q}, v{q}, v{TMP}, s48")
            a(f"v_rsq_f32 v{q}, v{q}")
            a("s_nop 0")
            a(f"v_mul_f32 v{q}, v{q}, v{TMP}")
            a(f"v_mul_f32 v{m}, v{m}, v{q}")
            a(f"v_sub_f32 v{m}, 0, v{m}")
            a(f"ds_write_b32 v14, v{q} offset:{256*i2}")
            a(f"ds_write_b32 v14, v{m} offset:{1024+256*i2}")
        a("s_waitcnt lgkmcnt(0)")
    def wreads(slot, fs):
        for nt in range(4):
            for half in range(2):
                a(f"ds_read_b64_tr_b16 {vr(WF+16*fs+4*nt+2*half,2)}, v{6+nt} offset:{slot*4096+half*2048}")
    def treads():
        a(f"ds_read_b128 {vr(TT,4)}, v15")
        a(f"ds_read_b128 {vr(TT+4,4)}, v15 offset:64")
        a(f"ds_read_b128 {vr(TT+8,4)}, v15 offset:1024")
        a(f"ds_read_b128 {vr(TT+12,4)}, v15 offset:1088")
        a("v_add_u32 v15, 128, v15")
    def norm_ops(slot, fs):
        ops = []
        for dt in range(5):
            for dw in range(4):
                r = XR + 20 * slot + 4 * dt + dw
                e = (dw % 2) * 2 + (dw // 2) * 4
                t0 = TMP + 2 * (dw % 2); t1 = t0 + 1
                ops.append(f"v_lshlrev_b32 v{t0}, 16, v{r}")
                ops.append(f"v_and_b32 v{t1}, s46, v{r}")
                ops.append(f"v_fma_f32 v{t0}, v{t0}, v{TT+e}, v{TT+8+e}")
                ops.append(f"v_fma_f32 v{t1}, v{t1}, v{TT+e+1}, v{TT+8+e+1}")
                ops.append(f"v_cvt_pk_bf16_f32 v{XN+20*fs+4*dt+dw}, v{t0}, v{t1}")
        return ops
    def mfma_list(slot, fs):
        l = []
        for dt in range(5):
            x = (XN + 20 * fs + 4 * dt) if norm else (XR + 20 * slot + 4 * dt)
            for nt in range(4):
                w = WF + 16 * fs + 4 * nt
                t = 4 * (dt * 4 + nt)
                l.append(f"v_mfma_f32_16x16x32_bf16 a[{t}:{t+3}], {vr(w,4)}, {vr(x,4)}, a[{t}:{t+3}]")
        return l
    def upd_loads():
        a("s_sub_i32 s49, s49, 1")
        a("s_cmp_gt_i32 s49, 0")
        a("s_cselect_b32 s22, s22, 0")
        a("s_cselect_b32 s62, s62, 0")
    def norm_step(nu, nfs, ml):
        treads()
        wreads(nu, nfs)
        ops = norm_ops(nu, nfs)
        xo = x_ops(nu); wo = w_ops(nu)
        k = 0
        for m in ml[:3]: a(m); k += 1
        a("s_waitcnt lgkmcnt(8)")
        for idx, op in enumerate(ops):
            a(op)
            if idx % 6 == 5 and k < len(ml):
                a(ml[k]); k += 1
            if idx % 20 == 19:
                emit_ops([xo.pop(0)], True)
            if idx == 30: a("s_waitcnt lgkmcnt(0)")
            if idx in (40, 55, 70, 85):
                emit_ops([wo.pop(0)], True)
        while k < len(ml): a(ml[k]); k += 1
        assert not xo and not wo
        upd_loads()
    def wait_vm(n):
        a(f"s_waitcnt vmcnt({n}) lgkmcnt(0)")
    if NW == 8 and os.environ.get("K4PRIO", "1") != "0":
        a("s_cmp_lt_u32 s32, 4")
        a(f"s_cbranch_scc1 L_{name}_np")
        a("s_setprio 1")
        a.label(f"L_{name}_np")
    a(f"s_waitcnt vmcnt({9*(U-1)+NE})")
    if norm:
        norm_step(0, 0, [])
    else:
        wreads(0, 0)
    S.stamp()
    a.label(f"L_{name}_loop")
    for u in range(U):
        fs = u % 2; nu = (u + 1) % U; nfs = 1 - fs
        if norm:
            if u == U - 1:
                a("s_cmp_eq_u32 s36, 1")
                a(f"s_cbranch_scc1 L_{name}_last")
            wait_vm(9*(U-1))
            norm_step(nu, nfs, mfma_list(u, fs))
        else:
            wait_vm(9*(U-2))
            wreads(nu, nfs)
            xo = x_ops(u); wo = w_ops(u)
            for idx, m in enumerate(mfma_list(u, fs)):
                a(m)
                if idx % 4 == 3: emit_ops([xo.pop(0)], True)
                if idx % 4 == 1 and wo: emit_ops([wo.pop(0)], True)
            assert not xo and not wo
            upd_loads()
        if NW == 8 and os.environ.get("K4PRIO", "1") != "0":
            a(f"s_cmp_lg_u32 s36, {int(os.environ.get('K4OFF', '3'))}")
            lab[0] += 1
            a(f"s_cbranch_scc1 L_{name}_g{lab[0]}")
            a("s_setprio 0")
            a.label(f"L_{name}_g{lab[0]}")
        a("s_sub_u32 s36, s36, 1")
        a("s_cmp_eq_u32 s36, 0")
        if u < U - 1: a(f"s_cbranch_scc1 L_{name}_done")
        else: a(f"s_cbranch_scc0 L_{name}_loop")
    if norm:
        a(f"s_branch L_{name}_done")
        a.label(f"L_{name}_last")
        a("s_waitcnt lgkmcnt(0)")
        for m in mfma_list(U - 1, (U - 1) % 2): a(m)
    a.label(f"L_{name}_done")
    S.stamp()
    a("s_waitcnt vmcnt(0) lgkmcnt(0)")
    if norm:
        srd(a, 56, 8, 9, WBYTES)
        a("s_lshr_b32 s43, s2, 3")
        a("s_lshl_b32 s43, s43, 3")
        a("s_add_u32 s43, s43, s32")
        a(f"s_mul_i32 s43, s43, {8*4096}")
        a("s_and_b32 s44, s2, 7")
        a("s_lshl_b32 s44, s44, 7")
        a("s_add_u32 s43, s43, s44")
        a("v_lshrrev_b32 v10, 3, v0")
        a("v_lshlrev_b32 v10, 12, v10")
        a("v_and_b32 v11, 7, v0")
        a("v_lshl_add_u32 v10, v11, 4, v10")
        for j in range(4):
            a(f"buffer_load_dwordx4 v[20:23], v10, s[56:59], s43 offen offset:{1024*j}")
    elif layer == 0:
        srd(a, 56, 10, 11, 819200)
        per = 819200 // (32 * NW)
        a("s_lshr_b32 s43, s2, 3")
        a(f"s_mul_i32 s43, s43, {NW}")
        a("s_add_u32 s43, s43, s32")
        a(f"s_mul_i32 s43, s43, {per}")
        for j in range((per + 1023) // 1024):
            if j == 4: a("s_add_u32 s43, s43, 4096")
            a(f"buffer_load_dwordx4 v[20:23], v3, s[56:59], s43 offen offset:{min(1024*j, per-1024) - (4096 if j >= 4 else 0)}")
    code_prefetch(a, NW, 12, 20)
    a("s_barrier")
    OWN = 88
    for o in range(NW):
        dts = own_dts(o); nt = o % 4
        a(f"s_cmp_eq_u32 s32, {o}")
        a(f"s_cbranch_scc1 L_{name}_own{o}")
        a(f"s_sub_u32 s43, s32, {o+1}")
        a(f"s_and_b32 s43, s43, {NW-1}")
        a(f"s_mul_i32 s43, s43, {len(dts)*1024}")
        a(f"s_add_u32 s43, s43, {own_base[o]}")
        a("v_add_u32 v10, s43, v3")
        for j, dt in enumerate(dts):
            t = 4 * (dt * 4 + nt)
            a(f"ds_write_b128 v10, a[{t}:{t+3}] offset:{j*1024}")
        a(f"s_branch L_{name}_nx{o}")
        a.label(f"L_{name}_own{o}")
        for j, dt in enumerate(dts):
            for r in range(4):
                a(f"v_accvgpr_read_b32 v{OWN+4*j+r}, a{4*(dt*4+nt)+r}")
        for r in range(4 * len(dts), 4 * MT): a(f"v_mov_b32 v{OWN+r}, 0")
        a(f"s_mov_b32 s54, {own_base[o]}")
        a(f"s_mov_b32 s55, {len(dts)*1024}")
        a.label(f"L_{name}_nx{o}")
    a("s_waitcnt lgkmcnt(0)")
    a("s_barrier")
    a("v_add_u32 v10, s54, v3")
    BI = 40
    a(f"v_lshlrev_b32 v{BI}, 16, v{EB}")
    a(f"v_and_b32 v{BI+1}, s46, v{EB}")
    a(f"v_lshlrev_b32 v{BI+2}, 16, v{EB+1}")
    a(f"v_and_b32 v{BI+3}, s46, v{EB+1}")
    if NW == 8: PRS = [108, 120, 132, 144, 156, 48, 60]
    else: PRS = [108, 128, 148]
    issued = 0; done = 0
    for sidx in range(NS):
        for j in range(MT):
            a(f"ds_read_b128 {vr(PRS[sidx]+4*j,4)}, v10 offset:{j*1024}")
        issued += 1
        if sidx < NS - 1: a("v_add_u32 v10, s55, v10")
        if (issued - done) * MT >= 12 and sidx < NS - 1:
            a(f"s_waitcnt lgkmcnt({(issued-done-1)*MT})")
            for r in range(4 * MT): a(f"v_add_f32 v{OWN+r}, v{OWN+r}, v{PRS[done]+r}")
            done += 1
    while done < NS:
        a(f"s_waitcnt lgkmcnt({(NS-done-1)*MT})")
        for r in range(4 * MT): a(f"v_add_f32 v{OWN+r}, v{OWN+r}, v{PRS[done]+r}")
        done += 1
    S.stamp()
    E0 = 112
    if norm:
        c1 = -2.0 * math.log2(math.e) * 0.7978845608028654
        c2 = c1 * 0.044715
        a(f"s_mov_b32 s47, {hex(f2u(c1))}")
        a(f"s_mov_b32 s48, {hex(f2u(c2))}")
        a("v_mov_b32 v44, s47")
        a(f"s_mul_i32 s43, s33, {5*55296}")
        a(f"s_mul_i32 s44, s53, {3*55296}")
        a("s_add_u32 s43, s43, s44")
        a("s_lshl_b32 s44, s34, 11")
        a("s_add_u32 s43, s43, s44")
        a("s_lshr_b32 s44, s52, 1")
        a("s_lshl_b32 s44, s44, 10")
        a("s_add_u32 s43, s43, s44")
        a("s_and_b32 s44, s52, 1")
        a("s_lshl_b32 s44, s44, 3")
        a("s_add_u32 s43, s43, s44")
        a(f"s_add_u32 s43, s43, {GF_OFF}")
        for j in range(MT):
            if NW == 8 and j == 2:
                a("s_cmp_lg_u32 s53, 0")
                a(f"s_cbranch_scc1 L_{name}_fin")
            for r in range(4):
                u = OWN + 4 * j + r
                a(f"v_add_f32 v{u}, v{u}, v{BI+r}")
            for r in range(4):
                u = OWN + 4 * j + r; t = E0 + r
                a(f"v_mul_f32 v{t}, v{u}, v{u}")
            for r in range(4):
                t = E0 + r
                a(f"v_fma_f32 v{t}, v{t}, s48, v44")
            for r in range(4):
                u = OWN + 4 * j + r; t = E0 + r
                a(f"v_mul_f32 v{t}, v{t}, v{u}")
            for r in range(4): a(f"v_exp_f32 v{E0+r}, v{E0+r}")
            for r in range(4): a(f"v_add_f32 v{E0+r}, 1.0, v{E0+r}")
            for r in range(4): a(f"v_rcp_f32 v{E0+r}, v{E0+r}")
            for r in range(4):
                u = OWN + 4 * j + r
                a(f"v_mul_f32 v{u}, v{u}, v{E0+r}")
            o = E0 + 6 + 2 * j
            a(f"v_cvt_pk_bf16_f32 v{o}, v{OWN+4*j}, v{OWN+4*j+1}")
            a(f"v_cvt_pk_bf16_f32 v{o+1}, v{OWN+4*j+2}, v{OWN+4*j+3}")
            a(f"buffer_store_dwordx2 {vr(o,2)}, v3, s[28:31], s43 offen")
            if j < MT - 1: a("s_add_u32 s43, s43, 55296")
    else:
        a("s_mul_i32 s43, s52, 2560")
        a(f"s_add_u32 s43, s43, {TR}")
        a("s_mul_i32 s44, s53, 96")
        a("s_add_u32 s44, s44, s43")
        a("v_mul_u32_u24 v10, 640, v2")
        a("v_lshl_add_u32 v10, v1, 1, v10")
        a("v_add_u32 v10, s44, v10")
        for j in range(MT):
            if NW == 8 and j == 2:
                a("s_cmp_lg_u32 s53, 0")
                a(f"s_cbranch_scc1 L_{name}_tr")
            for h in range(2):
                rr = EB + 2 + 2 * j + h
                a(f"v_lshlrev_b32 v{E0}, 16, v{rr}")
                a(f"v_and_b32 v{E0+1}, s46, v{rr}")
                u = OWN + 4 * j + 2 * h
                a(f"v_add_f32 v{u}, v{u}, v{BI+2*h}")
                a(f"v_add_f32 v{u+1}, v{u+1}, v{BI+2*h+1}")
                a(f"v_add_f32 v{E0}, v{E0}, v{u}")
                a(f"v_add_f32 v{E0+1}, v{E0+1}, v{u+1}")
                a(f"v_cvt_pk_bf16_f32 v{E0+2+h}, v{E0}, v{E0+1}")
                a(f"ds_write_b16 v10, v{E0+2+h} offset:{(2*h)*160 + 32*j}")
                a(f"ds_write_b16_d16_hi v10, v{E0+2+h} offset:{(2*h+1)*160 + 32*j}")
        a.label(f"L_{name}_tr")
        NCH = 2 if NW == 8 else 3
        LASTN = 16 if NW == 8 else 32
        a("s_lshl_b32 s44, s34, 6")
        a("s_lshl_b32 s45, s52, 4")
        a("s_add_u32 s44, s44, s45")
        a("s_mul_i32 s44, s44, 1280")
        a("s_mul_i32 s45, s33, 160")
        a("s_add_u32 s44, s44, s45")
        a("s_mov_b32 s47, 6554")
        a("s_movk_i32 s48, 1280")
        a("s_mul_i32 s45, s53, 80")
        a("v_add_u32 v12, s45, v0")
        a("v_lshlrev_b32 v11, 4, v12")
        a("v_add_u32 v11, s43, v11")
        for j in range(NCH):
            if j: a("v_add_u32 v12, 64, v12")
            a("v_mul_lo_u32 v13, v12, s47")
            a("v_lshrrev_b32 v13, 16, v13")
            a("v_mul_u32_u24 v14, 10, v13")
            a("v_sub_u32 v14, v12, v14")
            a("v_mul_lo_u32 v13, v13, s48")
            a(f"v_lshl_add_u32 v{16+j}, v14, 4, v13")
        a("s_waitcnt lgkmcnt(0)")
        if NW == 8: a("s_barrier")
        for j in range(NCH):
            a(f"ds_read_b128 {vr(120+4*j,4)}, v11 offset:{1024*j}")
        a("s_waitcnt lgkmcnt(0)")
        for j in range(NCH):
            if j == NCH - 1:
                a(f"v_cmp_gt_u32 vcc, {LASTN}, v0")
                a("s_and_saveexec_b64 s[46:47], vcc")
            a(f"buffer_store_dwordx4 {vr(120+4*j,4)}, v{16+j}, s[16:19], s44 offen")
    a.label(f"L_{name}_fin")
    S.stamp(); S.real(); S.flush()
    a.label(f"L_{name}_end")
    a("s_endpgm")
    kdt = kd(name, NV + 80).replace(f".amdhsa_accum_offset {NV+80}", f".amdhsa_accum_offset {NV}")
    return name, a.text(), kdt, f"; @launch kernel={name} grid=({NWG},1,1) block=({64*NW},1,1) lds={LDS}"

if "--stamps" in sys.argv:
    STAMPS = True; sys.argv.remove("--stamps")
KERNELS = []
ATT = gen_attn()
M1 = gen_mlp(1, 0)
for L in range(2):
    KERNELS += [gen_qkv(L), ATT[L], M1, gen_mlp(2, L)]

def emit(kernels, path, order=None):
    launches = [k[3] for k in kernels] if order is None else order
    hdr = open("interleave_layers__grouped_kv_mqa__mixer_token_mlp__prompt.s.ref").read().split("; Override")[0]
    out = hdr + "\n".join(launches) + "\n"
    out += '.amdgcn_target "amdgcn-amd-amdhsa--gfx950"\n.text\n.p2align 8\nL_text_start:\n'
    seen = set()
    for k in kernels:
        if k[0] in seen: continue
        seen.add(k[0]); out += k[1]
    out += 'L_text_end:\n'
    out += '.section .rodata,"a"\n'
    seen = set()
    for k in kernels:
        if k[0] in seen: continue
        seen.add(k[0]); out += k[2]
    open(path, "w").write(out)

if __name__ == "__main__":
    emit(KERNELS, sys.argv[1] if len(sys.argv) > 1 else "k.s")
```

```python
import struct, sys, math, os

def f2u(x): return struct.unpack("<I", struct.pack("<f", x))[0]

QT_OFF   = 0
KV_OFF   = 0x300000
OF_OFF   = 0x400000
X1T_OFF  = 0x700000
ST_OFF   = 0xA00000
GF_OFF   = 0xB00000
X2_OFF   = 0xE00000
CNT_OFF  = 0xA80000
WS_SIZE  = 0x10000000
GDT = 56 * 1024
KVT = 2624
XBYTES = 2048 * 640 * 2

class Asm:
    def __init__(self): self.l = []
    def __call__(self, s):
        for x in s.strip("\n").split("\n"):
            self.l.append("    " + x.strip())
    def label(self, n): self.l.append(n + ":")
    def raw(self, s): self.l.append(s)
    def text(self): return "\n".join(self.l) + "\n"

def vr(b, n=1): return f"v{b}" if n == 1 else f"v[{b}:{b+n-1}]"
def sr(b, n=1): return f"s{b}" if n == 1 else f"s[{b}:{b+n-1}]"

def srd(a, d, lo, hi, nbytes):
    a(f"s_mov_b32 s{d}, s{lo}")
    a(f"s_and_b32 s{d+1}, s{hi}, 0xffff")
    a(f"s_mov_b32 s{d+2}, {hex(nbytes)}")
    a(f"s_mov_b32 s{d+3}, 0x00020000")

def header(a, name):
    a.raw(f".globl {name}\n.p2align 8\n.type {name},@function\n{name}:")

def kd(name, nv, ns=102):
    acc = (nv + 3) // 4 * 4
    return f""".p2align 6
.amdhsa_kernel {name}
  .amdhsa_next_free_vgpr {nv}
  .amdhsa_next_free_sgpr {ns}
  .amdhsa_accum_offset {acc}
  .amdhsa_group_segment_fixed_size 0
  .amdhsa_kernarg_size 104
  .amdhsa_user_sgpr_count 2
  .amdhsa_user_sgpr_kernarg_segment_ptr 1
  .amdhsa_system_sgpr_workgroup_id_x 1
.end_amdhsa_kernel
"""

STAMPS = False
DBG_OFF = 0x8000000
class Stamper:
    def __init__(self, a, kidx, maxw): self.a = a; self.n = 0; self.kidx = kidx; self.maxw = maxw
    def stamp(self):
        if not STAMPS: return
        self.a(f"s_memtime s[{72+2*self.n}:{73+2*self.n}]"); self.n += 1
    def real(self):
        if not STAMPS: return
        self.a(f"s_memrealtime s[{72+2*self.n}:{73+2*self.n}]"); self.n += 1
    def flush(self, wave_s="s32", srd_="s[28:31]"):
        if not STAMPS: return
        a = self.a
        a("s_mov_b64 exec, -1")
        a("s_waitcnt lgkmcnt(0) vmcnt(0)")
        a(f"s_mul_i32 s58, s2, {self.maxw}")
        a(f"s_add_u32 s58, s58, {wave_s}")
        a("s_lshl_b32 s58, s58, 6")
        a(f"s_add_u32 s58, s58, {DBG_OFF + self.kidx * 0x100000}")
        a("v_mov_b32 v0, 0")
        for i in range(self.n):
            a(f"v_mov_b32 v1, s{72+2*i}")
            a(f"buffer_store_dword v1, v0, {srd_}, s58 offen offset:{4*i}")
        a("s_waitcnt vmcnt(0)")

_pfn = [0]
def code_prefetch(a, nw, vaddr, vdst):
    if os.environ.get("CODEPF", "1") != "1": return
    _pfn[0] += 1
    L = f"L_pc_ref{_pfn[0]}"
    a("s_getpc_b64 s[90:91]")
    a.label(L)
    a(f"s_sub_u32 s90, s90, {L} - L_text_start")
    a("s_subb_u32 s91, s91, 0")
    a("s_lshr_b32 s92, s2, 3")
    a(f"s_mul_i32 s92, s92, {nw}")
    a("s_add_u32 s92, s92, s32")
    a("s_lshl_b32 s92, s92, 9")
    a("s_min_u32 s92, s92, L_text_end - L_text_start - 512")
    a("s_add_u32 s90, s90, s92")
    a("s_addc_u32 s91, s91, 0")
    a(f"v_lshlrev_b32 v{vaddr}, 3, v0")
    a(f"global_load_dwordx2 v[{vdst}:{vdst+1}], v{vaddr}, s[90:91]")

def mfma16(a, d, x, y, c=None):
    c = vr(d, 4) if c is None else c
    a(f"v_mfma_f32_16x16x32_bf16 {vr(d,4)}, {vr(x,4)}, {vr(y,4)}, {c}")

def gen_qkv():
    name = "qkv0_kernel"
    a = Asm()
    header(a, "qkv1_kernel")
    a("s_mov_b32 s99, 1")
    a("s_branch L_qkv_body")
    header(a, name)
    a("s_mov_b32 s99, 0")
    a.label("L_qkv_body")
    WB = 0; WST = 20480
    XB = 61440; XST = 16384
    WKV = 110592
    MISC = 136192
    LDS = MISC + 512
    a(f"s_cmp_ge_u32 s2, 256")
    a(f"s_cbranch_scc1 L_{name}_end")
    S = Stamper(a, 0, 8); S.real(); S.stamp()
    a(f"s_load_dwordx4 s[4:7], s[0:1], 0")
    a(f"s_load_dwordx4 s[8:11], s[0:1], 16")
    a(f"s_load_dwordx2 s[12:13], s[0:1], 96")
    a("v_lshrrev_b32 v1, 6, v0")
    a("v_and_b32 v0, 63, v0")
    a("v_readfirstlane_b32 s32, v1")
    a("s_and_b32 s33, s2, 7")
    a("s_lshr_b32 s34, s2, 3")
    a("s_and_b32 s34, s34, 3")
    a("s_lshl_b32 s34, s34, 3")
    a("s_add_u32 s33, s33, s34")
    a("s_lshr_b32 s34, s2, 5")
    a("s_movk_i32 s38, 1280")
    a("s_cmp_ge_u32 s32, 4")
    a(f"s_cbranch_scc1 L_{name}_p0")
    a("v_and_b32 v1, 15, v0")
    a("v_lshrrev_b32 v2, 4, v0")
    a("s_lshl_b32 s42, s32, 12")
    a("v_lshrrev_b32 v10, 1, v1")
    a("v_and_b32 v10, 7, v10")
    a("v_lshrrev_b32 v11, 1, v2")
    a("v_and_b32 v12, 1, v2")
    a("v_lshlrev_b32 v13, 7, v1")
    a("v_lshl_add_u32 v13, v12, 3, v13")
    a("v_add_u32 v13, s42, v13")
    a(f"v_add_u32 v13, {XB}, v13")
    for h in range(2):
        for sec in range(2):
            a(f"v_add_u32 v15, {4*h + 2*sec}, v11")
            a("v_xor_b32 v15, v15, v10")
            a(f"v_lshl_add_u32 v{16 + 2*h + sec}, v15, 4, v13")
    a("v_lshrrev_b32 v10, 2, v1")
    a("v_lshl_add_u32 v10, v2, 2, v10")
    a("v_and_b32 v11, 3, v1")
    a("v_lshlrev_b32 v11, 3, v11")
    a("v_mul_u32_u24 v12, 160, v10")
    a("v_add_u32 v20, v12, v11")
    a("s_lshl_b32 s43, s32, 5")
    a("v_add_u32 v21, s43, v20")
    a("v_mul_u32_u24 v12, 40, v10")
    a("v_add_u32 v12, v12, v11")
    a(f"v_add_u32 v22, {WKV}, v12")
    ONES = 24
    ACC = 28
    CS4 = 56; CS5 = 60; CS6 = 64; CSO = 68; RS = 72; GR = 76
    FR = 80
    for r in range(4): a(f"v_mov_b32 v{ONES+r}, 0x3f803f80")
    for r in range(ACC, 80): a(f"v_mov_b32 v{r}, 0")
    a("s_waitcnt lgkmcnt(0)")
    srd(a, 28, 12, 13, WS_SIZE)
    a("s_cmp_ge_u32 s34, 2")
    a(f"s_cbranch_scc1 L_{name}_nokv")
    a("s_cmp_eq_u32 s34, 0")
    a("s_cselect_b32 s14, s8, s10")
    a("s_cselect_b32 s15, s9, s11")
    srd(a, 24, 14, 15, 25600)
    a("v_lshlrev_b32 v14, 4, v0")
    a("s_lshl_b32 s43, s32, 10")
    a.label(f"L_{name}_kvl")
    a(f"s_add_u32 s44, s43, {WKV}")
    a("s_mov_b32 m0, s44")
    a("s_nop 0")
    a("buffer_load_dwordx4 v14, s[24:27], s43 offen lds")
    a("s_add_u32 s43, s43, 4096")
    a("s_cmp_lt_u32 s43, 25600")
    a(f"s_cbranch_scc1 L_{name}_kvl")
    a("s_waitcnt vmcnt(0)")
    a.label(f"L_{name}_nokv")
    a("s_cmp_lt_u32 s34, 2")
    a("s_cselect_b64 vcc, -1, 0")
    a("s_mov_b32 s41, 0")
    a(f"s_mov_b32 s46, {XST}")
    a(f"s_mov_b32 s47, {WST}")
    def reads(ks4, fs):
        b = FR + 36 * fs
        kb = ks4 // 2; h = ks4 % 2
        a(f"ds_read_b64 {vr(b,2)}, v{16+2*h} offset:{kb*2048}")
        a(f"ds_read_b64 {vr(b+2,2)}, v{17+2*h} offset:{kb*2048}")
        for nt in range(5):
            for half in range(2):
                off = (32 * ks4 + 16 * half) * 160 + 32 * nt
                a(f"ds_read_b64_tr_b16 {vr(b+4+4*nt+2*half,2)}, v20 offset:{off}")
        for half in range(2):
            a(f"ds_read_b64_tr_b16 {vr(b+32+2*half,2)}, v21 offset:{(32 * ks4 + 16 * half) * 160}")
    def kvreads(ks4, fs):
        b = FR + 36 * fs
        for t in range(2):
            for half in range(2):
                a(f"ds_read_b64_tr_b16 {vr(b+24+4*t+2*half,2)}, v22 offset:{(32 * ks4 + 16 * half) * 40 + 32 * t}")
    a.label(f"L_{name}_stage")
    a("s_barrier")
    reads(0, 0)
    a(f"s_cbranch_vccz L_{name}_k0")
    kvreads(0, 0)
    a.label(f"L_{name}_k0")
    for ks4 in range(4):
        fs = ks4 % 2; b = FR + 36 * fs
        a("s_waitcnt lgkmcnt(0)")
        if ks4 < 3: reads(ks4 + 1, 1 - fs)
        for nt in range(5): mfma16(a, ACC + 4 * nt, b + 4 + 4 * nt, b)
        mfma16(a, CS4, b + 4 + 16, ONES)
        mfma16(a, CSO, b + 32, ONES)
        mfma16(a, RS, ONES, b)
        mfma16(a, GR, b, b)
        a(f"s_cbranch_vccz L_{name}_k{ks4+1}")
        if ks4 < 3: kvreads(ks4 + 1, 1 - fs)
        mfma16(a, ACC + 20, b + 24, b)
        mfma16(a, ACC + 24, b + 28, b)
        mfma16(a, CS5, b + 24, ONES)
        mfma16(a, CS6, b + 28, ONES)
        a.label(f"L_{name}_k{ks4+1}")
    a("s_cmp_eq_u32 s41, 2")
    a(f"s_cselect_b32 s43, {(-2*XST) & 0xffffffff}, s46")
    a(f"s_cselect_b32 s44, {(-2*WST) & 0xffffffff}, s47")
    for r in range(4): a(f"v_add_u32 v{16+r}, s43, v{16+r}")
    a("v_add_u32 v20, s44, v20")
    a("v_add_u32 v21, s44, v21")
    a(f"v_add_u32 v22, {128*40}, v22")
    a("s_add_u32 s41, s41, 1")
    a("s_cmp_lt_u32 s41, 5")
    a(f"s_cbranch_scc1 L_{name}_stage")
    a(f"s_branch L_{name}_epi")
    a.label(f"L_{name}_p0")
    a("s_sub_u32 s32, s32, 4")
    a("s_mul_i32 s36, s34, 160")
    a("s_mov_b32 s37, 6554")
    for r in range(5):
        a(f"v_add_u32 v10, {64*r}, v0")
        a("v_mul_lo_u32 v11, v10, s37")
        a("v_lshrrev_b32 v11, 16, v11")
        a("v_mul_u32_u24 v12, 10, v11")
        a("v_sub_u32 v12, v10, v12")
        a("v_mul_lo_u32 v11, v11, s38")
        a("v_lshl_add_u32 v11, v12, 4, v11")
        a(f"v_add_u32 v11, s36, v11")
        a(f"v_subrev_u32 v{4+r}, {1024*(r%4)}, v11")
    a("v_lshrrev_b32 v10, 3, v0")
    a("v_and_b32 v11, 7, v0")
    for rh in range(2):
        a(f"v_add_u32 v12, {8*rh}, v10")
        a("v_lshrrev_b32 v13, 1, v12")
        a("v_and_b32 v13, 7, v13")
        a("v_xor_b32 v13, v13, v11")
        a("v_mul_lo_u32 v12, v12, s38")
        a(f"v_lshl_add_u32 v12, v13, 4, v12")
        for kb in range(2):
            a(f"v_add_u32 v{16+2*kb+rh}, {(kb*128 - kb*2048 - rh*1024 + 4096)}, v12")
    a(f"s_mul_i32 s40, s32, {32*1280}")
    a("s_mul_i32 s41, s32, 5120")
    a("s_mul_i32 s42, s33, 81920")
    a(f"s_mul_i32 s43, s32, {16*1280}")
    a("s_add_u32 s42, s42, s43")
    a("s_lshl_b32 s43, s32, 12")
    a(f"s_add_u32 s43, s43, {XB}")
    a("s_waitcnt lgkmcnt(0)")
    srd(a, 20, 6, 7, 819200)
    a(f"s_add_u32 s14, s12, {hex(X2_OFF)}")
    a("s_addc_u32 s15, s13, 0")
    a("s_cmp_eq_u32 s99, 0")
    a("s_cselect_b32 s4, s4, s14")
    a("s_cselect_b32 s5, s5, s15")
    a("s_sub_u32 s4, s4, 4096")
    a("s_subb_u32 s5, s5, 0")
    srd(a, 16, 4, 5, XBYTES + 4096)
    def p_stage():
        a("s_mov_b32 m0, s43")
        a("s_add_u32 s45, s41, 4096")
        for kb in range(2):
            for rh in range(2):
                a(f"buffer_load_dwordx4 v{16+2*kb+rh}, s[16:19], s42 offen offset:{kb*2048+rh*1024} lds")
        a("s_mov_b32 m0, s41")
        a("s_add_u32 s42, s42, 256")
        for r in range(4):
            a(f"buffer_load_dwordx4 v{4+r}, s[20:23], s40 offen offset:{1024*r} lds")
        a("s_mov_b32 m0, s45")
        a(f"s_add_u32 s41, s41, {WST}")
        a("buffer_load_dwordx4 v8, s[20:23], s40 offen lds")
        a(f"s_add_u32 s40, s40, {128*1280}")
        a(f"s_add_u32 s43, s43, {XST}")
    p_stage(); p_stage(); p_stage()
    a(f"s_sub_u32 s41, s41, {3*WST}")
    a(f"s_sub_u32 s43, s43, {3*XST}")
    a("s_waitcnt vmcnt(18)"); a("s_barrier")
    a("s_waitcnt vmcnt(9)"); a("s_barrier")
    p_stage()
    a("s_waitcnt vmcnt(9)"); a("s_barrier")
    p_stage()
    a("s_waitcnt vmcnt(9)"); a("s_barrier")
    a("s_waitcnt vmcnt(0)"); a("s_barrier")
    code_prefetch(a, 4, 20, 22)
    a("s_barrier")
    a(f"s_branch L_{name}_end")
    a.label(f"L_{name}_epi")
    S.stamp()
    a("s_nop 7")
    a("s_nop 7")
    a("v_lshlrev_b32 v10, 4, v2")
    a("s_lshl_b32 s43, s32, 6")
    a(f"s_add_u32 s43, s43, {MISC}")
    a("v_add_u32 v11, s43, v10")
    a("v_cmp_eq_u32 vcc, 0, v1")
    a("s_and_saveexec_b64 s[46:47], vcc")
    a(f"ds_write_b128 v11, {vr(CSO,4)}")
    a("s_mov_b64 exec, s[46:47]")
    a("v_and_b32 v12, 3, v1")
    a(f"v_mov_b32 v13, v{GR}")
    for r in range(1, 4):
        a(f"v_cmp_eq_u32 vcc, {r}, v12")
        a("s_nop 1")
        a(f"v_cndmask_b32 v13, v13, v{GR+r}, vcc")
    a("v_lshrrev_b32 v12, 2, v1")
    a("v_lshl_add_u32 v12, v12, 4, v1")
    a("v_lshlrev_b32 v12, 2, v12")
    a("ds_bpermute_b32 v13, v12, v13")
    a("s_waitcnt lgkmcnt(0)")
    a("s_barrier")
    a(f"v_add_u32 v11, {MISC}, v10")
    CSX = FR
    for nt in range(4): a(f"ds_read_b128 {vr(CSX+4*nt,4)}, v11 offset:{64*nt}")
    a(f"s_mov_b32 s43, {hex(f2u(1.0/640))}")
    a(f"v_mul_f32 v14, s43, v{RS}")
    a("v_mul_f32 v13, s43, v13")
    a("v_fma_f32 v13, -v14, v14, v13")
    a("v_max_f32 v13, 0, v13")
    a(f"v_add_f32 v13, {hex(f2u(1e-5))}, v13")
    a("v_rsq_f32 v15, v13")
    a("s_nop 0")
    qs = (20 ** -0.5) * math.log2(math.e)
    a(f"v_mul_f32 v23, {hex(f2u(qs))}, v15")
    a("s_waitcnt lgkmcnt(0)")
    a("s_lshl_b32 s43, s33, 2")
    a("s_add_u32 s43, s43, s32")
    a("s_mul_i32 s44, s43, 20480")
    a("s_mul_i32 s45, s34, 2560")
    a("s_add_u32 s44, s44, s45")
    a(f"s_add_u32 s44, s44, {QT_OFF}")
    a("v_lshlrev_b32 v10, 3, v0")
    T = FR + 16
    for nt in range(5):
        cs = CSX + 4 * nt if nt < 4 else CS4
        for r in range(4):
            a(f"v_fma_f32 v{T+r}, -v14, v{cs+r}, v{ACC+4*nt+r}")
            a(f"v_mul_f32 v{T+r}, v23, v{T+r}")
        a(f"v_cvt_pk_bf16_f32 v{T+4+2*nt}, v{T}, v{T+1}")
        a(f"v_cvt_pk_bf16_f32 v{T+5+2*nt}, v{T+2}, v{T+3}")
        a(f"buffer_store_dwordx2 {vr(T+4+2*nt,2)}, v10, s[28:31], s44 offen offset:{512*nt}")
    a("s_cmp_lg_u32 s32, 0")
    a(f"s_cbranch_scc1 L_{name}_nozero")
    a("v_cmp_gt_u32 vcc, 16, v0")
    a("s_and_saveexec_b64 s[46:47], vcc")
    a("v_mov_b32 v11, 0")
    a("v_lshlrev_b32 v12, 2, v0")
    a("s_lshl_b32 s45, s2, 6")
    a(f"s_add_u32 s45, s45, {ST_OFF}")
    a("buffer_store_dword v11, v12, s[28:31], s45 offen")
    a("s_and_b32 s45, s2, 63")
    a("s_lshl_b32 s45, s45, 8")
    a(f"s_add_u32 s45, s45, {CNT_OFF}")
    a("buffer_store_dword v11, v12, s[28:31], s45 offen")
    a("s_mov_b64 exec, s[46:47]")
    a.label(f"L_{name}_nozero")
    a("s_cmp_ge_u32 s34, 2")
    a(f"s_cbranch_scc1 L_{name}_fin")
    for t, cs in ((0, CS5), (1, CS6)):
        for r in range(4):
            a(f"v_fma_f32 v{T+4*t+r}, -v14, v{cs+r}, v{ACC+20+4*t+r}")
            a(f"v_mul_f32 v{T+4*t+r}, v15, v{T+4*t+r}")
    a("s_lshl_b32 s43, s33, 1")
    a("s_lshr_b32 s44, s32, 1")
    a("s_add_u32 s43, s43, s44")
    a(f"s_mul_i32 s43, s43, {KVT}")
    a(f"s_add_u32 s43, s43, {KV_OFF}")
    a("s_and_b32 s44, s32, 1")
    a("s_cmp_lg_u32 s34, 0")
    a(f"s_cbranch_scc1 L_{name}_vstore")
    a(f"v_cvt_pk_bf16_f32 v{T+8}, v{T}, v{T+1}")
    a(f"v_cvt_pk_bf16_f32 v{T+9}, v{T+2}, v{T+3}")
    a(f"v_cvt_pk_bf16_f32 v{T+10}, v{T+4}, v{T+5}")
    a(f"v_cvt_pk_bf16_f32 v{T+11}, v{T+6}, v{T+7}")
    a("s_lshl_b32 s45, s44, 4")
    a("v_add_u32 v10, s45, v1")
    a("v_lshrrev_b32 v11, 1, v2")
    a("v_lshlrev_b32 v11, 9, v11")
    a("v_lshl_add_u32 v11, v10, 4, v11")
    a("v_and_b32 v12, 1, v2")
    a("v_lshl_add_u32 v11, v12, 3, v11")
    a(f"buffer_store_dwordx2 {vr(T+8,2)}, v11, s[28:31], s43 offen")
    a("v_lshlrev_b32 v11, 2, v10")
    a("v_cmp_eq_u32 vcc, 0, v2")
    a("s_and_saveexec_b64 s[46:47], vcc")
    a(f"buffer_store_dword v{T+10}, v11, s[28:31], s43 offen offset:1024")
    a(f"buffer_store_dword v{T+11}, v11, s[28:31], s43 offen offset:1152")
    a("s_mov_b64 exec, s[46:47]")
    a(f"s_branch L_{name}_fin")
    a.label(f"L_{name}_vstore")
    for r in range(8): a(f"v_cvt_pk_bf16_f32 v{T+8+r}, v{T+r}, v{T+r}")
    a("s_mul_i32 s45, s44, 672")
    a("s_add_u32 s43, s43, s45")
    a("v_lshrrev_b32 v10, 3, v1")
    a("v_lshlrev_b32 v10, 2, v10")
    a("v_and_b32 v11, 3, v1")
    a("v_add_u32 v10, v10, v11")
    a("v_lshlrev_b32 v10, 1, v10")
    a("v_bfe_u32 v11, v1, 2, 1")
    a("v_mul_u32_u24 v11, 336, v11")
    a("v_add_u32 v10, v10, v11")
    a("v_lshl_add_u32 v11, v2, 6, v10")
    for r in range(4):
        a(f"buffer_store_short v{T+8+r}, v11, s[28:31], s43 offen offset:{1280 + 16*r}")
    a("v_cmp_eq_u32 vcc, 0, v2")
    a("s_and_saveexec_b64 s[46:47], vcc")
    for r in range(4):
        a(f"buffer_store_short v{T+12+r}, v10, s[28:31], s43 offen offset:{1280 + 16*(16+r)}")
    a(f"buffer_store_short v{ONES}, v10, s[28:31], s43 offen offset:{1280 + 16*20}")
    a("s_mov_b64 exec, s[46:47]")
    a.label(f"L_{name}_fin")
    S.stamp(); S.real(); S.flush()
    a.label(f"L_{name}_end")
    a("s_endpgm")
    ll = lambda n: f"; @launch kernel={n} grid=(256,1,1) block=(512,1,1) lds={LDS}"
    return (name, a.text(), kd(name, 160) + kd("qkv1_kernel", 160), ll(name)), ("qkv1_kernel", "", "", ll("qkv1_kernel"))

def mfma32(a, d, x, y, c=None):
    c = vr(d, 16) if c is None else c
    a(f"v_mfma_f32_32x32x16_bf16 {vr(d,16)}, {vr(x,4)}, {vr(y,4)}, {c}")

def gen_attn():
    name = "attn0_kernel"
    a = Asm()
    header(a, "attn1_kernel")
    a("s_mov_b32 s99, 1")
    a("s_branch L_attn_body")
    header(a, name)
    a("s_mov_b32 s99, 0")
    a.label("L_attn_body")
    NLT = 60
    CH = 16 * KVT
    QL = 56 * KVT
    FLAG = 154 * 1024
    LDS = FLAG + 64
    QMAX = 153
    QF1 = 8; QF2 = 12; NEGM = 16; S_ = [32, 48]; O = 64; P = [80, 88]
    KB = [96, 104]
    VB = [112, 120]
    AC = 128
    VOFF = 134; K2OFF = 135; PFO = 136; DUM = 140
    RT = 144
    NV = RT + 64
    a(f"s_cmp_ge_u32 s2, 256")
    a(f"s_cbranch_scc1 L_{name}_end")
    S = Stamper(a, 1, 8); S.real(); S.stamp()
    a(f"s_load_dwordx2 s[12:13], s[0:1], 96")
    a("s_load_dwordx2 s[14:15], s[0:1], 32")
    a("s_load_dwordx2 s[16:17], s[0:1], 48")
    a("v_lshrrev_b32 v1, 6, v0")
    a("v_and_b32 v0, 63, v0")
    a("v_readfirstlane_b32 s32, v1")
    a("s_and_b32 s33, s2, 7")
    a("s_lshr_b32 s34, s2, 3")
    a("s_and_b32 s34, s34, 3")
    a("s_lshl_b32 s34, s34, 3")
    a("s_add_u32 s33, s33, s34")
    a("s_lshl_b32 s33, s33, 6")
    a("s_lshr_b32 s34, s2, 5")
    a("s_lshl_b32 s34, s34, 3")
    a("s_add_u32 s33, s33, s34")
    a("v_lshlrev_b32 v3, 4, v0")
    a("v_lshrrev_b32 v4, 2, v0")
    a("v_lshlrev_b32 v4, 7, v4")
    a("v_and_b32 v5, 3, v0")
    a("v_lshl_add_u32 v4, v5, 4, v4")
    a("s_lshr_b32 s34, s33, 4")
    a("s_mul_i32 s34, s34, 20480")
    a("s_and_b32 s35, s33, 15")
    a("s_lshl_b32 s36, s35, 3")
    a("s_add_u32 s34, s34, s36")
    a(f"s_add_u32 s34, s34, {QT_OFF}")
    a("s_lshl_b32 s36, s32, 11")
    a("s_add_u32 s36, s36, s34")
    a("s_lshl_b32 s37, s32, 10")
    a(f"s_add_u32 s37, s37, {QL}")
    a("s_lshl_b32 s50, s32, 10")
    a("s_waitcnt lgkmcnt(0)")
    srd(a, 28, 12, 13, WS_SIZE)
    a("s_mov_b32 m0, s37")
    a("s_add_u32 s33, s33, s32")
    a("buffer_load_dwordx4 v4, s[28:31], s36 offen lds")
    a("s_cmp_ge_u32 s32, 2")
    a(f"s_cbranch_scc1 L_{name}_q1")
    a("s_add_u32 s37, s37, 8192")
    a("s_mov_b32 m0, s37")
    a("s_add_u32 s36, s36, 16384")
    a("buffer_load_dwordx4 v4, s[28:31], s36 offen lds")
    a.label(f"L_{name}_q1")
    a("s_mov_b32 s40, 0")
    def dma_piece():
        a(f"s_min_u32 s43, s50, {QMAX*1024}")
        a("s_mov_b32 m0, s43")
        a(f"s_add_u32 s43, s43, {KV_OFF}")
        a("buffer_load_dwordx4 v3, s[28:31], s43 offen lds")
        a("s_add_u32 s50, s50, 8192")
    for i in range(6): dma_piece()
    a("s_and_b32 s35, s33, 15")
    srd(a, 20, 14, 15, 819200)
    srd(a, 24, 16, 17, 2048*1728*2)
    a("s_lshr_b32 s54, s2, 3")
    a("s_lshl_b32 s54, s54, 3")
    a("s_add_u32 s54, s54, s32")
    a("s_mul_i32 s55, s54, 3200")
    a("s_and_b32 s56, s2, 7")
    a("s_mul_i32 s56, s56, 27")
    a("s_lshr_b32 s56, s56, 3")
    a("s_lshl_b32 s56, s56, 7")
    a(f"s_mul_i32 s57, s54, {8*3456}")
    a("s_add_u32 s56, s56, s57")
    a("v_lshrrev_b32 v4, 3, v0")
    a("v_mul_u32_u24 v4, 3456, v4")
    a("v_and_b32 v5, 7, v0")
    a(f"v_lshl_add_u32 v{PFO}, v5, 4, v4")
    a("v_and_b32 v1, 31, v0")
    a("v_lshrrev_b32 v2, 5, v0")
    a("v_mov_b32 v4, 0")
    a(f"v_mov_b32 v5, {FLAG}")
    a("ds_write_b32 v5, v4")
    for r in range(1, 4): a(f"v_mov_b32 v{QF2+r}, 0")
    for kb in KB + [RT + 16 * j for j in range(4)]:
        for r in range(5, 8): a(f"v_mov_b32 v{kb+r}, 0")
    a("v_min_u32 v4, 20, v1")
    a("v_subrev_u32 v5, 12, v1")
    a("v_cmp_lt_u32 vcc, 27, v1")
    a("s_nop 1")
    a("v_cndmask_b32 v4, v4, v5, vcc")
    a("v_lshlrev_b32 v4, 4, v4")
    a("v_mul_u32_u24 v5, 336, v2")
    a("v_add_u32 v4, v4, v5")
    a(f"v_add_u32 v{VOFF}, 1280, v4")
    a(f"v_lshlrev_b32 v{K2OFF}, 2, v0")
    a(f"v_add_u32 v{K2OFF}, 1024, v{K2OFF}")
    a("v_mul_u32_u24 v4, 5, v1")
    a("v_lshl_add_u32 v5, v2, 1, v4")
    a("v_lshlrev_b32 v5, 6, v5")
    a("s_lshl_b32 s36, s32, 3")
    a(f"s_add_u32 s36, s36, {QL}")
    a("v_add_u32 v5, s36, v5")
    a("v_add_u32 v6, 4, v4")
    a("v_lshlrev_b32 v6, 6, v6")
    a("v_lshl_add_u32 v6, v2, 2, v6")
    a("v_add_u32 v6, s36, v6")
    a("s_waitcnt vmcnt(4) lgkmcnt(0)")
    a("s_barrier")
    a(f"ds_read_b64 {vr(QF1,2)}, v5")
    a(f"ds_read_b64 {vr(QF1+2,2)}, v5 offset:64")
    a(f"ds_read_b32 v{QF2}, v6")
    a(f"ds_read_b128 {vr(KB[0],4)}, v3")
    a(f"ds_read_b32 v{KB[0]+4}, v{K2OFF}")
    a("s_waitcnt lgkmcnt(0)")
    mfma32(a, S_[0], KB[0], QF1, "0")
    mfma32(a, S_[0], KB[0] + 4, QF2)
    a("s_nop 15")
    a("s_nop 3")
    a(f"v_max_f32 v7, v{S_[0]}, v{S_[0]+1}")
    for r in range(2, 16, 2): a(f"v_max3_f32 v7, v7, v{S_[0]+r}, v{S_[0]+r+1}")
    a(f"s_branch L_{name}_havemax")
    a.label(f"L_{name}_restart")
    a(f"v_mov_b32 v{AC}, v3")
    a(f"v_mov_b32 v{AC+1}, v{K2OFF}")
    a(f"v_mov_b32 v7, 0xff800000")
    a("s_mov_b32 s41, 0")
    a.label(f"L_{name}_mx")
    a(f"ds_read_b128 {vr(KB[0],4)}, v{AC}")
    a(f"ds_read_b32 v{KB[0]+4}, v{AC+1}")
    a(f"v_add_u32 v{AC}, {KVT}, v{AC}")
    a(f"v_add_u32 v{AC+1}, {KVT}, v{AC+1}")
    a("s_waitcnt lgkmcnt(0)")
    mfma32(a, S_[0], KB[0], QF1, "0")
    mfma32(a, S_[0], KB[0] + 4, QF2)
    a("s_nop 15")
    a("s_nop 3")
    for r in range(0, 16, 2): a(f"v_max3_f32 v7, v7, v{S_[0]+r}, v{S_[0]+r+1}")
    a("s_add_u32 s41, s41, 1")
    a(f"s_cmp_lt_u32 s41, {NLT}")
    a(f"s_cbranch_scc1 L_{name}_mx")
    for j in range(4):
        mfma32(a, S_[0], RT + 16 * j, QF1, "0")
        mfma32(a, S_[0], RT + 16 * j + 4, QF2)
        a("s_nop 15")
        a("s_nop 3")
        for r in range(0, 16, 2): a(f"v_max3_f32 v7, v7, v{S_[0]+r}, v{S_[0]+r+1}")
    a.label(f"L_{name}_havemax")
    S.stamp()
    a("v_mov_b32 v4, v7")
    a("v_mov_b32 v5, v7")
    a("s_nop 1")
    a("v_permlane32_swap_b32 v4, v5")
    a("s_nop 1")
    a("v_max_f32 v7, v4, v5")
    a("v_sub_f32 v7, 0, v7")
    for r in range(16): a(f"v_mov_b32 v{NEGM+r}, v7")
    for r in range(16): a(f"v_mov_b32 v{O+r}, 0")
    for r in range(8): a(f"v_mov_b32 v{P[1]+r}, 0")
    for r in range(8): a(f"v_mov_b32 v{VB[1]+r}, 0")
    a(f"v_mov_b32 v{AC}, v3"); a(f"v_mov_b32 v{AC+1}, v{K2OFF}"); a(f"v_mov_b32 v{AC+2}, v{VOFF}")
    a(f"ds_read_b128 {vr(KB[0],4)}, v{AC}")
    a(f"ds_read_b32 v{KB[0]+4}, v{AC+1}")
    a(f"ds_read_b128 {vr(KB[1],4)}, v{AC} offset:{KVT}")
    a(f"ds_read_b32 v{KB[1]+4}, v{AC+1} offset:{KVT}")
    a("s_waitcnt lgkmcnt(2)")
    mfma32(a, S_[0], KB[0], QF1, vr(NEGM, 16))
    mfma32(a, S_[0], KB[0] + 4, QF2)
    a("s_lshl_b32 s41, s40, 3")
    a("s_mov_b32 s42, 0")
    PON = int(os.environ.get("PON", "0")); POFF = int(os.environ.get("POFF", "12"))
    def body(t, last):
        sc = S_[t % 2]; sn = S_[(t + 1) % 2]
        kl = KB[t % 2]; vl = VB[t % 2]
        pp = P[(t + 1) % 2]; pc = P[t % 2]
        gt = 48 + t if last else None
        kn = KB[(t + 1) % 2] if not (last and gt + 1 >= NLT) else RT + 16 * (gt + 1 - NLT)
        vp = VB[(t + 1) % 2] if not (last and gt - 1 >= NLT) else RT + 16 * (gt - 1 - NLT) + 8
        tag = "L" if last else ""
        if not last:
            if t == 4:
                a("s_cmp_lg_u32 s41, 0")
                a(f"s_cbranch_scc1 L_{name}_nb4")
                a("s_waitcnt vmcnt(4)")
                a("s_barrier")
                a.label(f"L_{name}_nb4")
            if t == 14:
                a("s_cmp_lg_u32 s41, 0")
                a(f"s_cbranch_scc1 L_{name}_nb14")
                a("s_waitcnt vmcnt(0)")
                a("s_barrier")
                a.label(f"L_{name}_nb14")
            if t in (0, 5, 8, 11):
                a("s_cmp_lg_u32 s41, 0")
                a(f"s_cbranch_scc1 L_{name}_sk{t}")
                for i in range(4 if t < 11 else 2): dma_piece()
                a.label(f"L_{name}_sk{t}")
            if t in (2, 9):
                a("s_cmp_lg_u32 s41, 1")
                a(f"s_cbranch_scc1 L_{name}_pf{t}")
                if t == 2:
                    for j in range(4):
                        a(f"s_mov_b32 s43, {KV_OFF + (NLT+j)*KVT}")
                        a(f"buffer_load_dwordx4 {vr(RT+16*j,4)}, v3, s[28:31], s43 offen")
                        a(f"buffer_load_dword v{RT+16*j+4}, v{K2OFF}, s[28:31], s43 offen")
                        a(f"buffer_load_dwordx4 {vr(RT+16*j+8,4)}, v{VOFF}, s[28:31], s43 offen")
                        a(f"buffer_load_dwordx4 {vr(RT+16*j+12,4)}, v{VOFF}, s[28:31], s43 offen offset:672")
                else:
                    for k in range(4):
                        a(f"buffer_load_dwordx4 {vr(DUM,4)}, v3, s[20:23], s55 offen offset:{min(k*1024, 3200-1024)}")
                    for k in range(5):
                        a(f"buffer_load_dwordx4 {vr(DUM,4)}, v{PFO}, s[24:27], s56 offen offset:{k*128}")
                    code_prefetch(a, 8, PFO + 1, DUM)
                a.label(f"L_{name}_pf{t}")
        if t == PON:
            a("s_cmp_lt_u32 s32, 4")
            a(f"s_cbranch_scc1 L_{name}_np{tag}")
            a("s_setprio 1")
            a.label(f"L_{name}_np{tag}")
        if t == POFF: a("s_setprio 0")
        a("s_waitcnt lgkmcnt(0)")
        ldk = not (last and gt + 2 >= NLT)
        ldv = not (last and gt >= NLT)
        dos = not (last and t == 15)
        if dos: mfma32(a, sn, kn, QF1, vr(NEGM, 16))
        if ldk:
            a(f"ds_read_b128 {vr(kl,4)}, v{AC} offset:{(t+2)*KVT}")
            a(f"ds_read_b32 v{kl+4}, v{AC+1} offset:{(t+2)*KVT}")
        for r in range(0, 4): a(f"v_exp_f32 v{sc+r}, v{sc+r}")
        mfma32(a, O, vp, pp)
        if ldv:
            a(f"ds_read_b128 {vr(vl,4)}, v{AC+2} offset:{t*KVT}")
            a(f"ds_read_b128 {vr(vl+4,4)}, v{AC+2} offset:{t*KVT+672}")
        for r in range(4, 8): a(f"v_exp_f32 v{sc+r}, v{sc+r}")
        for r in range(4): a(f"v_cvt_pk_bf16_f32 v{pc+r}, v{sc+2*r}, v{sc+2*r+1}")
        if dos: mfma32(a, sn, kn + 4, QF2)
        for r in range(8, 12): a(f"v_exp_f32 v{sc+r}, v{sc+r}")
        mfma32(a, O, vp + 4, pp + 4)
        for r in range(12, 16): a(f"v_exp_f32 v{sc+r}, v{sc+r}")
        for r in range(4): a(f"v_cvt_pk_bf16_f32 v{pc+4+r}, v{sc+8+2*r}, v{sc+8+2*r+1}")
    a.label(f"L_{name}_chunk")
    for t in range(16): body(t, False)
    for r in range(3): a(f"v_add_u32 v{AC+r}, {CH}, v{AC+r}")
    a("s_add_u32 s41, s41, 1")
    a("s_add_u32 s42, s42, 1")
    a("s_cmp_lt_u32 s42, 3")
    a(f"s_cbranch_scc1 L_{name}_chunk")
    a("s_waitcnt vmcnt(0)")
    for t in range(16): body(t, True)
    a("s_setprio 0")
    a("s_nop 1")
    mfma32(a, O, RT + 48 + 8, P[1])
    mfma32(a, O, RT + 48 + 12, P[1] + 4)
    S.stamp()
    a("s_nop 15")
    a("s_nop 3")
    a(f"v_mov_b32 v4, v{O+8}")
    a(f"v_mov_b32 v5, v{O+8}")
    a("s_nop 1")
    a("v_permlane32_swap_b32 v4, v5")
    a("v_mov_b32 v6, 0")
    for r in range(12): a(f"v_fma_f32 v6, v{O+r}, 0, v6")
    a(f"v_fma_f32 v6, v5, 0, v6")
    a(f"s_mov_b32 s43, {hex(f2u(2.0**100))}")
    a("v_cmp_neq_f32 vcc, 0, v6")
    a("v_cmp_nlt_f32 s[46:47], v5, s43")
    a("s_or_b64 vcc, vcc, s[46:47]")
    a("s_cmp_lg_u32 s40, 0")
    a(f"s_cbranch_scc1 L_{name}_store")
    a(f"s_cbranch_vccz L_{name}_store")
    a("s_mov_b32 s40, 1")
    a(f"s_branch L_{name}_restart")
    a.label(f"L_{name}_store")
    a("v_rcp_f32 v5, v5")
    a("s_nop 0")
    for r in range(12): a(f"v_mul_f32 v{O+r}, v5, v{O+r}")
    for r in range(6): a(f"v_cvt_pk_bf16_f32 v{S_[0]+r}, v{O+2*r}, v{O+2*r+1}")
    OST = 140000 // 1024 * 1024
    a("v_mul_u32_u24 v4, 20, v1")
    a("v_lshl_add_u32 v4, v2, 2, v4")
    a("s_lshl_b32 s36, s32, 4")
    a(f"s_add_u32 s36, s36, {OST}")
    for grp in range(3):
        a(f"v_add_u32 v5, {8*grp}, v4")
        a("v_lshrrev_b32 v6, 5, v5")
        a("v_lshlrev_b32 v6, 9, v6")
        a("v_bfe_u32 v7, v5, 2, 2")
        a("v_lshl_add_u32 v6, v7, 7, v6")
        a("v_bfe_u32 v7, v5, 4, 1")
        a("v_lshl_add_u32 v6, v7, 3, v6")
        a(f"v_add_u32 v{10+grp}, s36, v6")
    a("s_barrier")
    for grp in range(3):
        if grp == 2:
            a("v_cmp_eq_u32 vcc, 0, v2")
            a("s_and_saveexec_b64 s[46:47], vcc")
        a(f"ds_write_b64 v{10+grp}, {vr(S_[0]+2*grp,2)}")
    a("s_mov_b64 exec, -1")
    S.stamp()
    RES = 102400; RED = RES + 10240
    a("s_load_dwordx2 s[4:5], s[0:1], 0")
    a("s_lshr_b32 s33, s33, 6")
    a("s_lshr_b32 s34, s2, 5")
    a("v_and_b32 v1, 15, v0")
    a("v_lshrrev_b32 v2, 4, v0")
    a("s_mul_i32 s36, s34, 160")
    a("s_mov_b32 s37, 6554")
    a("s_movk_i32 s38, 1280")
    for r in range(5):
        a(f"v_add_u32 v10, {64*r}, v0")
        a("v_mul_lo_u32 v11, v10, s37")
        a("v_lshrrev_b32 v11, 16, v11")
        a("v_mul_u32_u24 v12, 10, v11")
        a("v_sub_u32 v12, v10, v12")
        a("v_mul_lo_u32 v11, v11, s38")
        a("v_lshl_add_u32 v11, v12, 4, v11")
        a(f"v_add_u32 v11, s36, v11")
        a(f"v_subrev_u32 v{4+r}, {1024*(r%4)}, v11")
    a("s_waitcnt lgkmcnt(0)")
    a(f"s_add_u32 s8, s12, {hex(X2_OFF)}")
    a("s_addc_u32 s9, s13, 0")
    a("s_cmp_eq_u32 s99, 0")
    a("s_cselect_b32 s4, s4, s8")
    a("s_cselect_b32 s5, s5, s9")
    srd(a, 16, 4, 5, XBYTES)
    a("s_waitcnt lgkmcnt(0)")
    a("s_barrier")
    a("s_lshl_b32 s43, s32, 10")
    a(f"s_add_u32 s43, s43, {OST}")
    a("v_add_u32 v10, s43, v3")
    a(f"ds_read_b128 v[32:35], v10")
    a(f"ds_read_b128 v[36:39], v10 offset:8192")
    a("v_lshrrev_b32 v11, 3, v0")
    a("v_lshlrev_b32 v11, 8, v11")
    a("v_and_b32 v12, 7, v0")
    a("v_lshl_add_u32 v11, v12, 4, v11")
    a("s_lshl_b32 s44, s33, 2")
    a("s_lshr_b32 s45, s34, 1")
    a("s_add_u32 s44, s44, s45")
    a("s_mul_i32 s44, s44, 20480")
    a("s_and_b32 s45, s34, 1")
    a("s_lshl_b32 s45, s45, 7")
    a("s_add_u32 s44, s44, s45")
    a("s_lshl_b32 s45, s32, 11")
    a("s_add_u32 s44, s44, s45")
    a(f"s_add_u32 s44, s44, {OF_OFF}")
    a("s_waitcnt lgkmcnt(0)")
    a("buffer_store_dwordx4 v[32:35], v11, s[28:31], s44 offen sc1")
    a("s_cmp_ge_u32 s32, 2")
    a(f"s_cbranch_scc1 L_{name}_os")
    a("s_add_u32 s44, s44, 16384")
    a("buffer_store_dwordx4 v[36:39], v11, s[28:31], s44 offen sc1")
    a.label(f"L_{name}_os")
    a("s_waitcnt vmcnt(0)")
    a("s_barrier")
    a("s_lshl_b32 s43, s33, 8")
    a(f"s_add_u32 s43, s43, {CNT_OFF}")
    a("v_mov_b32 v10, s43")
    a("v_mov_b32 v11, 1")
    a("s_cmp_lg_u32 s32, 0")
    a(f"s_cbranch_scc1 L_{name}_nosig")
    a("s_mov_b64 exec, 1")
    a("buffer_atomic_add v11, v10, s[28:31], 0 offen")
    a("s_mov_b64 exec, -1")
    a.label(f"L_{name}_nosig")
    def wgroup(srd_, soff, ldsb):
        a(f"s_mov_b32 m0, {ldsb}")
        a(f"s_add_u32 s45, {ldsb}, 4096")
        for r in range(4):
            a(f"buffer_load_dwordx4 v{4+r}, {srd_}, {soff} offen offset:{1024*r} lds")
        a("s_mov_b32 m0, s45")
        a("s_nop 0")
        a(f"buffer_load_dwordx4 v8, {srd_}, {soff} offen lds")
    a(f"s_mul_i32 s40, s32, {32*1280}")
    a("s_add_u32 s40, s40, 4096")
    a("s_mul_i32 s41, s32, 5120")
    a("s_sub_u32 s60, s20, 4096")
    a("s_subb_u32 s61, s21, 0")
    a(f"s_mov_b32 s62, {819200+4096}")
    a("s_mov_b32 s63, 0x00020000")
    a("s_sub_u32 s64, s16, 4096")
    a("s_subb_u32 s65, s17, 0")
    a(f"s_mov_b32 s66, {XBYTES+4096}")
    a("s_mov_b32 s67, 0x00020000")
    for r in range(5): a(f"v_add_u32 v{4+r}, 4096, v{4+r}")
    a(f"s_mul_i32 s40, s32, {32*1280}")
    wgroup("s[60:63]", "s40", "s41")
    a(f"s_add_u32 s40, s40, {8*32*1280}")
    a(f"s_add_u32 s41, s41, {8*5120}")
    wgroup("s[60:63]", "s40", "s41")
    a("s_cmp_ge_u32 s32, 4")
    a(f"s_cbranch_scc1 L_{name}_w3")
    a(f"s_add_u32 s40, s40, {8*32*1280}")
    a(f"s_add_u32 s41, s41, {8*5120}")
    wgroup("s[60:63]", "s40", "s41")
    a(f"s_branch L_{name}_w4")
    a.label(f"L_{name}_w3")
    a("s_cmp_ge_u32 s32, 6")
    a(f"s_cbranch_scc1 L_{name}_w4")
    a("s_sub_u32 s43, s32, 4")
    a(f"s_mul_i32 s40, s43, {32*1280}")
    a("s_mul_i32 s44, s33, 81920")
    a("s_add_u32 s40, s40, s44")
    a("s_mul_i32 s41, s43, 5120")
    a(f"s_add_u32 s41, s41, {RES}")
    wgroup("s[64:67]", "s40", "s41")
    a.label(f"L_{name}_w4")
    a("s_cmp_lg_u32 s32, 0")
    a(f"s_cbranch_scc1 L_{name}_nopoll")
    a("s_mov_b64 exec, 1")
    a.label(f"L_{name}_poll")
    a("buffer_load_dword v12, v10, s[28:31], 0 offen sc1")
    a("s_waitcnt vmcnt(0)")
    a("v_readfirstlane_b32 s43, v12")
    a("s_cmp_ge_u32 s43, 8")
    a(f"s_cbranch_scc1 L_{name}_polled")
    a("s_sleep 1")
    a(f"s_branch L_{name}_poll")
    a.label(f"L_{name}_polled")
    a("s_mov_b64 exec, -1")
    a.label(f"L_{name}_nopoll")
    a("s_and_b32 s52, s32, 3")
    a("s_lshr_b32 s53, s32, 2")
    a("s_lshl_b32 s42, s33, 2")
    a("s_add_u32 s42, s42, s52")
    a("s_mul_i32 s43, s42, 20480")
    a("s_mul_i32 s44, s53, 10240")
    a("s_add_u32 s43, s43, s44")
    a(f"s_add_u32 s43, s43, {OF_OFF}")
    a("v_lshrrev_b32 v10, 2, v1")
    a("v_lshl_add_u32 v10, v2, 2, v10")
    a("v_and_b32 v11, 3, v1")
    a("v_lshlrev_b32 v11, 3, v11")
    a("v_mul_u32_u24 v12, 160, v10")
    a("v_add_u32 v20, v12, v11")
    a("s_mul_i32 s48, s52, 2560")
    a(f"s_add_u32 s48, s48, {RES}")
    a("v_add_u32 v22, s48, v20")
    a("s_mul_i32 s48, s53, 51200")
    a("v_add_u32 v20, s48, v20")
    ACC = 24; XF = 64; WF = 104
    for r in range(ACC, ACC + 20): a(f"v_mov_b32 v{r}, 0")
    a("s_waitcnt vmcnt(0)")
    a("s_barrier")
    S.stamp()
    for j in range(10):
        if j == 4: a("s_add_u32 s43, s43, 4096")
        if j == 8: a("s_add_u32 s43, s43, 4096")
        a(f"buffer_load_dwordx4 {vr(XF+4*j,4)}, v3, s[28:31], s43 offen offset:{1024*(j%4)} sc1")
    def reads(ks, fs):
        b = WF + 20 * fs
        for nt in range(5):
            for half in range(2):
                off = (32 * ks + 16 * half) * 160 + 32 * nt
                a(f"ds_read_b64_tr_b16 {vr(b+4*nt+2*half,2)}, v20 offset:{off}")
    reads(0, 0)
    for j in range(10):
        a(f"s_waitcnt lgkmcnt(0) vmcnt({9-j})")
        if j < 9: reads(j + 1, (j + 1) % 2)
        b = WF + 20 * (j % 2)
        for nt in range(5): mfma16(a, ACC + 4 * nt, XF + 4 * j, b + 4 * nt)
    a("s_mul_i32 s44, s52, 5120")
    a(f"s_add_u32 s44, s44, {RED}")
    a("v_add_u32 v10, s44, v3")
    a("s_cmp_eq_u32 s53, 0")
    a(f"s_cbranch_scc1 L_{name}_kh0")
    a("s_nop 7")
    for nt in range(5): a(f"ds_write_b128 v10, {vr(ACC+4*nt,4)} offset:{1024*nt}")
    a("s_waitcnt lgkmcnt(0)")
    a("s_barrier")
    a(f"s_branch L_{name}_fin")
    a.label(f"L_{name}_kh0")
    RS = 144
    for nt in range(5): a(f"ds_read_b64_tr_b16 {vr(RS+2*nt,2)}, v22 offset:{32*nt}")
    SUM = 44; SQ = 48; T = 52
    for r in range(8): a(f"v_mov_b32 v{SUM+r}, 0")
    a("s_mul_i32 s44, s34, 327680")
    a("s_lshr_b32 s45, s42, 1")
    a("s_lshl_b32 s45, s45, 10")
    a("s_add_u32 s44, s44, s45")
    a("s_and_b32 s45, s42, 1")
    a("s_lshl_b32 s45, s45, 3")
    a("s_add_u32 s44, s44, s45")
    a(f"s_add_u32 s44, s44, {X1T_OFF}")
    a("s_mov_b32 s46, 0xffff0000")
    a("s_barrier")
    for nt in range(5): a(f"ds_read_b128 {vr(XF+4*nt,4)}, v10 offset:{1024*nt}")
    a("s_waitcnt lgkmcnt(0)")
    for r in range(20): a(f"v_add_f32 v{ACC+r}, v{ACC+r}, v{XF+r}")
    OUT = 160
    for nt in range(5):
        for h in range(2):
            a(f"v_lshlrev_b32 v{T}, 16, v{RS+2*nt+h}")
            a(f"v_and_b32 v{T+1}, s46, v{RS+2*nt+h}")
            a(f"v_add_f32 v{T}, v{T}, v{ACC+4*nt+2*h}")
            a(f"v_add_f32 v{T+1}, v{T+1}, v{ACC+4*nt+2*h+1}")
            o = OUT + 2 * nt + h
            a(f"v_cvt_pk_bf16_f32 v{o}, v{T}, v{T+1}")
            a(f"v_lshlrev_b32 v{T}, 16, v{o}")
            a(f"v_and_b32 v{T+1}, s46, v{o}")
            a(f"v_add_f32 v{SUM+2*h}, v{SUM+2*h}, v{T}")
            a(f"v_add_f32 v{SUM+2*h+1}, v{SUM+2*h+1}, v{T+1}")
            a(f"v_fma_f32 v{SQ+2*h}, v{T}, v{T}, v{SQ+2*h}")
            a(f"v_fma_f32 v{SQ+2*h+1}, v{T+1}, v{T+1}, v{SQ+2*h+1}")
        a(f"buffer_store_dwordx2 {vr(OUT+2*nt,2)}, v3, s[28:31], s44 offen")
        if nt < 4: a("s_add_u32 s44, s44, 65536")
    for sh in (8, 4, 2, 1):
        a("s_nop 1")
        for r in range(8):
            a(f"v_add_f32_dpp v{SUM+r}, v{SUM+r}, v{SUM+r} row_ror:{sh} row_mask:0xf bank_mask:0xf")
    a("s_lshl_b32 s44, s42, 7")
    a(f"s_add_u32 s44, s44, {ST_OFF}")
    a("v_lshlrev_b32 v10, 5, v2")
    a("v_cmp_eq_u32 vcc, 0, v1")
    a("s_and_saveexec_b64 s[46:47], vcc")
    for r in range(4):
        a(f"buffer_atomic_add_f32 v{SUM+r}, v10, s[28:31], s44 offen offset:{8*r}")
        a(f"buffer_atomic_add_f32 v{SQ+r}, v10, s[28:31], s44 offen offset:{8*r+4}")
    a.label(f"L_{name}_fin")
    S.stamp(); S.real(); S.flush()
    a.label(f"L_{name}_end")
    a("s_endpgm")
    ll = lambda n: f"; @launch kernel={n} grid=(256,1,1) block=(512,1,1) lds={LDS}"
    return (name, a.text(), kd(name, NV) + kd("attn1_kernel", NV), ll(name)), ("attn1_kernel", "", "", ll("attn1_kernel"))

def gen_oproj(layer):
    name = f"oproj{layer}_kernel"
    a = Asm(); header(a, name)
    RES = 102400
    LDS = RES + 10240
    a(f"s_cmp_ge_u32 s2, 256")
    a(f"s_cbranch_scc1 L_{name}_end")
    S = Stamper(a, 2 + 5*layer, 4); S.real(); S.stamp()
    a(f"s_load_dwordx2 s[4:5], s[0:1], 0")
    a(f"s_load_dwordx2 s[6:7], s[0:1], 32")
    a(f"s_load_dwordx2 s[12:13], s[0:1], 96")
    a("v_lshrrev_b32 v1, 6, v0")
    a("v_and_b32 v0, 63, v0")
    a("v_readfirstlane_b32 s32, v1")
    a("s_and_b32 s33, s2, 7")
    a("s_lshr_b32 s34, s2, 3")
    a("s_and_b32 s34, s34, 3")
    a("s_lshl_b32 s34, s34, 3")
    a("s_add_u32 s33, s33, s34")
    a("s_lshr_b32 s34, s2, 5")
    a("s_waitcnt lgkmcnt(0)")
    if layer == 1:
        a(f"s_add_u32 s4, s12, {hex(X2_OFF)}")
        a(f"s_addc_u32 s5, s13, 0")
    srd(a, 16, 4, 5, XBYTES)
    srd(a, 20, 6, 7, 819200)
    srd(a, 28, 12, 13, WS_SIZE)
    a("v_and_b32 v1, 15, v0")
    a("v_lshrrev_b32 v2, 4, v0")
    a("s_mul_i32 s35, s32, 320")
    a("s_mul_i32 s36, s34, 160")
    a("s_mov_b32 s37, 6554")
    a("s_movk_i32 s38, 1280")
    for jj in range(5):
        a(f"v_add_u32 v10, s35, v0")
        if jj: a(f"v_add_u32 v10, {64*jj}, v10")
        a("v_mul_lo_u32 v11, v10, s37")
        a("v_lshrrev_b32 v11, 16, v11")
        a("v_mul_u32_u24 v12, 10, v11")
        a("v_sub_u32 v12, v10, v12")
        a("v_mul_lo_u32 v11, v11, s38")
        a("v_lshl_add_u32 v11, v12, 4, v11")
        a(f"v_add_u32 v{4+jj}, s36, v11")
    a("v_lshlrev_b32 v3, 4, v0")
    a("s_mul_i32 s40, s33, 81920")
    a("s_mul_i32 s41, s32, 5120")
    a("s_cmp_ge_u32 s32, 2")
    a(f"s_cbranch_scc1 L_{name}_nores")
    for jj in range(5):
        a(f"s_add_u32 s44, s41, {RES + jj*1024}")
        a("s_mov_b32 m0, s44")
        a("s_nop 0")
        a(f"buffer_load_dwordx4 v{4+jj}, s[16:19], s40 offen lds")
    a.label(f"L_{name}_nores")
    a("s_lshl_b32 s42, s33, 2")
    a("s_add_u32 s42, s42, s32")
    a("s_mul_i32 s43, s42, 20480")
    a(f"s_add_u32 s43, s43, {OF_OFF}")
    XF = 64
    def stage_ops(st):
        ops = []
        for jj in range(5):
            ops.append([f"s_add_u32 s44, s41, {st*20480 + jj*1024}", "s_mov_b32 m0, s44",
                        f"s_mov_b32 s45, {st*128*1280}", f"buffer_load_dwordx4 v{4+jj}, s[20:23], s45 offen lds"])
        for k4 in range(4):
            ops.append([f"s_add_u32 s45, s43, {st*4096}",
                        f"buffer_load_dwordx4 {vr(XF+4*(4*st+k4),4)}, v3, s[28:31], s45 offen offset:{1024*k4}"])
        return ops
    for st in range(2):
        for op in stage_ops(st):
            for x in op: a(x)
    S.stamp()
    a("v_lshrrev_b32 v10, 2, v1")
    a("v_lshl_add_u32 v10, v2, 2, v10")
    a("v_and_b32 v11, 3, v1")
    a("v_lshlrev_b32 v11, 3, v11")
    a("v_mul_u32_u24 v12, 160, v10")
    a("v_add_u32 v20, v12, v11")
    a(f"v_add_u32 v21, {51200}, v20")
    a("s_mul_i32 s48, s32, 2560")
    a(f"s_add_u32 s48, s48, {RES}")
    a("v_add_u32 v22, s48, v20")
    ACC = 24
    WF = 144
    for r in range(ACC, ACC + 20): a(f"v_mov_b32 v{r}, 0")
    def reads(ks, fs):
        b = WF + 20 * fs
        for nt in range(5):
            for half in range(2):
                off = (32 * ks + 16 * half) * 160 + 32 * nt
                va = 20
                if off >= 51200: off -= 51200; va = 21
                a(f"ds_read_b64_tr_b16 {vr(b+4*nt+2*half,2)}, v{va} offset:{off}")
    for st in range(5):
        a(f"s_waitcnt vmcnt({9 if st < 4 else 0})")
        a("s_barrier")
        if st == 0: S.stamp()
        pend = stage_ops(st + 2) if st + 2 < 5 else []
        reads(4 * st, 0)
        for k4 in range(4):
            a("s_waitcnt lgkmcnt(0)")
            if k4 < 3: reads(4 * st + k4 + 1, (k4 + 1) % 2)
            b = WF + 20 * (k4 % 2)
            for nt in range(5):
                mfma16(a, ACC + 4 * nt, XF + 4 * (4 * st + k4), b + 4 * nt)
                if nt % 2 == 0 and pend:
                    for x_ in pend.pop(0): a(x_)
        assert not pend
    S.stamp()
    RS = WF
    for nt in range(5): a(f"ds_read_b64_tr_b16 {vr(RS+2*nt,2)}, v22 offset:{32*nt}")
    SUM = 44; SQ = 48; T = 52
    for r in range(8): a(f"v_mov_b32 v{SUM+r}, 0")
    a("s_mul_i32 s44, s34, 327680")
    a("s_lshr_b32 s45, s42, 1")
    a("s_lshl_b32 s45, s45, 10")
    a("s_add_u32 s44, s44, s45")
    a("s_and_b32 s45, s42, 1")
    a("s_lshl_b32 s45, s45, 3")
    a("s_add_u32 s44, s44, s45")
    a(f"s_add_u32 s44, s44, {X1T_OFF}")
    a("s_mov_b32 s46, 0xffff0000")
    a("s_waitcnt lgkmcnt(0)")
    a("s_nop 7")
    OUT = WF + 12
    for nt in range(5):
        for h in range(2):
            a(f"v_lshlrev_b32 v{T}, 16, v{RS+2*nt+h}")
            a(f"v_and_b32 v{T+1}, s46, v{RS+2*nt+h}")
            a(f"v_add_f32 v{T}, v{T}, v{ACC+4*nt+2*h}")
            a(f"v_add_f32 v{T+1}, v{T+1}, v{ACC+4*nt+2*h+1}")
            o = OUT + 2 * nt + h
            a(f"v_cvt_pk_bf16_f32 v{o}, v{T}, v{T+1}")
            a(f"v_lshlrev_b32 v{T}, 16, v{o}")
            a(f"v_and_b32 v{T+1}, s46, v{o}")
            a(f"v_add_f32 v{SUM+2*h}, v{SUM+2*h}, v{T}")
            a(f"v_add_f32 v{SUM+2*h+1}, v{SUM+2*h+1}, v{T+1}")
            a(f"v_fma_f32 v{SQ+2*h}, v{T}, v{T}, v{SQ+2*h}")
            a(f"v_fma_f32 v{SQ+2*h+1}, v{T+1}, v{T+1}, v{SQ+2*h+1}")
        a(f"buffer_store_dwordx2 {vr(OUT+2*nt,2)}, v3, s[28:31], s44 offen")
        if nt < 4: a("s_add_u32 s44, s44, 65536")
    for sh in (8, 4, 2, 1):
        a("s_nop 1")
        for r in range(8):
            a(f"v_add_f32_dpp v{SUM+r}, v{SUM+r}, v{SUM+r} row_ror:{sh} row_mask:0xf bank_mask:0xf")
    a("s_lshl_b32 s44, s42, 7")
    a(f"s_add_u32 s44, s44, {ST_OFF}")
    a("v_lshlrev_b32 v10, 5, v2")
    a("v_cmp_eq_u32 vcc, 0, v1")
    a("s_and_saveexec_b64 s[46:47], vcc")
    for r in range(4):
        a(f"buffer_atomic_add_f32 v{SUM+r}, v10, s[28:31], s44 offen offset:{8*r}")
        a(f"buffer_atomic_add_f32 v{SQ+r}, v10, s[28:31], s44 offen offset:{8*r+4}")
    S.stamp(); S.real(); S.flush()
    a.label(f"L_{name}_end")
    a("s_endpgm")
    return name, a.text(), kd(name, 192), f"; @launch kernel={name} grid=(256,1,1) block=(256,1,1) lds={LDS}"

def mfma16a(a, d, x, y):
    a(f"v_mfma_f32_16x16x32_bf16 a[{d}:{d+3}], {vr(x,4)}, {vr(y,4)}, a[{d}:{d+3}]")

def gen_mlp(which, layer):
    name = f"mlp{which}_{layer}_kernel"
    a = Asm(); header(a, name)
    norm = which == 1
    NW = 8 if norm else int(os.environ.get("K5NW", "4"))
    U = 2 if norm else int(os.environ.get("K5U", "4"))
    RING = U * 4096
    TAB = NW * RING
    NWG = 216 if norm else 256
    WSTR = 3456 if norm else 4096
    WBYTES = 2048 * 1728 * 2
    XDT = 65536 if norm else GDT
    XOFF = X1T_OFF if norm else GF_OFF
    if NW == 8: own_dts = lambda w: (0, 1, 2) if w < 4 else (3, 4)
    else: own_dts = lambda w: (0, 1, 2, 3, 4)
    MT = 3 if NW == 8 else 5
    NS = NW - 1
    own_base = []; off = 0
    for w in range(NW):
        own_base.append(off); off += NS * len(own_dts(w)) * 1024
    REDSZ = off
    TR = REDSZ + 1024
    LDS = max(TAB + NW * 2048, TR + 4 * 2560)
    a(f"s_cmp_ge_u32 s2, {NWG}")
    a(f"s_cbranch_scc1 L_{name}_end")
    S = Stamper(a, 2 + which + 5*layer, 8); S.real(); S.stamp()
    a(f"s_load_dwordx4 s[4:7], s[0:1], {48 if norm else 64}")
    a(f"s_load_dwordx2 s[12:13], s[0:1], 96")
    if not norm:
        a(f"s_load_dwordx2 s[8:9], s[0:1], 80")
    a("v_lshrrev_b32 v1, 6, v0")
    a("v_and_b32 v0, 63, v0")
    a("v_readfirstlane_b32 s32, v1")
    if norm:
        a("s_and_b32 s33, s2, 7")
        a(f"s_mul_i32 s33, s33, {NWG//8}")
        a("s_lshr_b32 s34, s2, 3")
        a("s_add_u32 s33, s33, s34")
        a("s_lshr_b32 s34, s33, 3")
        a("s_and_b32 s33, s33, 7")
        a(f"s_load_dwordx2 s[8:9], s[0:1], 64")
    else:
        a("s_and_b32 s34, s2, 7")
        a("s_lshr_b32 s33, s2, 3")
        a("s_and_b32 s33, s33, 3")
        a("s_lshl_b32 s33, s33, 3")
        a("s_add_u32 s34, s34, s33")
        a("s_lshr_b32 s33, s2, 5")
        a(f"s_load_dwordx2 s[10:11], s[0:1], 8")
    a("v_and_b32 v1, 15, v0")
    a("v_lshrrev_b32 v2, 4, v0")
    a("v_lshlrev_b32 v3, 4, v0")
    NST = 64 // NW if norm else 56 // NW
    a(f"s_mul_i32 s35, s32, {NST}")
    a("v_lshrrev_b32 v10, 3, v0")
    a("v_lshrrev_b32 v11, 1, v10")
    a("v_and_b32 v11, 3, v11")
    a("v_lshlrev_b32 v11, 1, v11")
    a("v_and_b32 v12, 7, v0")
    a("v_xor_b32 v12, v12, v11")
    a(f"s_movk_i32 s38, {WSTR}")
    a("v_mul_lo_u32 v5, v10, s38")
    a("v_lshl_add_u32 v44, v12, 4, v5")
    for jj in range(1, 4): a(f"v_add_u32 v{44+jj}, {jj*(8*WSTR-1024)}, v44")
    for dt in range(1, 5): a(f"v_add_u32 v{19+dt}, {dt*XDT}, v3")
    a(f"s_mul_i32 s40, s35, {32*WSTR}")
    a("s_lshl_b32 s41, s34, 7")
    a("s_add_u32 s40, s40, s41")
    a(f"s_mul_i32 s41, s33, {5*XDT}")
    a("s_lshl_b32 s42, s35, 10")
    a("s_add_u32 s41, s41, s42")
    a(f"s_add_u32 s41, s41, {XOFF}")
    a(f"s_mul_i32 s42, s32, {RING}")
    a("s_and_b32 s52, s32, 3")
    a("s_lshr_b32 s53, s32, 2")
    a("s_waitcnt lgkmcnt(0)")
    srd(a, 20, 4, 5, WBYTES)
    srd(a, 28, 12, 13, WS_SIZE)
    XR = 48
    XN = XR + 20 * U
    WF = XN + (40 if norm else 0)
    TT = WF + 32
    NV = max(TT + (16 if norm else 0), 176)
    TMP = 16
    TB = 36
    EB = 24
    if norm:
        a("s_lshl_b32 s37, s32, 11")
        a(f"s_add_u32 s37, s37, {ST_OFF}")
        a("v_lshlrev_b32 v4, 3, v0")
        for i2 in range(4):
            a(f"buffer_load_dwordx2 {vr(TB+2*i2,2)}, v4, s[28:31], s37 offen offset:{512*i2}")
    def w_ops(slot):
        ops = []
        for jj in range(4):
            op = [f"s_mov_b32 m0, s{64+slot}"] if jj == 0 else []
            if jj == 0: op.append("s_nop 0")
            op.append(f"buffer_load_dwordx4 v{44+jj}, s[20:23], s40 offen offset:{jj*1024} lds")
            ops.append(op)
        ops[-1] += [f"s_add_u32 s40, s40, {32*WSTR}"]
        return ops
    def x_ops(slot):
        ops = []
        for dt in range(5):
            va = 3 if dt == 0 else 19 + dt
            ops.append([f"buffer_load_dwordx4 {vr(XR+20*slot+4*dt,4)}, v{va}, s[60:63], s41 offen"])
        ops[-1] += ["s_add_u32 s41, s41, 1024"]
        return ops
    lab = [0]
    def emit_ops(ops, guard=False):
        for op in ops:
            for x in op: a(x)
    srd(a, 60, 12, 13, WS_SIZE)
    for u in range(U): a(f"s_add_u32 s{64+u}, s42, {u*4096}")
    emit_ops(w_ops(0)); emit_ops(x_ops(0))
    srd(a, 24, 6, 7, 1728 * 2 if norm else 2048 * 2)
    if not norm:
        if layer == 0:
            a(f"s_add_u32 s8, s12, {hex(X2_OFF)}")
            a(f"s_addc_u32 s9, s13, 0")
        srd(a, 16, 8, 9, XBYTES)
    a("s_lshl_b32 s43, s34, 7")
    a("s_lshl_b32 s44, s52, 5")
    a("s_add_u32 s43, s43, s44")
    a("v_lshlrev_b32 v10, 3, v2")
    a(f"buffer_load_dwordx2 {vr(EB,2)}, v10, s[24:27], s43 offen")
    NE = 1
    if not norm:
        a("s_mul_i32 s43, s33, 327680")
        a("s_mul_i32 s44, s53, 196608")
        a("s_add_u32 s43, s43, s44")
        a("s_lshl_b32 s44, s34, 11")
        a("s_add_u32 s43, s43, s44")
        a("s_lshr_b32 s44, s52, 1")
        a("s_lshl_b32 s44, s44, 10")
        a("s_add_u32 s43, s43, s44")
        a("s_and_b32 s44, s52, 1")
        a("s_lshl_b32 s44, s44, 3")
        a("s_add_u32 s43, s43, s44")
        a(f"s_add_u32 s43, s43, {X1T_OFF}")
        for j in range(MT):
            a(f"buffer_load_dwordx2 {vr(EB+2+2*j,2)}, v3, s[28:31], s43 offen")
            if j < MT - 1: a("s_add_u32 s43, s43, 65536")
        NE = 1 + MT
    for u in range(1, U):
        emit_ops(w_ops(u)); emit_ops(x_ops(u))
    S.stamp()
    a("v_lshrrev_b32 v10, 2, v1")
    a("v_lshl_add_u32 v10, v2, 2, v10")
    a("v_lshrrev_b32 v11, 1, v10")
    a("v_and_b32 v11, 3, v11")
    a("v_and_b32 v12, 3, v1")
    a("v_lshlrev_b32 v12, 3, v12")
    a("v_lshl_add_u32 v12, v10, 7, v12")
    a("v_add_u32 v12, s42, v12")
    for nt in range(4):
        a(f"v_xor_b32 v13, {nt}, v11")
        a(f"v_lshl_add_u32 v{6+nt}, v13, 5, v12")
    for r in range(80): a(f"v_accvgpr_write_b32 a{r}, 0")
    a("s_mov_b32 s46, 0xffff0000")
    if norm:
        a(f"s_waitcnt vmcnt({9*U+NE})")
        a("s_lshl_b32 s43, s32, 11")
        a(f"s_add_u32 s43, s43, {TAB}")
        a("v_lshlrev_b32 v14, 2, v0")
        a("v_add_u32 v14, s43, v14")
        a("v_lshlrev_b32 v15, 4, v2")
        a("v_add_u32 v15, s43, v15")
        a(f"s_mov_b32 s47, {hex(f2u(1.0/640))}")
        a(f"s_mov_b32 s48, {hex(f2u(1e-5))}")
        for i2 in range(4):
            m = TB + 2 * i2; q = m + 1
            a(f"v_mul_f32 v{m}, s47, v{m}")
            a(f"v_mul_f32 v{q}, s47, v{q}")
            a(f"v_fma_f32 v{q}, -v{m}, v{m}, v{q}")
            a(f"v_max_f32 v{q}, 0, v{q}")
            a(f"v_add_f32 v{TMP}, s48, v{q}")
            a(f"v_rsq_f32 v{TMP}, v{TMP}")
            a("s_nop 0")
            a(f"v_mul_f32 v{q}, v{q}, v{TMP}")
            a(f"v_fma_f32 v{q}, v{q}, v{TMP}, s48")
            a(f"v_rsq_f32 v{q}, v{q}")
            a("s_nop 0")
            a(f"v_mul_f32 v{q}, v{q}, v{TMP}")
            a(f"v_mul_f32 v{m}, v{m}, v{q}")
            a(f"v_sub_f32 v{m}, 0, v{m}")
            a(f"ds_write_b32 v14, v{q} offset:{256*i2}")
            a(f"ds_write_b32 v14, v{m} offset:{1024+256*i2}")
        a("s_waitcnt lgkmcnt(0)")
    def wreads(slot, fs):
        for nt in range(4):
            for half in range(2):
                a(f"ds_read_b64_tr_b16 {vr(WF+16*fs+4*nt+2*half,2)}, v{6+nt} offset:{slot*4096+half*2048}")
    def treads():
        a(f"ds_read_b128 {vr(TT,4)}, v15")
        a(f"ds_read_b128 {vr(TT+4,4)}, v15 offset:64")
        a(f"ds_read_b128 {vr(TT+8,4)}, v15 offset:1024")
        a(f"ds_read_b128 {vr(TT+12,4)}, v15 offset:1088")
        a("v_add_u32 v15, 128, v15")
    def norm_ops(slot, fs):
        ops = []
        for dt in range(5):
            for dw in range(4):
                r = XR + 20 * slot + 4 * dt + dw
                e = (dw % 2) * 2 + (dw // 2) * 4
                t0 = TMP + 2 * (dw % 2); t1 = t0 + 1
                ops.append(f"v_lshlrev_b32 v{t0}, 16, v{r}")
                ops.append(f"v_and_b32 v{t1}, s46, v{r}")
                ops.append(f"v_fma_f32 v{t0}, v{t0}, v{TT+e}, v{TT+8+e}")
                ops.append(f"v_fma_f32 v{t1}, v{t1}, v{TT+e+1}, v{TT+8+e+1}")
                ops.append(f"v_cvt_pk_bf16_f32 v{XN+20*fs+4*dt+dw}, v{t0}, v{t1}")
        return ops
    def mfma_list(slot, fs):
        l = []
        for dt in range(5):
            x = (XN + 20 * fs + 4 * dt) if norm else (XR + 20 * slot + 4 * dt)
            for nt in range(4):
                w = WF + 16 * fs + 4 * nt
                t = 4 * (dt * 4 + nt)
                l.append(f"v_mfma_f32_16x16x32_bf16 a[{t}:{t+3}], {vr(w,4)}, {vr(x,4)}, a[{t}:{t+3}]")
        return l
    def norm_step(nu, nfs, ml, ld):
        treads()
        wreads(nu, nfs)
        ops = norm_ops(nu, nfs)
        xo = x_ops(nu) if ld else []; wo = w_ops(nu) if ld else []
        k = 0
        for m in ml[:3]: a(m); k += 1
        a("s_waitcnt lgkmcnt(8)")
        for idx, op in enumerate(ops):
            a(op)
            if idx % 6 == 5 and k < len(ml):
                a(ml[k]); k += 1
            if idx % 20 == 19 and xo:
                emit_ops([xo.pop(0)])
            if idx == 30 and ld: a("s_waitcnt lgkmcnt(0)")
            if idx in (40, 55, 70, 85) and wo:
                emit_ops([wo.pop(0)])
        while k < len(ml): a(ml[k]); k += 1
        assert not xo and not wo
    if NW == 8 and os.environ.get("K4PRIO", "1") != "0":
        a("s_cmp_lt_u32 s32, 4")
        a(f"s_cbranch_scc1 L_{name}_np")
        a("s_setprio 1")
        a.label(f"L_{name}_np")
    a(f"s_waitcnt vmcnt({9*(U-1)+NE})")
    if norm:
        norm_step(0, 0, [], U < NST)
    else:
        wreads(0, 0)
    S.stamp()
    for j in range(NST):
        u = j % U; fs = j % 2; nu = (j + 1) % U; nfs = 1 - fs
        if norm:
            if j + 1 < NST:
                younger = min(j + U, NST - 1) - (j + 1)
                a(f"s_waitcnt vmcnt({9*younger}) lgkmcnt(0)")
                norm_step(nu, nfs, mfma_list(u, fs), j + 1 + U < NST)
            else:
                a("s_waitcnt lgkmcnt(0)")
                for m in mfma_list(u, fs): a(m)
        else:
            if j + 1 < NST:
                younger = min(j + U - 1, NST - 1) - (j + 1)
                a(f"s_waitcnt vmcnt({9*younger}) lgkmcnt(0)")
                wreads(nu, nfs)
            else:
                a("s_waitcnt vmcnt(0) lgkmcnt(0)")
            ld = j + U < NST
            xo = x_ops(u) if ld else []; wo = w_ops(u) if ld else []
            for idx, m in enumerate(mfma_list(u, fs)):
                a(m)
                if idx % 4 == 3 and xo: emit_ops([xo.pop(0)])
                if idx % 4 == 1 and wo: emit_ops([wo.pop(0)])
            assert not xo and not wo
        if NW == 8 and j == NST - int(os.environ.get("K4OFF", "3")): a("s_setprio 0")
    a.label(f"L_{name}_done")
    S.stamp()
    a("s_waitcnt vmcnt(0) lgkmcnt(0)")
    if norm:
        a("s_cmp_lg_u32 s34, 26")
        a(f"s_cbranch_scc1 L_{name}_nozf")
        a("s_cmp_ge_u32 s32, 5")
        a(f"s_cbranch_scc1 L_{name}_nozf")
        a("s_mul_i32 s43, s33, 5")
        a("s_add_u32 s43, s43, s32")
        a(f"s_mul_i32 s43, s43, {GDT}")
        a(f"s_add_u32 s43, s43, {GF_OFF + 54*1024}")
        for r in range(4): a(f"v_mov_b32 v{16+r}, 0")
        a("buffer_store_dwordx4 v[16:19], v3, s[28:31], s43 offen")
        a("buffer_store_dwordx4 v[16:19], v3, s[28:31], s43 offen offset:1024")
        a.label(f"L_{name}_nozf")
        srd(a, 56, 8, 9, WBYTES)
        a("s_lshr_b32 s43, s2, 3")
        a("s_lshl_b32 s43, s43, 3")
        a("s_add_u32 s43, s43, s32")
        a(f"s_mul_i32 s43, s43, {8*4096}")
        a("s_and_b32 s44, s2, 7")
        a("s_lshl_b32 s44, s44, 7")
        a("s_add_u32 s43, s43, s44")
        a("v_lshrrev_b32 v10, 3, v0")
        a("v_lshlrev_b32 v10, 12, v10")
        a("v_and_b32 v11, 7, v0")
        a("v_lshl_add_u32 v10, v11, 4, v10")
        for j in range(4):
            a(f"buffer_load_dwordx4 v[20:23], v10, s[56:59], s43 offen offset:{1024*j}")
    elif layer == 0:
        srd(a, 56, 10, 11, 819200)
        per = 819200 // (32 * NW)
        a("s_lshr_b32 s43, s2, 3")
        a(f"s_mul_i32 s43, s43, {NW}")
        a("s_add_u32 s43, s43, s32")
        a(f"s_mul_i32 s43, s43, {per}")
        for j in range((per + 1023) // 1024):
            if j == 4: a("s_add_u32 s43, s43, 4096")
            a(f"buffer_load_dwordx4 v[20:23], v3, s[56:59], s43 offen offset:{min(1024*j, per-1024) - (4096 if j >= 4 else 0)}")
    code_prefetch(a, NW, 12, 20)
    a("s_barrier")
    OWN = 88
    for o in range(NW):
        dts = own_dts(o); nt = o % 4
        a(f"s_cmp_eq_u32 s32, {o}")
        a(f"s_cbranch_scc1 L_{name}_own{o}")
        a(f"s_sub_u32 s43, s32, {o+1}")
        a(f"s_and_b32 s43, s43, {NW-1}")
        a(f"s_mul_i32 s43, s43, {len(dts)*1024}")
        a(f"s_add_u32 s43, s43, {own_base[o]}")
        a("v_add_u32 v10, s43, v3")
        for j, dt in enumerate(dts):
            t = 4 * (dt * 4 + nt)
            a(f"ds_write_b128 v10, a[{t}:{t+3}] offset:{j*1024}")
        a(f"s_branch L_{name}_nx{o}")
        a.label(f"L_{name}_own{o}")
        for j, dt in enumerate(dts):
            for r in range(4):
                a(f"v_accvgpr_read_b32 v{OWN+4*j+r}, a{4*(dt*4+nt)+r}")
        for r in range(4 * len(dts), 4 * MT): a(f"v_mov_b32 v{OWN+r}, 0")
        a(f"s_mov_b32 s54, {own_base[o]}")
        a(f"s_mov_b32 s55, {len(dts)*1024}")
        a.label(f"L_{name}_nx{o}")
    a("s_waitcnt lgkmcnt(0)")
    a("s_barrier")
    a("v_add_u32 v10, s54, v3")
    BI = 40
    a(f"v_lshlrev_b32 v{BI}, 16, v{EB}")
    a(f"v_and_b32 v{BI+1}, s46, v{EB}")
    a(f"v_lshlrev_b32 v{BI+2}, 16, v{EB+1}")
    a(f"v_and_b32 v{BI+3}, s46, v{EB+1}")
    if NW == 8: PRS = [108, 120, 132, 144, 156, 48, 60]
    else: PRS = [108, 128, 148]
    issued = 0; done = 0
    for sidx in range(NS):
        for j in range(MT):
            a(f"ds_read_b128 {vr(PRS[sidx]+4*j,4)}, v10 offset:{j*1024}")
        issued += 1
        if sidx < NS - 1: a("v_add_u32 v10, s55, v10")
        if (issued - done) * MT >= 12 and sidx < NS - 1:
            a(f"s_waitcnt lgkmcnt({(issued-done-1)*MT})")
            for r in range(4 * MT): a(f"v_add_f32 v{OWN+r}, v{OWN+r}, v{PRS[done]+r}")
            done += 1
    while done < NS:
        a(f"s_waitcnt lgkmcnt({(NS-done-1)*MT})")
        for r in range(4 * MT): a(f"v_add_f32 v{OWN+r}, v{OWN+r}, v{PRS[done]+r}")
        done += 1
    S.stamp()
    E0 = 112
    if norm:
        c1 = -2.0 * math.log2(math.e) * 0.7978845608028654
        c2 = c1 * 0.044715
        a(f"s_mov_b32 s47, {hex(f2u(c1))}")
        a(f"s_mov_b32 s48, {hex(f2u(c2))}")
        a("v_mov_b32 v44, s47")
        a(f"s_mul_i32 s43, s33, {5*GDT}")
        a(f"s_mul_i32 s44, s53, {3*GDT}")
        a("s_add_u32 s43, s43, s44")
        a("s_lshl_b32 s44, s34, 11")
        a("s_add_u32 s43, s43, s44")
        a("s_lshr_b32 s44, s52, 1")
        a("s_lshl_b32 s44, s44, 10")
        a("s_add_u32 s43, s43, s44")
        a("s_and_b32 s44, s52, 1")
        a("s_lshl_b32 s44, s44, 3")
        a("s_add_u32 s43, s43, s44")
        a(f"s_add_u32 s43, s43, {GF_OFF}")
        for j in range(MT):
            if NW == 8 and j == 2:
                a("s_cmp_lg_u32 s53, 0")
                a(f"s_cbranch_scc1 L_{name}_fin")
            for r in range(4):
                u = OWN + 4 * j + r
                a(f"v_add_f32 v{u}, v{u}, v{BI+r}")
            for r in range(4):
                u = OWN + 4 * j + r; t = E0 + r
                a(f"v_mul_f32 v{t}, v{u}, v{u}")
            for r in range(4):
                t = E0 + r
                a(f"v_fma_f32 v{t}, v{t}, s48, v44")
            for r in range(4):
                u = OWN + 4 * j + r; t = E0 + r
                a(f"v_mul_f32 v{t}, v{t}, v{u}")
            for r in range(4): a(f"v_exp_f32 v{E0+r}, v{E0+r}")
            for r in range(4): a(f"v_add_f32 v{E0+r}, 1.0, v{E0+r}")
            for r in range(4): a(f"v_rcp_f32 v{E0+r}, v{E0+r}")
            for r in range(4):
                u = OWN + 4 * j + r
                a(f"v_mul_f32 v{u}, v{u}, v{E0+r}")
            o = E0 + 6 + 2 * j
            a(f"v_cvt_pk_bf16_f32 v{o}, v{OWN+4*j}, v{OWN+4*j+1}")
            a(f"v_cvt_pk_bf16_f32 v{o+1}, v{OWN+4*j+2}, v{OWN+4*j+3}")
            a(f"buffer_store_dwordx2 {vr(o,2)}, v3, s[28:31], s43 offen")
            if j < MT - 1: a(f"s_add_u32 s43, s43, {GDT}")
    else:
        a("s_mul_i32 s43, s52, 2560")
        a(f"s_add_u32 s43, s43, {TR}")
        a("s_mul_i32 s44, s53, 96")
        a("s_add_u32 s44, s44, s43")
        a("v_mul_u32_u24 v10, 640, v2")
        a("v_lshl_add_u32 v10, v1, 1, v10")
        a("v_add_u32 v10, s44, v10")
        for j in range(MT):
            if NW == 8 and j == 2:
                a("s_cmp_lg_u32 s53, 0")
                a(f"s_cbranch_scc1 L_{name}_tr")
            for h in range(2):
                rr = EB + 2 + 2 * j + h
                a(f"v_lshlrev_b32 v{E0}, 16, v{rr}")
                a(f"v_and_b32 v{E0+1}, s46, v{rr}")
                u = OWN + 4 * j + 2 * h
                a(f"v_add_f32 v{u}, v{u}, v{BI+2*h}")
                a(f"v_add_f32 v{u+1}, v{u+1}, v{BI+2*h+1}")
                a(f"v_add_f32 v{E0}, v{E0}, v{u}")
                a(f"v_add_f32 v{E0+1}, v{E0+1}, v{u+1}")
                a(f"v_cvt_pk_bf16_f32 v{E0+2+h}, v{E0}, v{E0+1}")
                a(f"ds_write_b16 v10, v{E0+2+h} offset:{(2*h)*160 + 32*j}")
                a(f"ds_write_b16_d16_hi v10, v{E0+2+h} offset:{(2*h+1)*160 + 32*j}")
        a.label(f"L_{name}_tr")
        NCH = 2 if NW == 8 else 3
        LASTN = 16 if NW == 8 else 32
        a("s_lshl_b32 s44, s34, 6")
        a("s_lshl_b32 s45, s52, 4")
        a("s_add_u32 s44, s44, s45")
        a("s_mul_i32 s44, s44, 1280")
        a("s_mul_i32 s45, s33, 160")
        a("s_add_u32 s44, s44, s45")
        a("s_mov_b32 s47, 6554")
        a("s_movk_i32 s48, 1280")
        a("s_mul_i32 s45, s53, 80")
        a("v_add_u32 v12, s45, v0")
        a("v_lshlrev_b32 v11, 4, v12")
        a("v_add_u32 v11, s43, v11")
        for j in range(NCH):
            if j: a("v_add_u32 v12, 64, v12")
            a("v_mul_lo_u32 v13, v12, s47")
            a("v_lshrrev_b32 v13, 16, v13")
            a("v_mul_u32_u24 v14, 10, v13")
            a("v_sub_u32 v14, v12, v14")
            a("v_mul_lo_u32 v13, v13, s48")
            a(f"v_lshl_add_u32 v{16+j}, v14, 4, v13")
        a("s_waitcnt lgkmcnt(0)")
        if NW == 8: a("s_barrier")
        for j in range(NCH):
            a(f"ds_read_b128 {vr(120+4*j,4)}, v11 offset:{1024*j}")
        a("s_waitcnt lgkmcnt(0)")
        for j in range(NCH):
            if j == NCH - 1:
                a(f"v_cmp_gt_u32 vcc, {LASTN}, v0")
                a("s_and_saveexec_b64 s[46:47], vcc")
            a(f"buffer_store_dwordx4 {vr(120+4*j,4)}, v{16+j}, s[16:19], s44 offen")
    a.label(f"L_{name}_fin")
    S.stamp(); S.real(); S.flush()
    a.label(f"L_{name}_end")
    a("s_endpgm")
    kdt = kd(name, NV + 80).replace(f".amdhsa_accum_offset {NV+80}", f".amdhsa_accum_offset {NV}")
    return name, a.text(), kdt, f"; @launch kernel={name} grid=({NWG},1,1) block=({64*NW},1,1) lds={LDS}"


def gen_mlpA(which):
    norm = which == 1
    name = "mlp1_kernel" if norm else "mlp2_0_kernel"
    a = Asm()
    if not norm:
        header(a, "mlp2_1_kernel")
        a("s_mov_b32 s99, 1")
        a("s_branch L_mlp2_body")
        header(a, name)
        a("s_mov_b32 s99, 0")
        a.label("L_mlp2_body")
    else:
        header(a, name)
    D = 8
    NH = 32 if norm else 28
    NS = NH // 2
    DX = 4
    RINGH = D * 8192
    TAB = 2 * RINGH
    RED = 0
    TR = 32768
    LDS = TAB + (16384 if norm else 0)
    NWG = 216 if norm else 256
    WSTR = 3456 if norm else 4096
    WBYTES = 2048 * 1728 * 2
    XDT = 65536 if norm else GDT
    XOFF = X1T_OFF if norm else GF_OFF
    a(f"s_cmp_ge_u32 s2, {NWG}")
    a(f"s_cbranch_scc1 L_{name}_end")
    S = Stamper(a, 2 + which, 16); S.real(); S.stamp()
    a(f"s_load_dwordx4 s[4:7], s[0:1], {48 if norm else 64}")
    a(f"s_load_dwordx2 s[12:13], s[0:1], 96")
    if norm:
        a(f"s_load_dwordx2 s[8:9], s[0:1], 64")
    else:
        a(f"s_load_dwordx2 s[8:9], s[0:1], 80")
        a(f"s_load_dwordx2 s[10:11], s[0:1], 8")
    a("v_mov_b32 v40, v0")
    a("v_lshrrev_b32 v1, 6, v0")
    a("v_and_b32 v0, 63, v0")
    a("v_readfirstlane_b32 s32, v1")
    if norm:
        a("s_and_b32 s33, s2, 7")
        a(f"s_mul_i32 s33, s33, {NWG//8}")
        a("s_lshr_b32 s34, s2, 3")
        a("s_add_u32 s33, s33, s34")
        a("s_lshr_b32 s34, s33, 3")
        a("s_and_b32 s33, s33, 7")
    else:
        a("s_and_b32 s34, s2, 7")
        a("s_lshr_b32 s33, s2, 3")
        a("s_and_b32 s33, s33, 3")
        a("s_lshl_b32 s33, s33, 3")
        a("s_add_u32 s34, s34, s33")
        a("s_lshr_b32 s33, s2, 5")
    a("v_and_b32 v1, 15, v0")
    a("v_lshrrev_b32 v2, 4, v0")
    a("v_lshlrev_b32 v3, 4, v0")
    a("s_cmp_ge_u32 s32, 10")
    a(f"s_cbranch_scc1 L_{name}_prod")
    a("s_cmp_ge_u32 s32, 5")
    a("s_cselect_b32 s53, 1, 0")
    a("s_mul_i32 s52, s53, 5")
    a("s_sub_u32 s52, s32, s52")
    a("s_mul_i32 s41, s33, 5")
    a("s_add_u32 s41, s41, s52")
    a(f"s_mul_i32 s41, s41, {XDT}")
    a(f"s_mul_i32 s42, s53, {NH*1024}")
    a("s_add_u32 s41, s41, s42")
    a(f"s_add_u32 s41, s41, {XOFF}")
    a("s_waitcnt lgkmcnt(0)")
    srd(a, 28, 12, 13, WS_SIZE)
    XR = 48
    XN = 80
    WF = 96
    ACC = 24
    EB = 16
    NV = 168
    TBL = 104
    TR0 = 96
    def table_compute():
        a("v_lshlrev_b32 v4, 3, v40")
        a(f"s_mov_b32 s43, {ST_OFF}")
        for i2 in range(4):
            if i2 == 3:
                a("v_cmp_gt_u32 vcc, 128, v40")
                a("s_and_saveexec_b64 s[50:51], vcc")
            a(f"buffer_load_dwordx2 {vr(TR0+2*i2,2)}, v4, s[28:31], s43 offen")
            if i2 < 3: a(f"s_add_u32 s43, s43, {640*8}")
        a("s_mov_b64 exec, -1")
    def table_finish(nyounger):
        a(f"s_waitcnt vmcnt({nyounger})")
        a("v_lshlrev_b32 v4, 2, v40")
        a(f"v_add_u32 v4, {TAB}, v4")
        a(f"s_mov_b32 s47, {hex(f2u(1.0/640))}")
        a(f"s_mov_b32 s48, {hex(f2u(1e-5))}")
        for i2 in range(4):
            m = TR0 + 2 * i2; q = m + 1; T_ = 110
            a(f"v_mul_f32 v{m}, s47, v{m}")
            a(f"v_mul_f32 v{q}, s47, v{q}")
            a(f"v_fma_f32 v{q}, -v{m}, v{m}, v{q}")
            a(f"v_max_f32 v{q}, 0, v{q}")
            a(f"v_add_f32 v{T_}, s48, v{q}")
            a(f"v_rsq_f32 v{T_}, v{T_}")
            a("s_nop 0")
            a(f"v_mul_f32 v{q}, v{q}, v{T_}")
            a(f"v_fma_f32 v{q}, v{q}, v{T_}, s48")
            a(f"v_rsq_f32 v{q}, v{q}")
            a("s_nop 0")
            a(f"v_mul_f32 v{q}, v{q}, v{T_}")
            a(f"v_mul_f32 v{m}, v{m}, v{q}")
            a(f"v_sub_f32 v{m}, 0, v{m}")
            if i2 == 3:
                a("v_cmp_gt_u32 vcc, 128, v40")
                a("s_and_saveexec_b64 s[50:51], vcc")
            a(f"ds_write_b32 v4, v{q} offset:{2560*i2}")
            a(f"ds_write_b32 v4, v{m} offset:{8192+2560*i2}")
        a("s_mov_b64 exec, -1")
        a("s_waitcnt lgkmcnt(0)")
    if norm: table_compute()
    def x_load(st):
        sl = st % DX
        a(f"buffer_load_dwordx4 {vr(XR+8*sl,4)}, v3, s[28:31], s41 offen")
        a(f"buffer_load_dwordx4 {vr(XR+8*sl+4,4)}, v3, s[28:31], s41 offen offset:1024")
        a("s_add_u32 s41, s41, 2048")
    x_load(0)
    srd(a, 24, 6, 7, 1728 * 2 if norm else 2048 * 2)
    a("s_lshl_b32 s43, s34, 7")
    a("s_lshl_b32 s44, s53, 6")
    a("s_add_u32 s43, s43, s44")
    a("v_lshlrev_b32 v10, 3, v2")
    a(f"buffer_load_dwordx2 {vr(EB,2)}, v10, s[24:27], s43 offen")
    a(f"buffer_load_dwordx2 {vr(EB+2,2)}, v10, s[24:27], s43 offen offset:32")
    NE = 2
    if not norm:
        a("s_mul_i32 s43, s33, 5")
        a("s_add_u32 s43, s43, s52")
        a("s_lshl_b32 s43, s43, 16")
        a("s_lshl_b32 s44, s34, 11")
        a("s_add_u32 s43, s43, s44")
        a("s_lshl_b32 s44, s53, 10")
        a("s_add_u32 s43, s43, s44")
        a(f"s_add_u32 s43, s43, {X1T_OFF}")
        a(f"buffer_load_dwordx4 {vr(EB+4,4)}, v3, s[28:31], s43 offen")
        NE = 3
    for st in range(1, DX): x_load(st)
    a("v_lshrrev_b32 v10, 2, v1")
    a("v_lshl_add_u32 v10, v2, 2, v10")
    a("v_lshrrev_b32 v11, 1, v10")
    a("v_and_b32 v11, 3, v11")
    a("v_and_b32 v12, 3, v1")
    a("v_lshlrev_b32 v12, 3, v12")
    a("v_lshl_add_u32 v12, v10, 7, v12")
    a(f"s_mul_i32 s42, s53, {RINGH}")
    a("v_add_u32 v12, s42, v12")
    for nt in range(4):
        a(f"v_xor_b32 v13, {nt}, v11")
        a(f"v_lshl_add_u32 v{6+nt}, v13, 5, v12")
    for r in range(16): a(f"v_mov_b32 v{ACC+r}, 0")
    a("s_mov_b32 s46, 0xffff0000")
    if norm:
        table_finish(2 * DX + NE)
        a("v_lshlrev_b32 v15, 4, v2")
        a(f"s_mul_i32 s43, s53, {NH*128}")
        a(f"s_add_u32 s43, s43, {TAB}")
        a("v_add_u32 v15, s43, v15")
    TT = 160
    def wreads(st, k2s=(0, 1)):
        ring = st % D; wb = WF + 32 * (st % 2)
        for k2 in k2s:
            for nt in range(4):
                for half in range(2):
                    a(f"ds_read_b64_tr_b16 {vr(wb+16*k2+4*nt+2*half,2)}, v{6+nt} offset:{ring*8192+k2*4096+half*2048}")
    def norm_pieces(st):
        sl = st % DX; xn = XN + 8 * (st % 2)
        out = []
        for k2 in range(2):
            for hh in range(2):
                off = (2 * st + k2) * 128 + 64 * hh
                rd = [f"ds_read_b128 {vr(TT,4)}, v15 offset:{off}", f"ds_read_b128 {vr(TT+4,4)}, v15 offset:{off+8192}"]
                ops = []
                for d2 in range(2):
                    dw = 2 * hh + d2
                    r = XR + 8 * sl + 4 * k2 + dw
                    t0 = 42 + 2 * d2; t1 = t0 + 1
                    ops += [f"v_lshlrev_b32 v{t0}, 16, v{r}", f"v_and_b32 v{t1}, s46, v{r}",
                            f"v_fma_f32 v{t0}, v{t0}, v{TT+2*d2}, v{TT+4+2*d2}",
                            f"v_fma_f32 v{t1}, v{t1}, v{TT+2*d2+1}, v{TT+4+2*d2+1}",
                            f"v_cvt_pk_bf16_f32 v{xn+4*k2+dw}, v{t0}, v{t1}"]
                out.append((rd, ops))
        return out
    def xwait(st):
        issued = min(st + DX - 1 - (1 if True else 0) + 0, NS - 1)
        return issued
    a("s_barrier")
    S.stamp()
    wreads(0)
    a(f"s_waitcnt vmcnt({2*(DX-1)+NE})")
    if norm:
        for rd, ops in norm_pieces(0):
            for x in rd: a(x)
            a("s_waitcnt lgkmcnt(0)")
            for x in ops: a(x)
        if DX < NS: x_load(DX)
    hi = DX if (norm and DX < NS) else DX - 1
    for st in range(NS):
        sl = st % DX; wb = WF + 32 * (st % 2)
        nxt = st + 1 < NS
        a("s_waitcnt lgkmcnt(0)")
        if nxt:
            a("s_barrier")
            if not norm: wreads(st + 1)
        ml = []
        for k2 in range(2):
            x = (XN + 8 * (st % 2) + 4 * k2) if norm else (XR + 8 * sl + 4 * k2)
            for nt in range(4): ml.append((ACC + 4 * nt, wb + 16 * k2 + 4 * nt, x))
        if norm:
            if nxt:
                a(f"s_waitcnt vmcnt({2*(hi-(st+1))})")
                pcs = norm_pieces(st + 1)
                for pi, (rd, ops) in enumerate(pcs):
                    for x in rd: a(x)
                    if pi < 2: wreads(st + 1, (pi,))
                    for m in ml[2*pi:2*pi+2]: mfma16(a, *m)
                    a(f"s_waitcnt lgkmcnt({8 if pi < 2 else 0})")
                    for x in ops: a(x)
                if st + 1 + DX < NS:
                    x_load(st + 1 + DX); hi = st + 1 + DX
            else:
                for m in ml: mfma16(a, *m)
        else:
            if st > 0: a(f"s_waitcnt vmcnt({2*(hi-st)})")
            for m in ml: mfma16(a, *m)
            if st + DX < NS:
                x_load(st + DX); hi = st + DX
    S.stamp()
    a("s_nop 7")
    a("s_barrier")
    a("s_lshl_b32 s43, s32, 11")
    a("v_add_u32 v10, s43, v3")
    a("s_cmp_eq_u32 s53, 0")
    a(f"s_cbranch_scc1 L_{name}_x0")
    a(f"ds_write_b128 v10, {vr(ACC,4)}")
    a(f"ds_write_b128 v10, {vr(ACC+4,4)} offset:1024")
    for r in range(8): a(f"v_mov_b32 v{ACC+r}, v{ACC+8+r}")
    a(f"s_sub_u32 s43, s43, {5*2048}")
    a(f"s_branch L_{name}_x1")
    a.label(f"L_{name}_x0")
    a(f"ds_write_b128 v10, {vr(ACC+8,4)}")
    a(f"ds_write_b128 v10, {vr(ACC+12,4)} offset:1024")
    a(f"s_add_u32 s43, s43, {5*2048}")
    a.label(f"L_{name}_x1")
    a("v_add_u32 v10, s43, v3")
    a("s_waitcnt lgkmcnt(0)")
    a("s_barrier")
    a(f"ds_read_b128 {vr(48,4)}, v10")
    a(f"ds_read_b128 {vr(52,4)}, v10 offset:1024")
    BI = 56
    for j in range(2):
        a(f"v_lshlrev_b32 v{BI+4*j}, 16, v{EB+2*j}")
        a(f"v_and_b32 v{BI+4*j+1}, s46, v{EB+2*j}")
        a(f"v_lshlrev_b32 v{BI+4*j+2}, 16, v{EB+2*j+1}")
        a(f"v_and_b32 v{BI+4*j+3}, s46, v{EB+2*j+1}")
    a("s_waitcnt lgkmcnt(0)")
    for r in range(8):
        a(f"v_add_f32 v{ACC+r}, v{ACC+r}, v{48+r}")
        a(f"v_add_f32 v{ACC+r}, v{ACC+r}, v{BI+r}")
    E0 = 64
    if norm:
        c1 = -2.0 * math.log2(math.e) * 0.7978845608028654
        c2 = c1 * 0.044715
        a(f"s_mov_b32 s47, {hex(f2u(c1))}")
        a(f"s_mov_b32 s48, {hex(f2u(c2))}")
        a("v_mov_b32 v44, s47")
        for r in range(8): a(f"v_mul_f32 v{E0+r}, v{ACC+r}, v{ACC+r}")
        for r in range(8): a(f"v_fma_f32 v{E0+r}, v{E0+r}, s48, v44")
        for r in range(8): a(f"v_mul_f32 v{E0+r}, v{E0+r}, v{ACC+r}")
        for r in range(8): a(f"v_exp_f32 v{E0+r}, v{E0+r}")
        for r in range(8): a(f"v_add_f32 v{E0+r}, 1.0, v{E0+r}")
        for r in range(8): a(f"v_rcp_f32 v{E0+r}, v{E0+r}")
        for r in range(8): a(f"v_mul_f32 v{ACC+r}, v{ACC+r}, v{E0+r}")
        for r in range(4): a(f"v_cvt_pk_bf16_f32 v{E0+8+r}, v{ACC+2*r}, v{ACC+2*r+1}")
        a("s_mul_i32 s43, s33, 5")
        a("s_add_u32 s43, s43, s52")
        a(f"s_mul_i32 s43, s43, {GDT}")
        a("s_lshl_b32 s44, s34, 11")
        a("s_add_u32 s45, s43, s44")
        a("s_lshl_b32 s44, s53, 10")
        a("s_add_u32 s45, s45, s44")
        a(f"s_add_u32 s45, s45, {GF_OFF}")
        a(f"buffer_store_dwordx4 {vr(E0+8,4)}, v3, s[28:31], s45 offen")
        a("s_cmp_lg_u32 s34, 26")
        a(f"s_cbranch_scc1 L_{name}_fin")
        a("s_add_u32 s45, s45, 2048")
        for r in range(4): a(f"v_mov_b32 v{E0+r}, 0")
        a(f"buffer_store_dwordx4 {vr(E0,4)}, v3, s[28:31], s45 offen")
    else:
        a(f"s_mul_i32 s43, s53, {32*160}")
        a("s_lshl_b32 s44, s52, 5")
        a("s_add_u32 s43, s43, s44")
        a(f"s_add_u32 s43, s43, {TR}")
        a("v_mul_u32_u24 v10, 640, v2")
        a("v_lshl_add_u32 v10, v1, 1, v10")
        a("v_add_u32 v10, s43, v10")
        for j in range(2):
            for h in range(2):
                rr = EB + 4 + 2 * j + h
                u = ACC + 4 * j + 2 * h
                a(f"v_lshlrev_b32 v{E0}, 16, v{rr}")
                a(f"v_and_b32 v{E0+1}, s46, v{rr}")
                a(f"v_add_f32 v{E0}, v{E0}, v{u}")
                a(f"v_add_f32 v{E0+1}, v{E0+1}, v{u+1}")
                a(f"v_cvt_pk_bf16_f32 v{E0+2+h}, v{E0}, v{E0+1}")
                a(f"ds_write_b16 v10, v{E0+2+h} offset:{(16*j+2*h)*160}")
                a(f"ds_write_b16_d16_hi v10, v{E0+2+h} offset:{(16*j+2*h+1)*160}")
        a(f"s_add_u32 s14, s12, {hex(X2_OFF)}")
        a("s_addc_u32 s15, s13, 0")
        a("s_cmp_eq_u32 s99, 0")
        a("s_cselect_b32 s8, s14, s8")
        a("s_cselect_b32 s9, s15, s9")
        srd(a, 16, 8, 9, XBYTES)
        a("s_mul_i32 s44, s34, 81920")
        a("s_mul_i32 s45, s33, 160")
        a("s_add_u32 s44, s44, s45")
        a("s_mov_b32 s47, 6554")
        a("s_movk_i32 s48, 1280")
        a("v_mul_lo_u32 v13, v40, s47")
        a("v_lshrrev_b32 v13, 16, v13")
        a("v_mul_u32_u24 v14, 10, v13")
        a("v_sub_u32 v14, v40, v14")
        a("v_mul_lo_u32 v13, v13, s48")
        a("v_lshl_add_u32 v13, v14, 4, v13")
        a("v_lshlrev_b32 v11, 4, v40")
        a("s_waitcnt lgkmcnt(0)")
        a("s_barrier")
        a(f"ds_read_b128 {vr(72,4)}, v11 offset:{TR}")
        a("s_waitcnt lgkmcnt(0)")
        a(f"buffer_store_dwordx4 {vr(72,4)}, v13, s[16:19], s44 offen")
    a(f"s_branch L_{name}_fin")
    a.label(f"L_{name}_prod")
    a("s_sub_u32 s53, s32, 10")
    a("v_lshrrev_b32 v10, 3, v0")
    a("v_lshrrev_b32 v11, 1, v10")
    a("v_and_b32 v11, 3, v11")
    a("v_lshlrev_b32 v11, 1, v11")
    a("v_and_b32 v12, 7, v0")
    a("v_xor_b32 v12, v12, v11")
    a(f"s_movk_i32 s38, {WSTR}")
    a("v_mul_lo_u32 v5, v10, s38")
    a("v_lshl_add_u32 v44, v12, 4, v5")
    for jj in range(1, 4): a(f"v_add_u32 v{44+jj}, {jj*(8*WSTR-1024)}, v44")
    a(f"s_mul_i32 s40, s53, {NH*32*WSTR}")
    a("s_lshl_b32 s41, s34, 7")
    a("s_add_u32 s40, s40, s41")
    a(f"s_mul_i32 s42, s53, {RINGH}")
    a("s_waitcnt lgkmcnt(0)")
    srd(a, 20, 4, 5, WBYTES)
    srd(a, 28, 12, 13, WS_SIZE)
    def w_stage(st):
        ring = st % D
        for k2 in range(2):
            a(f"s_add_u32 s44, s42, {ring*8192 + k2*4096}")
            a("s_mov_b32 m0, s44")
            a("s_nop 0")
            for jj in range(4):
                a(f"buffer_load_dwordx4 v{44+jj}, s[20:23], s40 offen offset:{jj*1024} lds")
            a(f"s_add_u32 s40, s40, {32*WSTR}")
    w_stage(0); w_stage(1); w_stage(2)
    hiw = 2
    a(f"s_waitcnt vmcnt({8*hiw})")
    a("s_barrier")
    for k in range(2):
        w_stage(hiw + 1); hiw += 1
    for st in range(NS - 1):
        a(f"s_waitcnt vmcnt({8*(hiw-(st+1))})")
        a("s_barrier")
        for k in range(2):
            if hiw + 1 < NS and hiw + 1 <= st + D:
                w_stage(hiw + 1); hiw += 1
    a("s_lshr_b32 s43, s2, 3")
    a("s_lshl_b32 s43, s43, 1")
    a("s_add_u32 s43, s43, s53")
    if norm:
        srd(a, 56, 8, 9, WBYTES)
        a(f"s_mul_i32 s43, s43, {32*4096}")
        a("s_and_b32 s44, s2, 7")
        a("s_lshl_b32 s44, s44, 7")
        a("s_add_u32 s43, s43, s44")
        a("v_lshrrev_b32 v10, 3, v0")
        a("v_lshlrev_b32 v10, 12, v10")
        a("v_and_b32 v11, 7, v0")
        a("v_lshl_add_u32 v10, v11, 4, v10")
        for rg in range(4):
            for j in range(4):
                a(f"buffer_load_dwordx4 v[20:23], v10, s[56:59], s43 offen offset:{1024*j}")
            a(f"s_add_u32 s43, s43, {8*4096}")
    else:
        a("s_cmp_lg_u32 s99, 0")
        a(f"s_cbranch_scc1 L_{name}_nopf")
        srd(a, 56, 10, 11, 819200)
        a("s_mul_i32 s43, s43, 12800")
        for j in range(13):
            a(f"buffer_load_dwordx4 v[20:23], v3, s[56:59], s43 offen")
            a("s_add_u32 s43, s43, 1024")
        a.label(f"L_{name}_nopf")
    a("s_mov_b32 s32, s53")
    for k in range(2):
        code_prefetch(a, 4, 12, 20)
        a("s_add_u32 s32, s32, 2")
    a("s_barrier"); a("s_barrier")
    if not norm: a("s_barrier")
    a(f"s_branch L_{name}_end")
    a.label(f"L_{name}_fin")
    S.stamp(); S.real(); S.flush()
    a.label(f"L_{name}_end")
    a("s_endpgm")
    ll = lambda n: f"; @launch kernel={n} grid=({NWG},1,1) block=(768,1,1) lds={LDS}"
    if norm:
        k = (name, a.text(), kd(name, NV), ll(name))
        return k, k
    return (name, a.text(), kd(name, NV) + kd("mlp2_1_kernel", NV), ll(name)), ("mlp2_1_kernel", "", "", ll("mlp2_1_kernel"))

if "--stamps" in sys.argv:
    STAMPS = True; sys.argv.remove("--stamps")
KERNELS = []
QKV = gen_qkv()
ATT = gen_attn()
m = gen_mlp(1, 0); M1 = (m, m)
if os.environ.get("MLPA", "1") == "1":
    M2 = gen_mlpA(2)
else:
    M2 = (gen_mlp(2, 0), gen_mlp(2, 1))
for L in range(2):
    KERNELS += [QKV[L], ATT[L], M1[L], M2[L]]

def emit(kernels, path, order=None):
    launches = [k[3] for k in kernels] if order is None else order
    hdr = open("interleave_layers__grouped_kv_mqa__mixer_token_mlp__prompt.s.ref").read().split("; Override")[0]
    out = hdr + "\n".join(launches) + "\n"
    out += '.amdgcn_target "amdgcn-amd-amdhsa--gfx950"\n.text\n.p2align 8\nL_text_start:\n'
    seen = set()
    for k in kernels:
        if k[0] in seen: continue
        seen.add(k[0]); out += k[1]
    out += 'L_text_end:\n'
    out += '.section .rodata,"a"\n'
    seen = set()
    for k in kernels:
        if k[0] in seen: continue
        seen.add(k[0]); out += k[2]
    open(path, "w").write(out)

if __name__ == "__main__":
    emit(KERNELS, sys.argv[1] if len(sys.argv) > 1 else "k.s")
```

```python
import struct, sys, math, os

def f2u(x): return struct.unpack("<I", struct.pack("<f", x))[0]

QT_OFF   = 0
KV_OFF   = 0x300000
OF_OFF   = 0x400000
X1T_OFF  = 0x700000
ST_OFF   = 0xA00000
GF_OFF   = 0xB00000
X2_OFF   = 0xE00000
CNT_OFF  = 0xA80000
WS_SIZE  = 0x10000000
GDT = 56 * 1024
KVT = 2624
XBYTES = 2048 * 640 * 2

class Asm:
    def __init__(self): self.l = []
    def __call__(self, s):
        for x in s.strip("\n").split("\n"):
            self.l.append("    " + x.strip())
    def label(self, n): self.l.append(n + ":")
    def raw(self, s): self.l.append(s)
    def text(self): return "\n".join(self.l) + "\n"

def vr(b, n=1): return f"v{b}" if n == 1 else f"v[{b}:{b+n-1}]"
def sr(b, n=1): return f"s{b}" if n == 1 else f"s[{b}:{b+n-1}]"

def srd(a, d, lo, hi, nbytes):
    a(f"s_mov_b32 s{d}, s{lo}")
    a(f"s_and_b32 s{d+1}, s{hi}, 0xffff")
    a(f"s_mov_b32 s{d+2}, {hex(nbytes)}")
    a(f"s_mov_b32 s{d+3}, 0x00020000")

def header(a, name):
    a.raw(f".globl {name}\n.p2align 8\n.type {name},@function\n{name}:")

def kd(name, nv, ns=102):
    acc = (nv + 3) // 4 * 4
    return f""".p2align 6
.amdhsa_kernel {name}
  .amdhsa_next_free_vgpr {nv}
  .amdhsa_next_free_sgpr {ns}
  .amdhsa_accum_offset {acc}
  .amdhsa_group_segment_fixed_size 0
  .amdhsa_kernarg_size 104
  .amdhsa_user_sgpr_count 2
  .amdhsa_user_sgpr_kernarg_segment_ptr 1
  .amdhsa_system_sgpr_workgroup_id_x 1
.end_amdhsa_kernel
"""

STAMPS = False
DBG_OFF = 0x8000000
class Stamper:
    def __init__(self, a, kidx, maxw): self.a = a; self.n = 0; self.kidx = kidx; self.maxw = maxw
    def stamp(self):
        if not STAMPS: return
        self.a(f"s_memtime s[{72+2*self.n}:{73+2*self.n}]"); self.n += 1
    def real(self):
        if not STAMPS: return
        self.a(f"s_memrealtime s[{72+2*self.n}:{73+2*self.n}]"); self.n += 1
    def flush(self, wave_s="s32", srd_="s[28:31]"):
        if not STAMPS: return
        a = self.a
        a("s_mov_b64 exec, -1")
        a("s_waitcnt lgkmcnt(0) vmcnt(0)")
        a(f"s_mul_i32 s58, s2, {self.maxw}")
        a(f"s_add_u32 s58, s58, {wave_s}")
        a("s_lshl_b32 s58, s58, 6")
        a(f"s_add_u32 s58, s58, {DBG_OFF + self.kidx * 0x100000}")
        a("v_mov_b32 v0, 0")
        for i in range(self.n):
            a(f"v_mov_b32 v1, s{72+2*i}")
            a(f"buffer_store_dword v1, v0, {srd_}, s58 offen offset:{4*i}")
        a("s_waitcnt vmcnt(0)")

_pfn = [0]
def code_prefetch(a, nw, vaddr, vdst):
    if os.environ.get("CODEPF", "1") != "1": return
    _pfn[0] += 1
    L = f"L_pc_ref{_pfn[0]}"
    a("s_getpc_b64 s[90:91]")
    a.label(L)
    a(f"s_sub_u32 s90, s90, {L} - L_text_start")
    a("s_subb_u32 s91, s91, 0")
    a("s_lshr_b32 s92, s2, 3")
    a(f"s_mul_i32 s92, s92, {nw}")
    a("s_add_u32 s92, s92, s32")
    a("s_lshl_b32 s92, s92, 9")
    a("s_min_u32 s92, s92, L_text_end - L_text_start - 512")
    a("s_add_u32 s90, s90, s92")
    a("s_addc_u32 s91, s91, 0")
    a(f"v_lshlrev_b32 v{vaddr}, 3, v0")
    a(f"global_load_dwordx2 v[{vdst}:{vdst+1}], v{vaddr}, s[90:91]")

def mfma16(a, d, x, y, c=None):
    c = vr(d, 4) if c is None else c
    a(f"v_mfma_f32_16x16x32_bf16 {vr(d,4)}, {vr(x,4)}, {vr(y,4)}, {c}")

def gen_qkv():
    name = "qkv0_kernel"
    a = Asm()
    header(a, "qkv1_kernel")
    a("s_mov_b32 s99, 1")
    a("s_branch L_qkv_body")
    header(a, name)
    a("s_mov_b32 s99, 0")
    a.label("L_qkv_body")
    WB = 0; WST = 20480
    XB = 61440; XST = 16384
    WKV = 110592
    MISC = 136192
    LDS = MISC + 512
    a(f"s_cmp_ge_u32 s2, 256")
    a(f"s_cbranch_scc1 L_{name}_end")
    S = Stamper(a, 0, 8); S.real(); S.stamp()
    a(f"s_load_dwordx4 s[4:7], s[0:1], 0")
    a(f"s_load_dwordx4 s[8:11], s[0:1], 16")
    a(f"s_load_dwordx2 s[12:13], s[0:1], 96")
    a("v_lshrrev_b32 v1, 6, v0")
    a("v_and_b32 v0, 63, v0")
    a("v_readfirstlane_b32 s32, v1")
    a("s_and_b32 s33, s2, 7")
    a("s_lshr_b32 s34, s2, 3")
    a("s_and_b32 s34, s34, 3")
    a("s_lshl_b32 s34, s34, 3")
    a("s_add_u32 s33, s33, s34")
    a("s_lshr_b32 s34, s2, 5")
    a("s_movk_i32 s38, 1280")
    a("s_cmp_ge_u32 s32, 4")
    a(f"s_cbranch_scc1 L_{name}_p0")
    a("v_and_b32 v1, 15, v0")
    a("v_lshrrev_b32 v2, 4, v0")
    a("s_lshl_b32 s42, s32, 12")
    a("v_lshrrev_b32 v10, 1, v1")
    a("v_and_b32 v10, 7, v10")
    a("v_lshrrev_b32 v11, 1, v2")
    a("v_and_b32 v12, 1, v2")
    a("v_lshlrev_b32 v13, 7, v1")
    a("v_lshl_add_u32 v13, v12, 3, v13")
    a("v_add_u32 v13, s42, v13")
    a(f"v_add_u32 v13, {XB}, v13")
    for h in range(2):
        for sec in range(2):
            a(f"v_add_u32 v15, {4*h + 2*sec}, v11")
            a("v_xor_b32 v15, v15, v10")
            a(f"v_lshl_add_u32 v{16 + 2*h + sec}, v15, 4, v13")
    a("v_lshrrev_b32 v10, 2, v1")
    a("v_lshl_add_u32 v10, v2, 2, v10")
    a("v_and_b32 v11, 3, v1")
    a("v_lshlrev_b32 v11, 3, v11")
    a("v_mul_u32_u24 v12, 160, v10")
    a("v_add_u32 v20, v12, v11")
    a("s_lshl_b32 s43, s32, 5")
    a("v_add_u32 v21, s43, v20")
    a("v_mul_u32_u24 v12, 40, v10")
    a("v_add_u32 v12, v12, v11")
    a(f"v_add_u32 v22, {WKV}, v12")
    ONES = 24
    ACC = 28
    CS4 = 56; CS5 = 60; CS6 = 64; CSO = 68; RS = 72; GR = 76
    FR = 80
    for r in range(4): a(f"v_mov_b32 v{ONES+r}, 0x3f803f80")
    for r in range(ACC, 80): a(f"v_mov_b32 v{r}, 0")
    a("s_waitcnt lgkmcnt(0)")
    srd(a, 28, 12, 13, WS_SIZE)
    a("s_cmp_ge_u32 s34, 2")
    a(f"s_cbranch_scc1 L_{name}_nokv")
    a("s_cmp_eq_u32 s34, 0")
    a("s_cselect_b32 s14, s8, s10")
    a("s_cselect_b32 s15, s9, s11")
    srd(a, 24, 14, 15, 25600)
    a("v_lshlrev_b32 v14, 4, v0")
    a("s_lshl_b32 s43, s32, 10")
    a.label(f"L_{name}_kvl")
    a(f"s_add_u32 s44, s43, {WKV}")
    a("s_mov_b32 m0, s44")
    a("s_nop 0")
    a("buffer_load_dwordx4 v14, s[24:27], s43 offen lds")
    a("s_add_u32 s43, s43, 4096")
    a("s_cmp_lt_u32 s43, 25600")
    a(f"s_cbranch_scc1 L_{name}_kvl")
    a("s_waitcnt vmcnt(0)")
    a.label(f"L_{name}_nokv")
    a("s_cmp_lt_u32 s34, 2")
    a("s_cselect_b64 vcc, -1, 0")
    a("s_mov_b32 s41, 0")
    a(f"s_mov_b32 s46, {XST}")
    a(f"s_mov_b32 s47, {WST}")
    def reads(ks4, fs):
        b = FR + 36 * fs
        kb = ks4 // 2; h = ks4 % 2
        a(f"ds_read_b64 {vr(b,2)}, v{16+2*h} offset:{kb*2048}")
        a(f"ds_read_b64 {vr(b+2,2)}, v{17+2*h} offset:{kb*2048}")
        for nt in range(5):
            for half in range(2):
                off = (32 * ks4 + 16 * half) * 160 + 32 * nt
                a(f"ds_read_b64_tr_b16 {vr(b+4+4*nt+2*half,2)}, v20 offset:{off}")
        for half in range(2):
            a(f"ds_read_b64_tr_b16 {vr(b+32+2*half,2)}, v21 offset:{(32 * ks4 + 16 * half) * 160}")
    def kvreads(ks4, fs):
        b = FR + 36 * fs
        for t in range(2):
            for half in range(2):
                a(f"ds_read_b64_tr_b16 {vr(b+24+4*t+2*half,2)}, v22 offset:{(32 * ks4 + 16 * half) * 40 + 32 * t}")
    a.label(f"L_{name}_stage")
    a("s_barrier")
    reads(0, 0)
    a(f"s_cbranch_vccz L_{name}_k0")
    kvreads(0, 0)
    a.label(f"L_{name}_k0")
    for ks4 in range(4):
        fs = ks4 % 2; b = FR + 36 * fs
        a("s_waitcnt lgkmcnt(0)")
        if ks4 < 3: reads(ks4 + 1, 1 - fs)
        for nt in range(5): mfma16(a, ACC + 4 * nt, b + 4 + 4 * nt, b)
        mfma16(a, CS4, b + 4 + 16, ONES)
        mfma16(a, CSO, b + 32, ONES)
        mfma16(a, RS, ONES, b)
        mfma16(a, GR, b, b)
        a(f"s_cbranch_vccz L_{name}_k{ks4+1}")
        if ks4 < 3: kvreads(ks4 + 1, 1 - fs)
        mfma16(a, ACC + 20, b + 24, b)
        mfma16(a, ACC + 24, b + 28, b)
        mfma16(a, CS5, b + 24, ONES)
        mfma16(a, CS6, b + 28, ONES)
        a.label(f"L_{name}_k{ks4+1}")
    a("s_cmp_eq_u32 s41, 2")
    a(f"s_cselect_b32 s43, {(-2*XST) & 0xffffffff}, s46")
    a(f"s_cselect_b32 s44, {(-2*WST) & 0xffffffff}, s47")
    for r in range(4): a(f"v_add_u32 v{16+r}, s43, v{16+r}")
    a("v_add_u32 v20, s44, v20")
    a("v_add_u32 v21, s44, v21")
    a(f"v_add_u32 v22, {128*40}, v22")
    a("s_add_u32 s41, s41, 1")
    a("s_cmp_lt_u32 s41, 5")
    a(f"s_cbranch_scc1 L_{name}_stage")
    a(f"s_branch L_{name}_epi")
    a.label(f"L_{name}_p0")
    a("s_sub_u32 s32, s32, 4")
    a("s_mul_i32 s36, s34, 160")
    a("s_mov_b32 s37, 6554")
    for r in range(5):
        a(f"v_add_u32 v10, {64*r}, v0")
        a("v_mul_lo_u32 v11, v10, s37")
        a("v_lshrrev_b32 v11, 16, v11")
        a("v_mul_u32_u24 v12, 10, v11")
        a("v_sub_u32 v12, v10, v12")
        a("v_mul_lo_u32 v11, v11, s38")
        a("v_lshl_add_u32 v11, v12, 4, v11")
        a(f"v_add_u32 v11, s36, v11")
        a(f"v_subrev_u32 v{4+r}, {1024*(r%4)}, v11")
    a("v_lshrrev_b32 v10, 3, v0")
    a("v_and_b32 v11, 7, v0")
    for rh in range(2):
        a(f"v_add_u32 v12, {8*rh}, v10")
        a("v_lshrrev_b32 v13, 1, v12")
        a("v_and_b32 v13, 7, v13")
        a("v_xor_b32 v13, v13, v11")
        a("v_mul_lo_u32 v12, v12, s38")
        a(f"v_lshl_add_u32 v12, v13, 4, v12")
        for kb in range(2):
            a(f"v_add_u32 v{16+2*kb+rh}, {(kb*128 - kb*2048 - rh*1024 + 4096)}, v12")
    a(f"s_mul_i32 s40, s32, {32*1280}")
    a("s_mul_i32 s41, s32, 5120")
    a("s_mul_i32 s42, s33, 81920")
    a(f"s_mul_i32 s43, s32, {16*1280}")
    a("s_add_u32 s42, s42, s43")
    a("s_lshl_b32 s43, s32, 12")
    a(f"s_add_u32 s43, s43, {XB}")
    a("s_waitcnt lgkmcnt(0)")
    srd(a, 20, 6, 7, 819200)
    a(f"s_add_u32 s14, s12, {hex(X2_OFF)}")
    a("s_addc_u32 s15, s13, 0")
    a("s_cmp_eq_u32 s99, 0")
    a("s_cselect_b32 s4, s4, s14")
    a("s_cselect_b32 s5, s5, s15")
    a("s_sub_u32 s4, s4, 4096")
    a("s_subb_u32 s5, s5, 0")
    srd(a, 16, 4, 5, XBYTES + 4096)
    def p_stage():
        a("s_mov_b32 m0, s43")
        a("s_add_u32 s45, s41, 4096")
        for kb in range(2):
            for rh in range(2):
                a(f"buffer_load_dwordx4 v{16+2*kb+rh}, s[16:19], s42 offen offset:{kb*2048+rh*1024} lds")
        a("s_mov_b32 m0, s41")
        a("s_add_u32 s42, s42, 256")
        for r in range(4):
            a(f"buffer_load_dwordx4 v{4+r}, s[20:23], s40 offen offset:{1024*r} lds")
        a("s_mov_b32 m0, s45")
        a(f"s_add_u32 s41, s41, {WST}")
        a("buffer_load_dwordx4 v8, s[20:23], s40 offen lds")
        a(f"s_add_u32 s40, s40, {128*1280}")
        a(f"s_add_u32 s43, s43, {XST}")
    p_stage(); p_stage(); p_stage()
    a(f"s_sub_u32 s41, s41, {3*WST}")
    a(f"s_sub_u32 s43, s43, {3*XST}")
    a("s_waitcnt vmcnt(18)"); a("s_barrier")
    a("s_waitcnt vmcnt(9)"); a("s_barrier")
    p_stage()
    a("s_waitcnt vmcnt(9)"); a("s_barrier")
    p_stage()
    a("s_waitcnt vmcnt(9)"); a("s_barrier")
    a("s_waitcnt vmcnt(0)"); a("s_barrier")
    code_prefetch(a, 4, 20, 22)
    a("s_barrier")
    a(f"s_branch L_{name}_end")
    a.label(f"L_{name}_epi")
    S.stamp()
    a("s_nop 7")
    a("s_nop 7")
    a("v_lshlrev_b32 v10, 4, v2")
    a("s_lshl_b32 s43, s32, 6")
    a(f"s_add_u32 s43, s43, {MISC}")
    a("v_add_u32 v11, s43, v10")
    a("v_cmp_eq_u32 vcc, 0, v1")
    a("s_and_saveexec_b64 s[46:47], vcc")
    a(f"ds_write_b128 v11, {vr(CSO,4)}")
    a("s_mov_b64 exec, s[46:47]")
    a("v_and_b32 v12, 3, v1")
    a(f"v_mov_b32 v13, v{GR}")
    for r in range(1, 4):
        a(f"v_cmp_eq_u32 vcc, {r}, v12")
        a("s_nop 1")
        a(f"v_cndmask_b32 v13, v13, v{GR+r}, vcc")
    a("v_lshrrev_b32 v12, 2, v1")
    a("v_lshl_add_u32 v12, v12, 4, v1")
    a("v_lshlrev_b32 v12, 2, v12")
    a("ds_bpermute_b32 v13, v12, v13")
    a("s_waitcnt lgkmcnt(0)")
    a("s_barrier")
    a(f"v_add_u32 v11, {MISC}, v10")
    CSX = FR
    for nt in range(4): a(f"ds_read_b128 {vr(CSX+4*nt,4)}, v11 offset:{64*nt}")
    a(f"s_mov_b32 s43, {hex(f2u(1.0/640))}")
    a(f"v_mul_f32 v14, s43, v{RS}")
    a("v_mul_f32 v13, s43, v13")
    a("v_fma_f32 v13, -v14, v14, v13")
    a("v_max_f32 v13, 0, v13")
    a(f"v_add_f32 v13, {hex(f2u(1e-5))}, v13")
    a("v_rsq_f32 v15, v13")
    a("s_nop 0")
    qs = (20 ** -0.5) * math.log2(math.e)
    a(f"v_mul_f32 v23, {hex(f2u(qs))}, v15")
    a("s_waitcnt lgkmcnt(0)")
    a("s_lshl_b32 s43, s33, 2")
    a("s_add_u32 s43, s43, s32")
    a("s_mul_i32 s44, s43, 20480")
    a("s_mul_i32 s45, s34, 2560")
    a("s_add_u32 s44, s44, s45")
    a(f"s_add_u32 s44, s44, {QT_OFF}")
    a("v_lshlrev_b32 v10, 3, v0")
    T = FR + 16
    for nt in range(5):
        cs = CSX + 4 * nt if nt < 4 else CS4
        for r in range(4):
            a(f"v_fma_f32 v{T+r}, -v14, v{cs+r}, v{ACC+4*nt+r}")
            a(f"v_mul_f32 v{T+r}, v23, v{T+r}")
        a(f"v_cvt_pk_bf16_f32 v{T+4+2*nt}, v{T}, v{T+1}")
        a(f"v_cvt_pk_bf16_f32 v{T+5+2*nt}, v{T+2}, v{T+3}")
        a(f"buffer_store_dwordx2 {vr(T+4+2*nt,2)}, v10, s[28:31], s44 offen offset:{512*nt}")
    a("s_cmp_lg_u32 s32, 0")
    a(f"s_cbranch_scc1 L_{name}_nozero")
    a("v_cmp_gt_u32 vcc, 16, v0")
    a("s_and_saveexec_b64 s[46:47], vcc")
    a("v_mov_b32 v11, 0")
    a("v_lshlrev_b32 v12, 2, v0")
    a("s_lshl_b32 s45, s2, 6")
    a(f"s_add_u32 s45, s45, {ST_OFF}")
    a("buffer_store_dword v11, v12, s[28:31], s45 offen")
    a("s_and_b32 s45, s2, 63")
    a("s_lshl_b32 s45, s45, 8")
    a(f"s_add_u32 s45, s45, {CNT_OFF}")
    a("buffer_store_dword v11, v12, s[28:31], s45 offen")
    a("s_mov_b64 exec, s[46:47]")
    a.label(f"L_{name}_nozero")
    a("s_cmp_ge_u32 s34, 2")
    a(f"s_cbranch_scc1 L_{name}_fin")
    for t, cs in ((0, CS5), (1, CS6)):
        for r in range(4):
            a(f"v_fma_f32 v{T+4*t+r}, -v14, v{cs+r}, v{ACC+20+4*t+r}")
            a(f"v_mul_f32 v{T+4*t+r}, v15, v{T+4*t+r}")
    a("s_lshl_b32 s43, s33, 1")
    a("s_lshr_b32 s44, s32, 1")
    a("s_add_u32 s43, s43, s44")
    a(f"s_mul_i32 s43, s43, {KVT}")
    a(f"s_add_u32 s43, s43, {KV_OFF}")
    a("s_and_b32 s44, s32, 1")
    a("s_cmp_lg_u32 s34, 0")
    a(f"s_cbranch_scc1 L_{name}_vstore")
    a(f"v_cvt_pk_bf16_f32 v{T+8}, v{T}, v{T+1}")
    a(f"v_cvt_pk_bf16_f32 v{T+9}, v{T+2}, v{T+3}")
    a(f"v_cvt_pk_bf16_f32 v{T+10}, v{T+4}, v{T+5}")
    a(f"v_cvt_pk_bf16_f32 v{T+11}, v{T+6}, v{T+7}")
    a("s_lshl_b32 s45, s44, 4")
    a("v_add_u32 v10, s45, v1")
    a("v_lshrrev_b32 v11, 1, v2")
    a("v_lshlrev_b32 v11, 9, v11")
    a("v_lshl_add_u32 v11, v10, 4, v11")
    a("v_and_b32 v12, 1, v2")
    a("v_lshl_add_u32 v11, v12, 3, v11")
    a(f"buffer_store_dwordx2 {vr(T+8,2)}, v11, s[28:31], s43 offen")
    a("v_lshlrev_b32 v11, 2, v10")
    a("v_cmp_eq_u32 vcc, 0, v2")
    a("s_and_saveexec_b64 s[46:47], vcc")
    a(f"buffer_store_dword v{T+10}, v11, s[28:31], s43 offen offset:1024")
    a(f"buffer_store_dword v{T+11}, v11, s[28:31], s43 offen offset:1152")
    a("s_mov_b64 exec, s[46:47]")
    a(f"s_branch L_{name}_fin")
    a.label(f"L_{name}_vstore")
    for r in range(8): a(f"v_cvt_pk_bf16_f32 v{T+8+r}, v{T+r}, v{T+r}")
    a("s_mul_i32 s45, s44, 672")
    a("s_add_u32 s43, s43, s45")
    a("v_lshrrev_b32 v10, 3, v1")
    a("v_lshlrev_b32 v10, 2, v10")
    a("v_and_b32 v11, 3, v1")
    a("v_add_u32 v10, v10, v11")
    a("v_lshlrev_b32 v10, 1, v10")
    a("v_bfe_u32 v11, v1, 2, 1")
    a("v_mul_u32_u24 v11, 336, v11")
    a("v_add_u32 v10, v10, v11")
    a("v_lshl_add_u32 v11, v2, 6, v10")
    for r in range(4):
        a(f"buffer_store_short v{T+8+r}, v11, s[28:31], s43 offen offset:{1280 + 16*r}")
    a("v_cmp_eq_u32 vcc, 0, v2")
    a("s_and_saveexec_b64 s[46:47], vcc")
    for r in range(4):
        a(f"buffer_store_short v{T+12+r}, v10, s[28:31], s43 offen offset:{1280 + 16*(16+r)}")
    a(f"buffer_store_short v{ONES}, v10, s[28:31], s43 offen offset:{1280 + 16*20}")
    a("s_mov_b64 exec, s[46:47]")
    a.label(f"L_{name}_fin")
    S.stamp(); S.real(); S.flush()
    a.label(f"L_{name}_end")
    a("s_endpgm")
    ll = lambda n: f"; @launch kernel={n} grid=(256,1,1) block=(512,1,1) lds={LDS}"
    return (name, a.text(), kd(name, 160) + kd("qkv1_kernel", 160), ll(name)), ("qkv1_kernel", "", "", ll("qkv1_kernel"))

def mfma32(a, d, x, y, c=None):
    c = vr(d, 16) if c is None else c
    a(f"v_mfma_f32_32x32x16_bf16 {vr(d,16)}, {vr(x,4)}, {vr(y,4)}, {c}")

def gen_attn():
    name = "attn0_kernel"
    a = Asm()
    header(a, "attn1_kernel")
    a("s_mov_b32 s99, 1")
    a("s_branch L_attn_body")
    header(a, name)
    a("s_mov_b32 s99, 0")
    a.label("L_attn_body")
    NLT = 60
    CH = 16 * KVT
    QL = 56 * KVT
    FLAG = 154 * 1024
    LDS = FLAG + 64
    QMAX = 153
    QF1 = 8; QF2 = 12; NEGM = 16; S_ = [32, 48]; O = 64; P = [80, 88]
    KB = [96, 104]
    VB = [112, 120]
    AC = 128
    VOFF = 134; K2OFF = 135; PFO = 136; DUM = 140
    RT = 144
    WA = RT + 64
    NV = WA + 8
    RES = 102400; RED = RES + 10240
    OST = 113664
    a(f"s_cmp_ge_u32 s2, 256")
    a(f"s_cbranch_scc1 L_{name}_end")
    S = Stamper(a, 1, 8); S.real(); S.stamp()
    a(f"s_load_dwordx2 s[12:13], s[0:1], 96")
    a("s_load_dwordx2 s[14:15], s[0:1], 32")
    a("s_load_dwordx2 s[16:17], s[0:1], 48")
    a("v_lshrrev_b32 v1, 6, v0")
    a("v_and_b32 v0, 63, v0")
    a("v_readfirstlane_b32 s32, v1")
    a("s_and_b32 s33, s2, 7")
    a("s_lshr_b32 s34, s2, 3")
    a("s_and_b32 s34, s34, 3")
    a("s_lshl_b32 s34, s34, 3")
    a("s_add_u32 s33, s33, s34")
    a("s_lshl_b32 s33, s33, 6")
    a("s_lshr_b32 s34, s2, 5")
    a("s_lshl_b32 s34, s34, 3")
    a("s_add_u32 s33, s33, s34")
    a("v_lshlrev_b32 v3, 4, v0")
    a("v_lshrrev_b32 v4, 2, v0")
    a("v_lshlrev_b32 v4, 7, v4")
    a("v_and_b32 v5, 3, v0")
    a("v_lshl_add_u32 v4, v5, 4, v4")
    a("s_lshr_b32 s34, s33, 4")
    a("s_mul_i32 s34, s34, 20480")
    a("s_and_b32 s35, s33, 15")
    a("s_lshl_b32 s36, s35, 3")
    a("s_add_u32 s34, s34, s36")
    a(f"s_add_u32 s34, s34, {QT_OFF}")
    a("s_lshl_b32 s36, s32, 11")
    a("s_add_u32 s36, s36, s34")
    a("s_lshl_b32 s37, s32, 10")
    a(f"s_add_u32 s37, s37, {QL}")
    a("s_lshl_b32 s50, s32, 10")
    a("s_waitcnt lgkmcnt(0)")
    srd(a, 28, 12, 13, WS_SIZE)
    a("s_mov_b32 m0, s37")
    a("s_add_u32 s33, s33, s32")
    a("buffer_load_dwordx4 v4, s[28:31], s36 offen lds")
    a("s_cmp_ge_u32 s32, 2")
    a(f"s_cbranch_scc1 L_{name}_q1")
    a("s_add_u32 s37, s37, 8192")
    a("s_mov_b32 m0, s37")
    a("s_add_u32 s36, s36, 16384")
    a("buffer_load_dwordx4 v4, s[28:31], s36 offen lds")
    a.label(f"L_{name}_q1")
    a("s_mov_b32 s40, 0")
    def dma_piece():
        a(f"s_min_u32 s43, s50, {QMAX*1024}")
        a("s_mov_b32 m0, s43")
        a(f"s_add_u32 s43, s43, {KV_OFF}")
        a("buffer_load_dwordx4 v3, s[28:31], s43 offen lds")
        a("s_add_u32 s50, s50, 8192")
    for i in range(6): dma_piece()
    a("s_and_b32 s35, s33, 15")
    srd(a, 20, 14, 15, 819200)
    srd(a, 24, 16, 17, 2048*1728*2)
    a("s_lshr_b32 s54, s2, 3")
    a("s_lshl_b32 s54, s54, 3")
    a("s_add_u32 s54, s54, s32")
    a("s_mul_i32 s55, s54, 3200")
    a("s_and_b32 s56, s2, 7")
    a("s_mul_i32 s56, s56, 27")
    a("s_lshr_b32 s56, s56, 3")
    a("s_lshl_b32 s56, s56, 7")
    a(f"s_mul_i32 s57, s54, {8*3456}")
    a("s_add_u32 s56, s56, s57")
    a("v_lshrrev_b32 v4, 3, v0")
    a("v_mul_u32_u24 v4, 3456, v4")
    a("v_and_b32 v5, 7, v0")
    a(f"v_lshl_add_u32 v{PFO}, v5, 4, v4")
    a("v_and_b32 v1, 31, v0")
    a("v_lshrrev_b32 v2, 5, v0")
    a("v_mov_b32 v4, 0")
    a(f"v_mov_b32 v5, {FLAG}")
    a("ds_write_b32 v5, v4")
    for r in range(1, 4): a(f"v_mov_b32 v{QF2+r}, 0")
    for kb in KB + [RT + 16 * j for j in range(4)]:
        for r in range(5, 8): a(f"v_mov_b32 v{kb+r}, 0")
    a("v_min_u32 v4, 20, v1")
    a("v_subrev_u32 v5, 12, v1")
    a("v_cmp_lt_u32 vcc, 27, v1")
    a("s_nop 1")
    a("v_cndmask_b32 v4, v4, v5, vcc")
    a("v_lshlrev_b32 v4, 4, v4")
    a("v_mul_u32_u24 v5, 336, v2")
    a("v_add_u32 v4, v4, v5")
    a(f"v_add_u32 v{VOFF}, 1280, v4")
    a(f"v_lshlrev_b32 v{K2OFF}, 2, v0")
    a(f"v_add_u32 v{K2OFF}, 1024, v{K2OFF}")
    a("v_mul_u32_u24 v4, 5, v1")
    a("v_lshl_add_u32 v5, v2, 1, v4")
    a("v_lshlrev_b32 v5, 6, v5")
    a("s_lshl_b32 s36, s32, 3")
    a(f"s_add_u32 s36, s36, {QL}")
    a("v_add_u32 v5, s36, v5")
    a("v_add_u32 v6, 4, v4")
    a("v_lshlrev_b32 v6, 6, v6")
    a("v_lshl_add_u32 v6, v2, 2, v6")
    a("v_add_u32 v6, s36, v6")
    a("s_waitcnt vmcnt(4) lgkmcnt(0)")
    a("s_barrier")
    a(f"ds_read_b64 {vr(QF1,2)}, v5")
    a(f"ds_read_b64 {vr(QF1+2,2)}, v5 offset:64")
    a(f"ds_read_b32 v{QF2}, v6")
    a(f"ds_read_b128 {vr(KB[0],4)}, v3")
    a(f"ds_read_b32 v{KB[0]+4}, v{K2OFF}")
    a("s_waitcnt lgkmcnt(0)")
    mfma32(a, S_[0], KB[0], QF1, "0")
    mfma32(a, S_[0], KB[0] + 4, QF2)
    a("s_nop 15")
    a("s_nop 3")
    a(f"v_max_f32 v7, v{S_[0]}, v{S_[0]+1}")
    for r in range(2, 16, 2): a(f"v_max3_f32 v7, v7, v{S_[0]+r}, v{S_[0]+r+1}")
    a.label(f"L_{name}_havemax")
    S.stamp()
    a("v_mov_b32 v4, v7")
    a("v_mov_b32 v5, v7")
    a("s_nop 1")
    a("v_permlane32_swap_b32 v4, v5")
    a("s_nop 1")
    a("v_max_f32 v7, v4, v5")
    a("v_sub_f32 v7, 0, v7")
    for r in range(16): a(f"v_mov_b32 v{NEGM+r}, v7")
    for r in range(16): a(f"v_mov_b32 v{O+r}, 0")
    for r in range(8): a(f"v_mov_b32 v{P[1]+r}, 0")
    for r in range(8): a(f"v_mov_b32 v{VB[1]+r}, 0")
    a(f"v_mov_b32 v{AC}, v3"); a(f"v_mov_b32 v{AC+1}, v{K2OFF}"); a(f"v_mov_b32 v{AC+2}, v{VOFF}")
    a(f"ds_read_b128 {vr(KB[0],4)}, v{AC}")
    a(f"ds_read_b32 v{KB[0]+4}, v{AC+1}")
    a(f"ds_read_b128 {vr(KB[1],4)}, v{AC} offset:{KVT}")
    a(f"ds_read_b32 v{KB[1]+4}, v{AC+1} offset:{KVT}")
    a("s_waitcnt lgkmcnt(2)")
    mfma32(a, S_[0], KB[0], QF1, vr(NEGM, 16))
    mfma32(a, S_[0], KB[0] + 4, QF2)
    a("s_mov_b32 s41, 0")
    a("s_mov_b32 s42, 0")
    PON = int(os.environ.get("PON", "0")); POFF = int(os.environ.get("POFF", "12"))
    def wgroup(srd_, soff, ldsb):
        a(f"s_mov_b32 m0, {ldsb}")
        a(f"s_add_u32 s45, {ldsb}, 4096")
        for r in range(4):
            a(f"buffer_load_dwordx4 v{WA+r}, {srd_}, {soff} offen offset:{1024*r} lds")
        a("s_mov_b32 m0, s45")
        a("s_nop 0")
        a(f"buffer_load_dwordx4 v{WA+4}, {srd_}, {soff} offen lds")
    def body(t, last):
        sc = S_[t % 2]; sn = S_[(t + 1) % 2]
        kl = KB[t % 2]; vl = VB[t % 2]
        pp = P[(t + 1) % 2]; pc = P[t % 2]
        gt = 48 + t if last else None
        kn = KB[(t + 1) % 2] if not (last and gt + 1 >= NLT) else RT + 16 * (gt + 1 - NLT)
        vp = VB[(t + 1) % 2] if not (last and gt - 1 >= NLT) else RT + 16 * (gt - 1 - NLT) + 8
        tag = "L" if last else ""
        if not last:
            if t == 4:
                a("s_cmp_lg_u32 s41, 0")
                a(f"s_cbranch_scc1 L_{name}_nb4")
                a("s_waitcnt vmcnt(4)")
                a("s_barrier")
                a.label(f"L_{name}_nb4")
            if t == 14:
                a("s_cmp_lg_u32 s41, 0")
                a(f"s_cbranch_scc1 L_{name}_nb14")
                a("s_waitcnt vmcnt(0)")
                a("s_barrier")
                a.label(f"L_{name}_nb14")
            if t in (0, 5, 8, 11):
                a("s_cmp_lg_u32 s41, 0")
                a(f"s_cbranch_scc1 L_{name}_sk{t}")
                for i in range(4 if t < 11 else 2): dma_piece()
                a.label(f"L_{name}_sk{t}")
            if t in (2, 9):
                a("s_cmp_lg_u32 s41, 1")
                a(f"s_cbranch_scc1 L_{name}_pf{t}")
                if t == 2:
                    for j in range(4):
                        a(f"s_mov_b32 s43, {KV_OFF + (NLT+j)*KVT}")
                        a(f"buffer_load_dwordx4 {vr(RT+16*j,4)}, v3, s[28:31], s43 offen")
                        a(f"buffer_load_dword v{RT+16*j+4}, v{K2OFF}, s[28:31], s43 offen")
                        a(f"buffer_load_dwordx4 {vr(RT+16*j+8,4)}, v{VOFF}, s[28:31], s43 offen")
                        a(f"buffer_load_dwordx4 {vr(RT+16*j+12,4)}, v{VOFF}, s[28:31], s43 offen offset:672")
                else:
                    for k in range(4):
                        a(f"buffer_load_dwordx4 {vr(DUM,4)}, v3, s[20:23], s55 offen offset:{min(k*1024, 3200-1024)}")
                    for k in range(5):
                        a(f"buffer_load_dwordx4 {vr(DUM,4)}, v{PFO}, s[24:27], s56 offen offset:{k*128}")
                    code_prefetch(a, 8, PFO + 1, DUM)
                a.label(f"L_{name}_pf{t}")
        if last and t in (1, 5):
            wgroup("s[20:23]", "s60", "s61")
            a(f"s_add_u32 s60, s60, {8*32*1280}")
            a(f"s_add_u32 s61, s61, {8*5120}")
        if last and t == 9:
            a("s_cmp_ge_u32 s32, 4")
            a(f"s_cbranch_scc1 L_{name}_w3")
            wgroup("s[20:23]", "s60", "s61")
            a(f"s_branch L_{name}_w4")
            a.label(f"L_{name}_w3")
            a("s_cmp_ge_u32 s32, 6")
            a(f"s_cbranch_scc1 L_{name}_w4")
            a("s_sub_u32 s43, s32, 4")
            a(f"s_mul_i32 s60, s43, {32*1280}")
            a("s_mul_i32 s44, s58, 81920")
            a("s_add_u32 s60, s60, s44")
            a("s_mul_i32 s61, s43, 5120")
            a(f"s_add_u32 s61, s61, {RES}")
            wgroup("s[16:19]", "s60", "s61")
            a.label(f"L_{name}_w4")
        if t == PON:
            a("s_cmp_lt_u32 s32, 4")
            a(f"s_cbranch_scc1 L_{name}_np{tag}")
            a("s_setprio 1")
            a.label(f"L_{name}_np{tag}")
        if t == POFF: a("s_setprio 0")
        a("s_waitcnt lgkmcnt(0)")
        ldk = not (last and gt + 2 >= NLT)
        ldv = not (last and gt >= NLT)
        dos = not (last and t == 15)
        if dos: mfma32(a, sn, kn, QF1, vr(NEGM, 16))
        if ldk:
            a(f"ds_read_b128 {vr(kl,4)}, v{AC} offset:{(t+2)*KVT}")
            a(f"ds_read_b32 v{kl+4}, v{AC+1} offset:{(t+2)*KVT}")
        for r in range(0, 4): a(f"v_exp_f32 v{sc+r}, v{sc+r}")
        mfma32(a, O, vp, pp)
        if ldv:
            a(f"ds_read_b128 {vr(vl,4)}, v{AC+2} offset:{t*KVT}")
            a(f"ds_read_b128 {vr(vl+4,4)}, v{AC+2} offset:{t*KVT+672}")
        for r in range(4, 8): a(f"v_exp_f32 v{sc+r}, v{sc+r}")
        for r in range(4): a(f"v_cvt_pk_bf16_f32 v{pc+r}, v{sc+2*r}, v{sc+2*r+1}")
        if dos: mfma32(a, sn, kn + 4, QF2)
        for r in range(8, 12): a(f"v_exp_f32 v{sc+r}, v{sc+r}")
        mfma32(a, O, vp + 4, pp + 4)
        for r in range(12, 16): a(f"v_exp_f32 v{sc+r}, v{sc+r}")
        for r in range(4): a(f"v_cvt_pk_bf16_f32 v{pc+4+r}, v{sc+8+2*r}, v{sc+8+2*r+1}")
    a.label(f"L_{name}_chunk")
    for t in range(16): body(t, False)
    for r in range(3): a(f"v_add_u32 v{AC+r}, {CH}, v{AC+r}")
    a("s_add_u32 s41, s41, 1")
    a("s_add_u32 s42, s42, 1")
    a("s_cmp_lt_u32 s42, 3")
    a(f"s_cbranch_scc1 L_{name}_chunk")
    a("s_load_dwordx2 s[4:5], s[0:1], 0")
    a("s_lshr_b32 s58, s33, 6")
    a("s_lshr_b32 s59, s2, 5")
    a("s_mul_i32 s36, s59, 160")
    a("s_mov_b32 s37, 6554")
    a("s_movk_i32 s38, 1280")
    for r in range(5):
        a(f"v_add_u32 v4, {64*r}, v0")
        a("v_mul_lo_u32 v5, v4, s37")
        a("v_lshrrev_b32 v5, 16, v5")
        a("v_mul_u32_u24 v6, 10, v5")
        a("v_sub_u32 v6, v4, v6")
        a("v_mul_lo_u32 v5, v5, s38")
        a("v_lshl_add_u32 v5, v6, 4, v5")
        a(f"v_add_u32 v5, s36, v5")
        a(f"v_subrev_u32 v{WA+r}, {1024*(r%4)}, v5")
    a("s_waitcnt vmcnt(0) lgkmcnt(0)")
    a(f"s_add_u32 s8, s12, {hex(X2_OFF)}")
    a("s_addc_u32 s9, s13, 0")
    a("s_cmp_eq_u32 s99, 0")
    a("s_cselect_b32 s4, s4, s8")
    a("s_cselect_b32 s5, s5, s9")
    srd(a, 16, 4, 5, XBYTES)
    a(f"s_mul_i32 s60, s32, {32*1280}")
    a("s_mul_i32 s61, s32, 5120")
    a("s_barrier")
    for t in range(16): body(t, True)
    a("s_setprio 0")
    a("s_nop 1")
    mfma32(a, O, RT + 48 + 8, P[1])
    mfma32(a, O, RT + 48 + 12, P[1] + 4)
    S.stamp()
    a.label(f"L_{name}_check")
    a("s_nop 15")
    a("s_nop 3")
    a(f"v_mov_b32 v4, v{O+8}")
    a(f"v_mov_b32 v5, v{O+8}")
    a("s_nop 1")
    a("v_permlane32_swap_b32 v4, v5")
    a("v_mov_b32 v6, 0")
    for r in range(12): a(f"v_fma_f32 v6, v{O+r}, 0, v6")
    a(f"v_fma_f32 v6, v5, 0, v6")
    a(f"s_mov_b32 s43, {hex(f2u(2.0**100))}")
    a("v_cmp_neq_f32 vcc, 0, v6")
    a("v_cmp_nlt_f32 s[46:47], v5, s43")
    a("s_or_b64 vcc, vcc, s[46:47]")
    a("s_cmp_lg_u32 s40, 0")
    a(f"s_cbranch_scc1 L_{name}_store")
    a(f"s_cbranch_vccz L_{name}_store")
    a("s_mov_b32 s40, 1")
    a(f"s_branch L_{name}_restart")
    a.label(f"L_{name}_store")
    a("v_rcp_f32 v5, v5")
    a("s_nop 0")
    for r in range(12): a(f"v_mul_f32 v{O+r}, v5, v{O+r}")
    for r in range(6): a(f"v_cvt_pk_bf16_f32 v{S_[0]+r}, v{O+2*r}, v{O+2*r+1}")
    a("v_mul_u32_u24 v4, 20, v1")
    a("v_lshl_add_u32 v4, v2, 2, v4")
    a("s_lshl_b32 s36, s32, 4")
    a(f"s_add_u32 s36, s36, {OST}")
    for grp in range(3):
        a(f"v_add_u32 v5, {8*grp}, v4")
        a("v_lshrrev_b32 v6, 5, v5")
        a("v_lshlrev_b32 v6, 9, v6")
        a("v_bfe_u32 v7, v5, 2, 2")
        a("v_lshl_add_u32 v6, v7, 7, v6")
        a("v_bfe_u32 v7, v5, 4, 1")
        a("v_lshl_add_u32 v6, v7, 3, v6")
        a(f"v_add_u32 v{10+grp}, s36, v6")
    for grp in range(3):
        if grp == 2:
            a("v_cmp_eq_u32 vcc, 0, v2")
            a("s_and_saveexec_b64 s[46:47], vcc")
        a(f"ds_write_b64 v{10+grp}, {vr(S_[0]+2*grp,2)}")
    a("s_mov_b64 exec, -1")
    S.stamp()
    a("s_lshr_b32 s33, s33, 6")
    a("s_lshr_b32 s34, s2, 5")
    a("v_and_b32 v1, 15, v0")
    a("v_lshrrev_b32 v2, 4, v0")
    a("s_waitcnt lgkmcnt(0)")
    a("s_barrier")
    a("s_lshl_b32 s43, s32, 10")
    a(f"s_add_u32 s43, s43, {OST}")
    a("v_add_u32 v10, s43, v3")
    a(f"ds_read_b128 v[32:35], v10")
    a(f"ds_read_b128 v[36:39], v10 offset:8192")
    a("v_lshrrev_b32 v11, 3, v0")
    a("v_lshlrev_b32 v11, 8, v11")
    a("v_and_b32 v12, 7, v0")
    a("v_lshl_add_u32 v11, v12, 4, v11")
    a("s_lshl_b32 s44, s33, 2")
    a("s_lshr_b32 s45, s34, 1")
    a("s_add_u32 s44, s44, s45")
    a("s_mul_i32 s44, s44, 20480")
    a("s_and_b32 s45, s34, 1")
    a("s_lshl_b32 s45, s45, 7")
    a("s_add_u32 s44, s44, s45")
    a("s_lshl_b32 s45, s32, 11")
    a("s_add_u32 s44, s44, s45")
    a(f"s_add_u32 s44, s44, {OF_OFF}")
    a("s_waitcnt lgkmcnt(0)")
    a("buffer_store_dwordx4 v[32:35], v11, s[28:31], s44 offen sc1")
    a("s_cmp_ge_u32 s32, 2")
    a(f"s_cbranch_scc1 L_{name}_os")
    a("s_add_u32 s44, s44, 16384")
    a("buffer_store_dwordx4 v[36:39], v11, s[28:31], s44 offen sc1")
    a.label(f"L_{name}_os")
    a("s_waitcnt vmcnt(0)")
    a("s_barrier")
    a("s_lshl_b32 s43, s33, 8")
    a(f"s_add_u32 s43, s43, {CNT_OFF}")
    a("v_mov_b32 v10, s43")
    a("v_mov_b32 v11, 1")
    a("s_cmp_lg_u32 s32, 0")
    a(f"s_cbranch_scc1 L_{name}_nosig")
    a("s_mov_b64 exec, 1")
    a("buffer_atomic_add v11, v10, s[28:31], 0 offen")
    a("s_mov_b64 exec, -1")
    a.label(f"L_{name}_nosig")
    a("s_and_b32 s52, s32, 3")
    a("s_lshr_b32 s53, s32, 2")
    a("s_lshl_b32 s42, s33, 2")
    a("s_add_u32 s42, s42, s52")
    a("s_mul_i32 s49, s42, 20480")
    a("s_mul_i32 s44, s53, 10240")
    a("s_add_u32 s49, s49, s44")
    a(f"s_add_u32 s49, s49, {OF_OFF}")
    a("v_lshrrev_b32 v13, 2, v1")
    a("v_lshl_add_u32 v13, v2, 2, v13")
    a("v_and_b32 v14, 3, v1")
    a("v_lshlrev_b32 v14, 3, v14")
    a("v_mul_u32_u24 v15, 160, v13")
    a("v_add_u32 v20, v15, v14")
    a("s_mul_i32 s48, s52, 2560")
    a(f"s_add_u32 s48, s48, {RES}")
    a("v_add_u32 v22, s48, v20")
    a("s_mul_i32 s48, s53, 51200")
    a("v_add_u32 v20, s48, v20")
    ACC = 24; XF = 64; WF = 104
    for r in range(ACC, ACC + 20): a(f"v_mov_b32 v{r}, 0")
    def reads(ks, fs):
        b = WF + 20 * fs
        for nt in range(5):
            for half in range(2):
                off = (32 * ks + 16 * half) * 160 + 32 * nt
                a(f"ds_read_b64_tr_b16 {vr(b+4*nt+2*half,2)}, v20 offset:{off}")
    reads(0, 0)
    a("s_cmp_lg_u32 s32, 0")
    a(f"s_cbranch_scc1 L_{name}_nopoll")
    a("s_mov_b64 exec, 1")
    a.label(f"L_{name}_poll")
    a("buffer_load_dword v12, v10, s[28:31], 0 offen sc1")
    a("s_waitcnt vmcnt(0)")
    a("v_readfirstlane_b32 s43, v12")
    a("s_cmp_ge_u32 s43, 8")
    a(f"s_cbranch_scc1 L_{name}_polled")
    a("s_sleep 1")
    a(f"s_branch L_{name}_poll")
    a.label(f"L_{name}_polled")
    a("s_mov_b64 exec, -1")
    a.label(f"L_{name}_nopoll")
    a("s_waitcnt vmcnt(0)")
    a("s_barrier")
    S.stamp()
    for j in range(10):
        if j == 4: a("s_add_u32 s49, s49, 4096")
        if j == 8: a("s_add_u32 s49, s49, 4096")
        a(f"buffer_load_dwordx4 {vr(XF+4*j,4)}, v3, s[28:31], s49 offen offset:{1024*(j%4)} sc1")
    for j in range(10):
        a(f"s_waitcnt lgkmcnt(0) vmcnt({9-j})")
        if j < 9: reads(j + 1, (j + 1) % 2)
        b = WF + 20 * (j % 2)
        for nt in range(5): mfma16(a, ACC + 4 * nt, XF + 4 * j, b + 4 * nt)
    a("s_mul_i32 s44, s52, 5120")
    a(f"s_add_u32 s44, s44, {RED}")
    a("v_add_u32 v10, s44, v3")
    a("s_cmp_eq_u32 s53, 0")
    a(f"s_cbranch_scc1 L_{name}_kh0")
    a("s_nop 7")
    for nt in range(5): a(f"ds_write_b128 v10, {vr(ACC+4*nt,4)} offset:{1024*nt}")
    a("s_waitcnt lgkmcnt(0)")
    a("s_barrier")
    a(f"s_branch L_{name}_fin")
    a.label(f"L_{name}_kh0")
    RS = 144
    for nt in range(5): a(f"ds_read_b64_tr_b16 {vr(RS+2*nt,2)}, v22 offset:{32*nt}")
    SUM = 44; SQ = 48; T = 52
    for r in range(8): a(f"v_mov_b32 v{SUM+r}, 0")
    a("s_mul_i32 s44, s34, 327680")
    a("s_lshr_b32 s45, s42, 1")
    a("s_lshl_b32 s45, s45, 10")
    a("s_add_u32 s44, s44, s45")
    a("s_and_b32 s45, s42, 1")
    a("s_lshl_b32 s45, s45, 3")
    a("s_add_u32 s44, s44, s45")
    a(f"s_add_u32 s44, s44, {X1T_OFF}")
    a("s_mov_b32 s46, 0xffff0000")
    a("s_barrier")
    for nt in range(5): a(f"ds_read_b128 {vr(XF+4*nt,4)}, v10 offset:{1024*nt}")
    a("s_waitcnt lgkmcnt(0)")
    for r in range(20): a(f"v_add_f32 v{ACC+r}, v{ACC+r}, v{XF+r}")
    OUT = 160
    for nt in range(5):
        for h in range(2):
            a(f"v_lshlrev_b32 v{T}, 16, v{RS+2*nt+h}")
            a(f"v_and_b32 v{T+1}, s46, v{RS+2*nt+h}")
            a(f"v_add_f32 v{T}, v{T}, v{ACC+4*nt+2*h}")
            a(f"v_add_f32 v{T+1}, v{T+1}, v{ACC+4*nt+2*h+1}")
            o = OUT + 2 * nt + h
            a(f"v_cvt_pk_bf16_f32 v{o}, v{T}, v{T+1}")
            a(f"v_lshlrev_b32 v{T}, 16, v{o}")
            a(f"v_and_b32 v{T+1}, s46, v{o}")
            a(f"v_add_f32 v{SUM+2*h}, v{SUM+2*h}, v{T}")
            a(f"v_add_f32 v{SUM+2*h+1}, v{SUM+2*h+1}, v{T+1}")
            a(f"v_fma_f32 v{SQ+2*h}, v{T}, v{T}, v{SQ+2*h}")
            a(f"v_fma_f32 v{SQ+2*h+1}, v{T+1}, v{T+1}, v{SQ+2*h+1}")
        a(f"buffer_store_dwordx2 {vr(OUT+2*nt,2)}, v3, s[28:31], s44 offen")
        if nt < 4: a("s_add_u32 s44, s44, 65536")
    for sh in (8, 4, 2, 1):
        a("s_nop 1")
        for r in range(8):
            a(f"v_add_f32_dpp v{SUM+r}, v{SUM+r}, v{SUM+r} row_ror:{sh} row_mask:0xf bank_mask:0xf")
    a("s_lshl_b32 s44, s42, 7")
    a(f"s_add_u32 s44, s44, {ST_OFF}")
    a("v_lshlrev_b32 v10, 5, v2")
    a("v_cmp_eq_u32 vcc, 0, v1")
    a("s_and_saveexec_b64 s[46:47], vcc")
    for r in range(4):
        a(f"buffer_atomic_add_f32 v{SUM+r}, v10, s[28:31], s44 offen offset:{8*r}")
        a(f"buffer_atomic_add_f32 v{SQ+r}, v10, s[28:31], s44 offen offset:{8*r+4}")
    a.label(f"L_{name}_fin")
    S.stamp(); S.real(); S.flush()
    a(f"s_branch L_{name}_end")
    a.label(f"L_{name}_restart")
    a(f"v_mov_b32 v7, 0xff800000")
    a(f"s_mov_b32 s43, {KV_OFF}")
    a.label(f"L_{name}_mx")
    a(f"buffer_load_dwordx4 {vr(KB[0],4)}, v3, s[28:31], s43 offen")
    a(f"buffer_load_dword v{KB[0]+4}, v{K2OFF}, s[28:31], s43 offen")
    a("s_waitcnt vmcnt(0)")
    mfma32(a, S_[0], KB[0], QF1, "0")
    mfma32(a, S_[0], KB[0] + 4, QF2)
    a("s_nop 15")
    a("s_nop 3")
    for r in range(0, 16, 2): a(f"v_max3_f32 v7, v7, v{S_[0]+r}, v{S_[0]+r+1}")
    a(f"s_add_u32 s43, s43, {KVT}")
    a(f"s_cmp_lt_u32 s43, {KV_OFF + 64*KVT}")
    a(f"s_cbranch_scc1 L_{name}_mx")
    a("v_mov_b32 v4, v7")
    a("v_mov_b32 v5, v7")
    a("s_nop 1")
    a("v_permlane32_swap_b32 v4, v5")
    a("s_nop 1")
    a("v_max_f32 v7, v4, v5")
    a("v_sub_f32 v7, 0, v7")
    for r in range(16): a(f"v_mov_b32 v{NEGM+r}, v7")
    for r in range(16): a(f"v_mov_b32 v{O+r}, 0")
    a(f"s_mov_b32 s43, {KV_OFF}")
    a.label(f"L_{name}_sl")
    a(f"buffer_load_dwordx4 {vr(KB[0],4)}, v3, s[28:31], s43 offen")
    a(f"buffer_load_dword v{KB[0]+4}, v{K2OFF}, s[28:31], s43 offen")
    a(f"buffer_load_dwordx4 {vr(VB[0],4)}, v{VOFF}, s[28:31], s43 offen")
    a(f"buffer_load_dwordx4 {vr(VB[0]+4,4)}, v{VOFF}, s[28:31], s43 offen offset:672")
    a("s_waitcnt vmcnt(0)")
    mfma32(a, S_[0], KB[0], QF1, vr(NEGM, 16))
    mfma32(a, S_[0], KB[0] + 4, QF2)
    a("s_nop 15")
    a("s_nop 3")
    for r in range(16): a(f"v_exp_f32 v{S_[0]+r}, v{S_[0]+r}")
    a("s_nop 0")
    for r in range(8): a(f"v_cvt_pk_bf16_f32 v{P[0]+r}, v{S_[0]+2*r}, v{S_[0]+2*r+1}")
    a("s_nop 1")
    mfma32(a, O, VB[0], P[0])
    mfma32(a, O, VB[0] + 4, P[0] + 4)
    a("s_nop 15")
    a(f"s_add_u32 s43, s43, {KVT}")
    a(f"s_cmp_lt_u32 s43, {KV_OFF + 64*KVT}")
    a(f"s_cbranch_scc1 L_{name}_sl")
    a(f"s_branch L_{name}_check")
    a.label(f"L_{name}_end")
    a("s_endpgm")
    ll = lambda n: f"; @launch kernel={n} grid=(256,1,1) block=(512,1,1) lds={LDS}"
    return (name, a.text(), kd(name, NV) + kd("attn1_kernel", NV), ll(name)), ("attn1_kernel", "", "", ll("attn1_kernel"))

def gen_oproj(layer):
    name = f"oproj{layer}_kernel"
    a = Asm(); header(a, name)
    RES = 102400
    LDS = RES + 10240
    a(f"s_cmp_ge_u32 s2, 256")
    a(f"s_cbranch_scc1 L_{name}_end")
    S = Stamper(a, 2 + 5*layer, 4); S.real(); S.stamp()
    a(f"s_load_dwordx2 s[4:5], s[0:1], 0")
    a(f"s_load_dwordx2 s[6:7], s[0:1], 32")
    a(f"s_load_dwordx2 s[12:13], s[0:1], 96")
    a("v_lshrrev_b32 v1, 6, v0")
    a("v_and_b32 v0, 63, v0")
    a("v_readfirstlane_b32 s32, v1")
    a("s_and_b32 s33, s2, 7")
    a("s_lshr_b32 s34, s2, 3")
    a("s_and_b32 s34, s34, 3")
    a("s_lshl_b32 s34, s34, 3")
    a("s_add_u32 s33, s33, s34")
    a("s_lshr_b32 s34, s2, 5")
    a("s_waitcnt lgkmcnt(0)")
    if layer == 1:
        a(f"s_add_u32 s4, s12, {hex(X2_OFF)}")
        a(f"s_addc_u32 s5, s13, 0")
    srd(a, 16, 4, 5, XBYTES)
    srd(a, 20, 6, 7, 819200)
    srd(a, 28, 12, 13, WS_SIZE)
    a("v_and_b32 v1, 15, v0")
    a("v_lshrrev_b32 v2, 4, v0")
    a("s_mul_i32 s35, s32, 320")
    a("s_mul_i32 s36, s34, 160")
    a("s_mov_b32 s37, 6554")
    a("s_movk_i32 s38, 1280")
    for jj in range(5):
        a(f"v_add_u32 v10, s35, v0")
        if jj: a(f"v_add_u32 v10, {64*jj}, v10")
        a("v_mul_lo_u32 v11, v10, s37")
        a("v_lshrrev_b32 v11, 16, v11")
        a("v_mul_u32_u24 v12, 10, v11")
        a("v_sub_u32 v12, v10, v12")
        a("v_mul_lo_u32 v11, v11, s38")
        a("v_lshl_add_u32 v11, v12, 4, v11")
        a(f"v_add_u32 v{4+jj}, s36, v11")
    a("v_lshlrev_b32 v3, 4, v0")
    a("s_mul_i32 s40, s33, 81920")
    a("s_mul_i32 s41, s32, 5120")
    a("s_cmp_ge_u32 s32, 2")
    a(f"s_cbranch_scc1 L_{name}_nores")
    for jj in range(5):
        a(f"s_add_u32 s44, s41, {RES + jj*1024}")
        a("s_mov_b32 m0, s44")
        a("s_nop 0")
        a(f"buffer_load_dwordx4 v{4+jj}, s[16:19], s40 offen lds")
    a.label(f"L_{name}_nores")
    a("s_lshl_b32 s42, s33, 2")
    a("s_add_u32 s42, s42, s32")
    a("s_mul_i32 s43, s42, 20480")
    a(f"s_add_u32 s43, s43, {OF_OFF}")
    XF = 64
    def stage_ops(st):
        ops = []
        for jj in range(5):
            ops.append([f"s_add_u32 s44, s41, {st*20480 + jj*1024}", "s_mov_b32 m0, s44",
                        f"s_mov_b32 s45, {st*128*1280}", f"buffer_load_dwordx4 v{4+jj}, s[20:23], s45 offen lds"])
        for k4 in range(4):
            ops.append([f"s_add_u32 s45, s43, {st*4096}",
                        f"buffer_load_dwordx4 {vr(XF+4*(4*st+k4),4)}, v3, s[28:31], s45 offen offset:{1024*k4}"])
        return ops
    for st in range(2):
        for op in stage_ops(st):
            for x in op: a(x)
    S.stamp()
    a("v_lshrrev_b32 v10, 2, v1")
    a("v_lshl_add_u32 v10, v2, 2, v10")
    a("v_and_b32 v11, 3, v1")
    a("v_lshlrev_b32 v11, 3, v11")
    a("v_mul_u32_u24 v12, 160, v10")
    a("v_add_u32 v20, v12, v11")
    a(f"v_add_u32 v21, {51200}, v20")
    a("s_mul_i32 s48, s32, 2560")
    a(f"s_add_u32 s48, s48, {RES}")
    a("v_add_u32 v22, s48, v20")
    ACC = 24
    WF = 144
    for r in range(ACC, ACC + 20): a(f"v_mov_b32 v{r}, 0")
    def reads(ks, fs):
        b = WF + 20 * fs
        for nt in range(5):
            for half in range(2):
                off = (32 * ks + 16 * half) * 160 + 32 * nt
                va = 20
                if off >= 51200: off -= 51200; va = 21
                a(f"ds_read_b64_tr_b16 {vr(b+4*nt+2*half,2)}, v{va} offset:{off}")
    for st in range(5):
        a(f"s_waitcnt vmcnt({9 if st < 4 else 0})")
        a("s_barrier")
        if st == 0: S.stamp()
        pend = stage_ops(st + 2) if st + 2 < 5 else []
        reads(4 * st, 0)
        for k4 in range(4):
            a("s_waitcnt lgkmcnt(0)")
            if k4 < 3: reads(4 * st + k4 + 1, (k4 + 1) % 2)
            b = WF + 20 * (k4 % 2)
            for nt in range(5):
                mfma16(a, ACC + 4 * nt, XF + 4 * (4 * st + k4), b + 4 * nt)
                if nt % 2 == 0 and pend:
                    for x_ in pend.pop(0): a(x_)
        assert not pend
    S.stamp()
    RS = WF
    for nt in range(5): a(f"ds_read_b64_tr_b16 {vr(RS+2*nt,2)}, v22 offset:{32*nt}")
    SUM = 44; SQ = 48; T = 52
    for r in range(8): a(f"v_mov_b32 v{SUM+r}, 0")
    a("s_mul_i32 s44, s34, 327680")
    a("s_lshr_b32 s45, s42, 1")
    a("s_lshl_b32 s45, s45, 10")
    a("s_add_u32 s44, s44, s45")
    a("s_and_b32 s45, s42, 1")
    a("s_lshl_b32 s45, s45, 3")
    a("s_add_u32 s44, s44, s45")
    a(f"s_add_u32 s44, s44, {X1T_OFF}")
    a("s_mov_b32 s46, 0xffff0000")
    a("s_waitcnt lgkmcnt(0)")
    a("s_nop 7")
    OUT = WF + 12
    for nt in range(5):
        for h in range(2):
            a(f"v_lshlrev_b32 v{T}, 16, v{RS+2*nt+h}")
            a(f"v_and_b32 v{T+1}, s46, v{RS+2*nt+h}")
            a(f"v_add_f32 v{T}, v{T}, v{ACC+4*nt+2*h}")
            a(f"v_add_f32 v{T+1}, v{T+1}, v{ACC+4*nt+2*h+1}")
            o = OUT + 2 * nt + h
            a(f"v_cvt_pk_bf16_f32 v{o}, v{T}, v{T+1}")
            a(f"v_lshlrev_b32 v{T}, 16, v{o}")
            a(f"v_and_b32 v{T+1}, s46, v{o}")
            a(f"v_add_f32 v{SUM+2*h}, v{SUM+2*h}, v{T}")
            a(f"v_add_f32 v{SUM+2*h+1}, v{SUM+2*h+1}, v{T+1}")
            a(f"v_fma_f32 v{SQ+2*h}, v{T}, v{T}, v{SQ+2*h}")
            a(f"v_fma_f32 v{SQ+2*h+1}, v{T+1}, v{T+1}, v{SQ+2*h+1}")
        a(f"buffer_store_dwordx2 {vr(OUT+2*nt,2)}, v3, s[28:31], s44 offen")
        if nt < 4: a("s_add_u32 s44, s44, 65536")
    for sh in (8, 4, 2, 1):
        a("s_nop 1")
        for r in range(8):
            a(f"v_add_f32_dpp v{SUM+r}, v{SUM+r}, v{SUM+r} row_ror:{sh} row_mask:0xf bank_mask:0xf")
    a("s_lshl_b32 s44, s42, 7")
    a(f"s_add_u32 s44, s44, {ST_OFF}")
    a("v_lshlrev_b32 v10, 5, v2")
    a("v_cmp_eq_u32 vcc, 0, v1")
    a("s_and_saveexec_b64 s[46:47], vcc")
    for r in range(4):
        a(f"buffer_atomic_add_f32 v{SUM+r}, v10, s[28:31], s44 offen offset:{8*r}")
        a(f"buffer_atomic_add_f32 v{SQ+r}, v10, s[28:31], s44 offen offset:{8*r+4}")
    S.stamp(); S.real(); S.flush()
    a.label(f"L_{name}_end")
    a("s_endpgm")
    return name, a.text(), kd(name, 192), f"; @launch kernel={name} grid=(256,1,1) block=(256,1,1) lds={LDS}"

def mfma16a(a, d, x, y):
    a(f"v_mfma_f32_16x16x32_bf16 a[{d}:{d+3}], {vr(x,4)}, {vr(y,4)}, a[{d}:{d+3}]")

def gen_mlp(which, layer):
    name = f"mlp{which}_{layer}_kernel"
    a = Asm(); header(a, name)
    norm = which == 1
    NW = 8 if norm else int(os.environ.get("K5NW", "4"))
    U = 2 if norm else int(os.environ.get("K5U", "4"))
    RING = U * 4096
    TAB = NW * RING
    NWG = 216 if norm else 256
    WSTR = 3456 if norm else 4096
    WBYTES = 2048 * 1728 * 2
    XDT = 65536 if norm else GDT
    XOFF = X1T_OFF if norm else GF_OFF
    if NW == 8: own_dts = lambda w: (0, 1, 2) if w < 4 else (3, 4)
    else: own_dts = lambda w: (0, 1, 2, 3, 4)
    MT = 3 if NW == 8 else 5
    NS = NW - 1
    own_base = []; off = 0
    for w in range(NW):
        own_base.append(off); off += NS * len(own_dts(w)) * 1024
    REDSZ = off
    TR = REDSZ + 1024
    LDS = max(TAB + NW * 2048, TR + 4 * 2560)
    a(f"s_cmp_ge_u32 s2, {NWG}")
    a(f"s_cbranch_scc1 L_{name}_end")
    S = Stamper(a, 2 + which + 5*layer, 8); S.real(); S.stamp()
    a(f"s_load_dwordx4 s[4:7], s[0:1], {48 if norm else 64}")
    a(f"s_load_dwordx2 s[12:13], s[0:1], 96")
    if not norm:
        a(f"s_load_dwordx2 s[8:9], s[0:1], 80")
    a("v_lshrrev_b32 v1, 6, v0")
    a("v_and_b32 v0, 63, v0")
    a("v_readfirstlane_b32 s32, v1")
    if norm:
        a("s_and_b32 s33, s2, 7")
        a(f"s_mul_i32 s33, s33, {NWG//8}")
        a("s_lshr_b32 s34, s2, 3")
        a("s_add_u32 s33, s33, s34")
        a("s_lshr_b32 s34, s33, 3")
        a("s_and_b32 s33, s33, 7")
        a(f"s_load_dwordx2 s[8:9], s[0:1], 64")
    else:
        a("s_and_b32 s34, s2, 7")
        a("s_lshr_b32 s33, s2, 3")
        a("s_and_b32 s33, s33, 3")
        a("s_lshl_b32 s33, s33, 3")
        a("s_add_u32 s34, s34, s33")
        a("s_lshr_b32 s33, s2, 5")
        a(f"s_load_dwordx2 s[10:11], s[0:1], 8")
    a("v_and_b32 v1, 15, v0")
    a("v_lshrrev_b32 v2, 4, v0")
    a("v_lshlrev_b32 v3, 4, v0")
    NST = 64 // NW if norm else 56 // NW
    a(f"s_mul_i32 s35, s32, {NST}")
    a("v_lshrrev_b32 v10, 3, v0")
    a("v_lshrrev_b32 v11, 1, v10")
    a("v_and_b32 v11, 3, v11")
    a("v_lshlrev_b32 v11, 1, v11")
    a("v_and_b32 v12, 7, v0")
    a("v_xor_b32 v12, v12, v11")
    a(f"s_movk_i32 s38, {WSTR}")
    a("v_mul_lo_u32 v5, v10, s38")
    a("v_lshl_add_u32 v44, v12, 4, v5")
    for jj in range(1, 4): a(f"v_add_u32 v{44+jj}, {jj*(8*WSTR-1024)}, v44")
    for dt in range(1, 5): a(f"v_add_u32 v{19+dt}, {dt*XDT}, v3")
    a(f"s_mul_i32 s40, s35, {32*WSTR}")
    a("s_lshl_b32 s41, s34, 7")
    a("s_add_u32 s40, s40, s41")
    a(f"s_mul_i32 s41, s33, {5*XDT}")
    a("s_lshl_b32 s42, s35, 10")
    a("s_add_u32 s41, s41, s42")
    a(f"s_add_u32 s41, s41, {XOFF}")
    a(f"s_mul_i32 s42, s32, {RING}")
    a("s_and_b32 s52, s32, 3")
    a("s_lshr_b32 s53, s32, 2")
    a("s_waitcnt lgkmcnt(0)")
    srd(a, 20, 4, 5, WBYTES)
    srd(a, 28, 12, 13, WS_SIZE)
    XR = 48
    XN = XR + 20 * U
    WF = XN + (40 if norm else 0)
    TT = WF + 32
    NV = max(TT + (16 if norm else 0), 176)
    TMP = 16
    TB = 36
    EB = 24
    if norm:
        a("s_lshl_b32 s37, s32, 11")
        a(f"s_add_u32 s37, s37, {ST_OFF}")
        a("v_lshlrev_b32 v4, 3, v0")
        for i2 in range(4):
            a(f"buffer_load_dwordx2 {vr(TB+2*i2,2)}, v4, s[28:31], s37 offen offset:{512*i2}")
    def w_ops(slot):
        ops = []
        for jj in range(4):
            op = [f"s_mov_b32 m0, s{64+slot}"] if jj == 0 else []
            if jj == 0: op.append("s_nop 0")
            op.append(f"buffer_load_dwordx4 v{44+jj}, s[20:23], s40 offen offset:{jj*1024} lds")
            ops.append(op)
        ops[-1] += [f"s_add_u32 s40, s40, {32*WSTR}"]
        return ops
    def x_ops(slot):
        ops = []
        for dt in range(5):
            va = 3 if dt == 0 else 19 + dt
            ops.append([f"buffer_load_dwordx4 {vr(XR+20*slot+4*dt,4)}, v{va}, s[60:63], s41 offen"])
        ops[-1] += ["s_add_u32 s41, s41, 1024"]
        return ops
    lab = [0]
    def emit_ops(ops, guard=False):
        for op in ops:
            for x in op: a(x)
    srd(a, 60, 12, 13, WS_SIZE)
    for u in range(U): a(f"s_add_u32 s{64+u}, s42, {u*4096}")
    emit_ops(w_ops(0)); emit_ops(x_ops(0))
    srd(a, 24, 6, 7, 1728 * 2 if norm else 2048 * 2)
    if not norm:
        if layer == 0:
            a(f"s_add_u32 s8, s12, {hex(X2_OFF)}")
            a(f"s_addc_u32 s9, s13, 0")
        srd(a, 16, 8, 9, XBYTES)
    a("s_lshl_b32 s43, s34, 7")
    a("s_lshl_b32 s44, s52, 5")
    a("s_add_u32 s43, s43, s44")
    a("v_lshlrev_b32 v10, 3, v2")
    a(f"buffer_load_dwordx2 {vr(EB,2)}, v10, s[24:27], s43 offen")
    NE = 1
    if not norm:
        a("s_mul_i32 s43, s33, 327680")
        a("s_mul_i32 s44, s53, 196608")
        a("s_add_u32 s43, s43, s44")
        a("s_lshl_b32 s44, s34, 11")
        a("s_add_u32 s43, s43, s44")
        a("s_lshr_b32 s44, s52, 1")
        a("s_lshl_b32 s44, s44, 10")
        a("s_add_u32 s43, s43, s44")
        a("s_and_b32 s44, s52, 1")
        a("s_lshl_b32 s44, s44, 3")
        a("s_add_u32 s43, s43, s44")
        a(f"s_add_u32 s43, s43, {X1T_OFF}")
        for j in range(MT):
            a(f"buffer_load_dwordx2 {vr(EB+2+2*j,2)}, v3, s[28:31], s43 offen")
            if j < MT - 1: a("s_add_u32 s43, s43, 65536")
        NE = 1 + MT
    for u in range(1, U):
        emit_ops(w_ops(u)); emit_ops(x_ops(u))
    S.stamp()
    a("v_lshrrev_b32 v10, 2, v1")
    a("v_lshl_add_u32 v10, v2, 2, v10")
    a("v_lshrrev_b32 v11, 1, v10")
    a("v_and_b32 v11, 3, v11")
    a("v_and_b32 v12, 3, v1")
    a("v_lshlrev_b32 v12, 3, v12")
    a("v_lshl_add_u32 v12, v10, 7, v12")
    a("v_add_u32 v12, s42, v12")
    for nt in range(4):
        a(f"v_xor_b32 v13, {nt}, v11")
        a(f"v_lshl_add_u32 v{6+nt}, v13, 5, v12")
    for r in range(80): a(f"v_accvgpr_write_b32 a{r}, 0")
    a("s_mov_b32 s46, 0xffff0000")
    if norm:
        a(f"s_waitcnt vmcnt({9*U+NE})")
        a("s_lshl_b32 s43, s32, 11")
        a(f"s_add_u32 s43, s43, {TAB}")
        a("v_lshlrev_b32 v14, 2, v0")
        a("v_add_u32 v14, s43, v14")
        a("v_lshlrev_b32 v15, 4, v2")
        a("v_add_u32 v15, s43, v15")
        a(f"s_mov_b32 s47, {hex(f2u(1.0/640))}")
        a(f"s_mov_b32 s48, {hex(f2u(1e-5))}")
        for i2 in range(4):
            m = TB + 2 * i2; q = m + 1
            a(f"v_mul_f32 v{m}, s47, v{m}")
            a(f"v_mul_f32 v{q}, s47, v{q}")
            a(f"v_fma_f32 v{q}, -v{m}, v{m}, v{q}")
            a(f"v_max_f32 v{q}, 0, v{q}")
            a(f"v_add_f32 v{TMP}, s48, v{q}")
            a(f"v_rsq_f32 v{TMP}, v{TMP}")
            a("s_nop 0")
            a(f"v_mul_f32 v{q}, v{q}, v{TMP}")
            a(f"v_fma_f32 v{q}, v{q}, v{TMP}, s48")
            a(f"v_rsq_f32 v{q}, v{q}")
            a("s_nop 0")
            a(f"v_mul_f32 v{q}, v{q}, v{TMP}")
            a(f"v_mul_f32 v{m}, v{m}, v{q}")
            a(f"v_sub_f32 v{m}, 0, v{m}")
            a(f"ds_write_b32 v14, v{q} offset:{256*i2}")
            a(f"ds_write_b32 v14, v{m} offset:{1024+256*i2}")
        a("s_waitcnt lgkmcnt(0)")
    def wreads(slot, fs):
        for nt in range(4):
            for half in range(2):
                a(f"ds_read_b64_tr_b16 {vr(WF+16*fs+4*nt+2*half,2)}, v{6+nt} offset:{slot*4096+half*2048}")
    def treads():
        a(f"ds_read_b128 {vr(TT,4)}, v15")
        a(f"ds_read_b128 {vr(TT+4,4)}, v15 offset:64")
        a(f"ds_read_b128 {vr(TT+8,4)}, v15 offset:1024")
        a(f"ds_read_b128 {vr(TT+12,4)}, v15 offset:1088")
        a("v_add_u32 v15, 128, v15")
    def norm_ops(slot, fs):
        ops = []
        for dt in range(5):
            for dw in range(4):
                r = XR + 20 * slot + 4 * dt + dw
                e = (dw % 2) * 2 + (dw // 2) * 4
                t0 = TMP + 2 * (dw % 2); t1 = t0 + 1
                ops.append(f"v_lshlrev_b32 v{t0}, 16, v{r}")
                ops.append(f"v_and_b32 v{t1}, s46, v{r}")
                ops.append(f"v_fma_f32 v{t0}, v{t0}, v{TT+e}, v{TT+8+e}")
                ops.append(f"v_fma_f32 v{t1}, v{t1}, v{TT+e+1}, v{TT+8+e+1}")
                ops.append(f"v_cvt_pk_bf16_f32 v{XN+20*fs+4*dt+dw}, v{t0}, v{t1}")
        return ops
    def mfma_list(slot, fs):
        l = []
        for dt in range(5):
            x = (XN + 20 * fs + 4 * dt) if norm else (XR + 20 * slot + 4 * dt)
            for nt in range(4):
                w = WF + 16 * fs + 4 * nt
                t = 4 * (dt * 4 + nt)
                l.append(f"v_mfma_f32_16x16x32_bf16 a[{t}:{t+3}], {vr(w,4)}, {vr(x,4)}, a[{t}:{t+3}]")
        return l
    def norm_step(nu, nfs, ml, ld):
        treads()
        wreads(nu, nfs)
        ops = norm_ops(nu, nfs)
        xo = x_ops(nu) if ld else []; wo = w_ops(nu) if ld else []
        k = 0
        for m in ml[:3]: a(m); k += 1
        a("s_waitcnt lgkmcnt(8)")
        for idx, op in enumerate(ops):
            a(op)
            if idx % 6 == 5 and k < len(ml):
                a(ml[k]); k += 1
            if idx % 20 == 19 and xo:
                emit_ops([xo.pop(0)])
            if idx == 30 and ld: a("s_waitcnt lgkmcnt(0)")
            if idx in (40, 55, 70, 85) and wo:
                emit_ops([wo.pop(0)])
        while k < len(ml): a(ml[k]); k += 1
        assert not xo and not wo
    if NW == 8 and os.environ.get("K4PRIO", "1") != "0":
        a("s_cmp_lt_u32 s32, 4")
        a(f"s_cbranch_scc1 L_{name}_np")
        a("s_setprio 1")
        a.label(f"L_{name}_np")
    a(f"s_waitcnt vmcnt({9*(U-1)+NE})")
    if norm:
        norm_step(0, 0, [], U < NST)
    else:
        wreads(0, 0)
    S.stamp()
    for j in range(NST):
        u = j % U; fs = j % 2; nu = (j + 1) % U; nfs = 1 - fs
        if norm:
            if j + 1 < NST:
                younger = min(j + U, NST - 1) - (j + 1)
                a(f"s_waitcnt vmcnt({9*younger}) lgkmcnt(0)")
                norm_step(nu, nfs, mfma_list(u, fs), j + 1 + U < NST)
            else:
                a("s_waitcnt lgkmcnt(0)")
                for m in mfma_list(u, fs): a(m)
        else:
            if j + 1 < NST:
                younger = min(j + U - 1, NST - 1) - (j + 1)
                a(f"s_waitcnt vmcnt({9*younger}) lgkmcnt(0)")
                wreads(nu, nfs)
            else:
                a("s_waitcnt vmcnt(0) lgkmcnt(0)")
            ld = j + U < NST
            xo = x_ops(u) if ld else []; wo = w_ops(u) if ld else []
            for idx, m in enumerate(mfma_list(u, fs)):
                a(m)
                if idx % 4 == 3 and xo: emit_ops([xo.pop(0)])
                if idx % 4 == 1 and wo: emit_ops([wo.pop(0)])
            assert not xo and not wo
        if NW == 8 and j == NST - int(os.environ.get("K4OFF", "3")): a("s_setprio 0")
    a.label(f"L_{name}_done")
    S.stamp()
    a("s_waitcnt vmcnt(0) lgkmcnt(0)")
    if norm:
        a("s_cmp_lg_u32 s34, 26")
        a(f"s_cbranch_scc1 L_{name}_nozf")
        a("s_cmp_ge_u32 s32, 5")
        a(f"s_cbranch_scc1 L_{name}_nozf")
        a("s_mul_i32 s43, s33, 5")
        a("s_add_u32 s43, s43, s32")
        a(f"s_mul_i32 s43, s43, {GDT}")
        a(f"s_add_u32 s43, s43, {GF_OFF + 54*1024}")
        for r in range(4): a(f"v_mov_b32 v{16+r}, 0")
        a("buffer_store_dwordx4 v[16:19], v3, s[28:31], s43 offen")
        a("buffer_store_dwordx4 v[16:19], v3, s[28:31], s43 offen offset:1024")
        a.label(f"L_{name}_nozf")
        srd(a, 56, 8, 9, WBYTES)
        a("s_lshr_b32 s43, s2, 3")
        a("s_lshl_b32 s43, s43, 3")
        a("s_add_u32 s43, s43, s32")
        a(f"s_mul_i32 s43, s43, {8*4096}")
        a("s_and_b32 s44, s2, 7")
        a("s_lshl_b32 s44, s44, 7")
        a("s_add_u32 s43, s43, s44")
        a("v_lshrrev_b32 v10, 3, v0")
        a("v_lshlrev_b32 v10, 12, v10")
        a("v_and_b32 v11, 7, v0")
        a("v_lshl_add_u32 v10, v11, 4, v10")
        for j in range(4):
            a(f"buffer_load_dwordx4 v[20:23], v10, s[56:59], s43 offen offset:{1024*j}")
    elif layer == 0:
        srd(a, 56, 10, 11, 819200)
        per = 819200 // (32 * NW)
        a("s_lshr_b32 s43, s2, 3")
        a(f"s_mul_i32 s43, s43, {NW}")
        a("s_add_u32 s43, s43, s32")
        a(f"s_mul_i32 s43, s43, {per}")
        for j in range((per + 1023) // 1024):
            if j == 4: a("s_add_u32 s43, s43, 4096")
            a(f"buffer_load_dwordx4 v[20:23], v3, s[56:59], s43 offen offset:{min(1024*j, per-1024) - (4096 if j >= 4 else 0)}")
    code_prefetch(a, NW, 12, 20)
    a("s_barrier")
    OWN = 88
    for o in range(NW):
        dts = own_dts(o); nt = o % 4
        a(f"s_cmp_eq_u32 s32, {o}")
        a(f"s_cbranch_scc1 L_{name}_own{o}")
        a(f"s_sub_u32 s43, s32, {o+1}")
        a(f"s_and_b32 s43, s43, {NW-1}")
        a(f"s_mul_i32 s43, s43, {len(dts)*1024}")
        a(f"s_add_u32 s43, s43, {own_base[o]}")
        a("v_add_u32 v10, s43, v3")
        for j, dt in enumerate(dts):
            t = 4 * (dt * 4 + nt)
            a(f"ds_write_b128 v10, a[{t}:{t+3}] offset:{j*1024}")
        a(f"s_branch L_{name}_nx{o}")
        a.label(f"L_{name}_own{o}")
        for j, dt in enumerate(dts):
            for r in range(4):
                a(f"v_accvgpr_read_b32 v{OWN+4*j+r}, a{4*(dt*4+nt)+r}")
        for r in range(4 * len(dts), 4 * MT): a(f"v_mov_b32 v{OWN+r}, 0")
        a(f"s_mov_b32 s54, {own_base[o]}")
        a(f"s_mov_b32 s55, {len(dts)*1024}")
        a.label(f"L_{name}_nx{o}")
    a("s_waitcnt lgkmcnt(0)")
    a("s_barrier")
    a("v_add_u32 v10, s54, v3")
    BI = 40
    a(f"v_lshlrev_b32 v{BI}, 16, v{EB}")
    a(f"v_and_b32 v{BI+1}, s46, v{EB}")
    a(f"v_lshlrev_b32 v{BI+2}, 16, v{EB+1}")
    a(f"v_and_b32 v{BI+3}, s46, v{EB+1}")
    if NW == 8: PRS = [108, 120, 132, 144, 156, 48, 60]
    else: PRS = [108, 128, 148]
    issued = 0; done = 0
    for sidx in range(NS):
        for j in range(MT):
            a(f"ds_read_b128 {vr(PRS[sidx]+4*j,4)}, v10 offset:{j*1024}")
        issued += 1
        if sidx < NS - 1: a("v_add_u32 v10, s55, v10")
        if (issued - done) * MT >= 12 and sidx < NS - 1:
            a(f"s_waitcnt lgkmcnt({(issued-done-1)*MT})")
            for r in range(4 * MT): a(f"v_add_f32 v{OWN+r}, v{OWN+r}, v{PRS[done]+r}")
            done += 1
    while done < NS:
        a(f"s_waitcnt lgkmcnt({(NS-done-1)*MT})")
        for r in range(4 * MT): a(f"v_add_f32 v{OWN+r}, v{OWN+r}, v{PRS[done]+r}")
        done += 1
    S.stamp()
    E0 = 112
    if norm:
        c1 = -2.0 * math.log2(math.e) * 0.7978845608028654
        c2 = c1 * 0.044715
        a(f"s_mov_b32 s47, {hex(f2u(c1))}")
        a(f"s_mov_b32 s48, {hex(f2u(c2))}")
        a("v_mov_b32 v44, s47")
        a(f"s_mul_i32 s43, s33, {5*GDT}")
        a(f"s_mul_i32 s44, s53, {3*GDT}")
        a("s_add_u32 s43, s43, s44")
        a("s_lshl_b32 s44, s34, 11")
        a("s_add_u32 s43, s43, s44")
        a("s_lshr_b32 s44, s52, 1")
        a("s_lshl_b32 s44, s44, 10")
        a("s_add_u32 s43, s43, s44")
        a("s_and_b32 s44, s52, 1")
        a("s_lshl_b32 s44, s44, 3")
        a("s_add_u32 s43, s43, s44")
        a(f"s_add_u32 s43, s43, {GF_OFF}")
        for j in range(MT):
            if NW == 8 and j == 2:
                a("s_cmp_lg_u32 s53, 0")
                a(f"s_cbranch_scc1 L_{name}_fin")
            for r in range(4):
                u = OWN + 4 * j + r
                a(f"v_add_f32 v{u}, v{u}, v{BI+r}")
            for r in range(4):
                u = OWN + 4 * j + r; t = E0 + r
                a(f"v_mul_f32 v{t}, v{u}, v{u}")
            for r in range(4):
                t = E0 + r
                a(f"v_fma_f32 v{t}, v{t}, s48, v44")
            for r in range(4):
                u = OWN + 4 * j + r; t = E0 + r
                a(f"v_mul_f32 v{t}, v{t}, v{u}")
            for r in range(4): a(f"v_exp_f32 v{E0+r}, v{E0+r}")
            for r in range(4): a(f"v_add_f32 v{E0+r}, 1.0, v{E0+r}")
            for r in range(4): a(f"v_rcp_f32 v{E0+r}, v{E0+r}")
            for r in range(4):
                u = OWN + 4 * j + r
                a(f"v_mul_f32 v{u}, v{u}, v{E0+r}")
            o = E0 + 6 + 2 * j
            a(f"v_cvt_pk_bf16_f32 v{o}, v{OWN+4*j}, v{OWN+4*j+1}")
            a(f"v_cvt_pk_bf16_f32 v{o+1}, v{OWN+4*j+2}, v{OWN+4*j+3}")
            a(f"buffer_store_dwordx2 {vr(o,2)}, v3, s[28:31], s43 offen")
            if j < MT - 1: a(f"s_add_u32 s43, s43, {GDT}")
    else:
        a("s_mul_i32 s43, s52, 2560")
        a(f"s_add_u32 s43, s43, {TR}")
        a("s_mul_i32 s44, s53, 96")
        a("s_add_u32 s44, s44, s43")
        a("v_mul_u32_u24 v10, 640, v2")
        a("v_lshl_add_u32 v10, v1, 1, v10")
        a("v_add_u32 v10, s44, v10")
        for j in range(MT):
            if NW == 8 and j == 2:
                a("s_cmp_lg_u32 s53, 0")
                a(f"s_cbranch_scc1 L_{name}_tr")
            for h in range(2):
                rr = EB + 2 + 2 * j + h
                a(f"v_lshlrev_b32 v{E0}, 16, v{rr}")
                a(f"v_and_b32 v{E0+1}, s46, v{rr}")
                u = OWN + 4 * j + 2 * h
                a(f"v_add_f32 v{u}, v{u}, v{BI+2*h}")
                a(f"v_add_f32 v{u+1}, v{u+1}, v{BI+2*h+1}")
                a(f"v_add_f32 v{E0}, v{E0}, v{u}")
                a(f"v_add_f32 v{E0+1}, v{E0+1}, v{u+1}")
                a(f"v_cvt_pk_bf16_f32 v{E0+2+h}, v{E0}, v{E0+1}")
                a(f"ds_write_b16 v10, v{E0+2+h} offset:{(2*h)*160 + 32*j}")
                a(f"ds_write_b16_d16_hi v10, v{E0+2+h} offset:{(2*h+1)*160 + 32*j}")
        a.label(f"L_{name}_tr")
        NCH = 2 if NW == 8 else 3
        LASTN = 16 if NW == 8 else 32
        a("s_lshl_b32 s44, s34, 6")
        a("s_lshl_b32 s45, s52, 4")
        a("s_add_u32 s44, s44, s45")
        a("s_mul_i32 s44, s44, 1280")
        a("s_mul_i32 s45, s33, 160")
        a("s_add_u32 s44, s44, s45")
        a("s_mov_b32 s47, 6554")
        a("s_movk_i32 s48, 1280")
        a("s_mul_i32 s45, s53, 80")
        a("v_add_u32 v12, s45, v0")
        a("v_lshlrev_b32 v11, 4, v12")
        a("v_add_u32 v11, s43, v11")
        for j in range(NCH):
            if j: a("v_add_u32 v12, 64, v12")
            a("v_mul_lo_u32 v13, v12, s47")
            a("v_lshrrev_b32 v13, 16, v13")
            a("v_mul_u32_u24 v14, 10, v13")
            a("v_sub_u32 v14, v12, v14")
            a("v_mul_lo_u32 v13, v13, s48")
            a(f"v_lshl_add_u32 v{16+j}, v14, 4, v13")
        a("s_waitcnt lgkmcnt(0)")
        if NW == 8: a("s_barrier")
        for j in range(NCH):
            a(f"ds_read_b128 {vr(120+4*j,4)}, v11 offset:{1024*j}")
        a("s_waitcnt lgkmcnt(0)")
        for j in range(NCH):
            if j == NCH - 1:
                a(f"v_cmp_gt_u32 vcc, {LASTN}, v0")
                a("s_and_saveexec_b64 s[46:47], vcc")
            a(f"buffer_store_dwordx4 {vr(120+4*j,4)}, v{16+j}, s[16:19], s44 offen")
    a.label(f"L_{name}_fin")
    S.stamp(); S.real(); S.flush()
    a.label(f"L_{name}_end")
    a("s_endpgm")
    kdt = kd(name, NV + 80).replace(f".amdhsa_accum_offset {NV+80}", f".amdhsa_accum_offset {NV}")
    return name, a.text(), kdt, f"; @launch kernel={name} grid=({NWG},1,1) block=({64*NW},1,1) lds={LDS}"


def gen_mlpA(which):
    norm = which == 1
    name = "mlp1_kernel" if norm else "mlp2_0_kernel"
    a = Asm()
    if not norm:
        header(a, "mlp2_1_kernel")
        a("s_mov_b32 s99, 1")
        a("s_branch L_mlp2_body")
        header(a, name)
        a("s_mov_b32 s99, 0")
        a.label("L_mlp2_body")
    else:
        header(a, name)
    D = 8
    NH = 32 if norm else 28
    NS = NH // 2
    DX = 4
    RINGH = D * 8192
    TAB = 2 * RINGH
    RED = 0
    TR = 32768
    LDS = TAB + (16384 if norm else 0)
    NWG = 216 if norm else 256
    WSTR = 3456 if norm else 4096
    WBYTES = 2048 * 1728 * 2
    XDT = 65536 if norm else GDT
    XOFF = X1T_OFF if norm else GF_OFF
    a(f"s_cmp_ge_u32 s2, {NWG}")
    a(f"s_cbranch_scc1 L_{name}_end")
    S = Stamper(a, 2 + which, 16); S.real(); S.stamp()
    a(f"s_load_dwordx4 s[4:7], s[0:1], {48 if norm else 64}")
    a(f"s_load_dwordx2 s[12:13], s[0:1], 96")
    if norm:
        a(f"s_load_dwordx2 s[8:9], s[0:1], 64")
    else:
        a(f"s_load_dwordx2 s[8:9], s[0:1], 80")
        a(f"s_load_dwordx2 s[10:11], s[0:1], 8")
    a("v_mov_b32 v40, v0")
    a("v_lshrrev_b32 v1, 6, v0")
    a("v_and_b32 v0, 63, v0")
    a("v_readfirstlane_b32 s32, v1")
    if norm:
        a("s_and_b32 s33, s2, 7")
        a(f"s_mul_i32 s33, s33, {NWG//8}")
        a("s_lshr_b32 s34, s2, 3")
        a("s_add_u32 s33, s33, s34")
        a("s_lshr_b32 s34, s33, 3")
        a("s_and_b32 s33, s33, 7")
    else:
        a("s_and_b32 s34, s2, 7")
        a("s_lshr_b32 s33, s2, 3")
        a("s_and_b32 s33, s33, 3")
        a("s_lshl_b32 s33, s33, 3")
        a("s_add_u32 s34, s34, s33")
        a("s_lshr_b32 s33, s2, 5")
    a("v_and_b32 v1, 15, v0")
    a("v_lshrrev_b32 v2, 4, v0")
    a("v_lshlrev_b32 v3, 4, v0")
    a("s_cmp_ge_u32 s32, 10")
    a(f"s_cbranch_scc1 L_{name}_prod")
    a("s_cmp_ge_u32 s32, 5")
    a("s_cselect_b32 s53, 1, 0")
    a("s_mul_i32 s52, s53, 5")
    a("s_sub_u32 s52, s32, s52")
    a("s_mul_i32 s41, s33, 5")
    a("s_add_u32 s41, s41, s52")
    a(f"s_mul_i32 s41, s41, {XDT}")
    a(f"s_mul_i32 s42, s53, {NH*1024}")
    a("s_add_u32 s41, s41, s42")
    a(f"s_add_u32 s41, s41, {XOFF}")
    a("s_waitcnt lgkmcnt(0)")
    srd(a, 28, 12, 13, WS_SIZE)
    XR = 48
    XN = 80
    WF = 96
    ACC = 24
    EB = 16
    NV = 168
    TBL = 104
    TR0 = 96
    def table_compute():
        a("v_lshlrev_b32 v4, 3, v40")
        a(f"s_mov_b32 s43, {ST_OFF}")
        for i2 in range(4):
            if i2 == 3:
                a("v_cmp_gt_u32 vcc, 128, v40")
                a("s_and_saveexec_b64 s[50:51], vcc")
            a(f"buffer_load_dwordx2 {vr(TR0+2*i2,2)}, v4, s[28:31], s43 offen")
            if i2 < 3: a(f"s_add_u32 s43, s43, {640*8}")
        a("s_mov_b64 exec, -1")
    def table_finish(nyounger):
        a(f"s_waitcnt vmcnt({nyounger})")
        a("v_lshlrev_b32 v4, 2, v40")
        a(f"v_add_u32 v4, {TAB}, v4")
        a(f"s_mov_b32 s47, {hex(f2u(1.0/640))}")
        a(f"s_mov_b32 s48, {hex(f2u(1e-5))}")
        for i2 in range(4):
            m = TR0 + 2 * i2; q = m + 1; T_ = 110
            a(f"v_mul_f32 v{m}, s47, v{m}")
            a(f"v_mul_f32 v{q}, s47, v{q}")
            a(f"v_fma_f32 v{q}, -v{m}, v{m}, v{q}")
            a(f"v_max_f32 v{q}, 0, v{q}")
            a(f"v_add_f32 v{T_}, s48, v{q}")
            a(f"v_rsq_f32 v{T_}, v{T_}")
            a("s_nop 0")
            a(f"v_mul_f32 v{q}, v{q}, v{T_}")
            a(f"v_fma_f32 v{q}, v{q}, v{T_}, s48")
            a(f"v_rsq_f32 v{q}, v{q}")
            a("s_nop 0")
            a(f"v_mul_f32 v{q}, v{q}, v{T_}")
            a(f"v_mul_f32 v{m}, v{m}, v{q}")
            a(f"v_sub_f32 v{m}, 0, v{m}")
            if i2 == 3:
                a("v_cmp_gt_u32 vcc, 128, v40")
                a("s_and_saveexec_b64 s[50:51], vcc")
            a(f"ds_write_b32 v4, v{q} offset:{2560*i2}")
            a(f"ds_write_b32 v4, v{m} offset:{8192+2560*i2}")
        a("s_mov_b64 exec, -1")
        a("s_waitcnt lgkmcnt(0)")
    if norm: table_compute()
    def x_load(st):
        sl = st % DX
        a(f"buffer_load_dwordx4 {vr(XR+8*sl,4)}, v3, s[28:31], s41 offen")
        a(f"buffer_load_dwordx4 {vr(XR+8*sl+4,4)}, v3, s[28:31], s41 offen offset:1024")
        a("s_add_u32 s41, s41, 2048")
    x_load(0)
    srd(a, 24, 6, 7, 1728 * 2 if norm else 2048 * 2)
    a("s_lshl_b32 s43, s34, 7")
    a("s_lshl_b32 s44, s53, 6")
    a("s_add_u32 s43, s43, s44")
    a("v_lshlrev_b32 v10, 3, v2")
    a(f"buffer_load_dwordx2 {vr(EB,2)}, v10, s[24:27], s43 offen")
    a(f"buffer_load_dwordx2 {vr(EB+2,2)}, v10, s[24:27], s43 offen offset:32")
    NE = 2
    if not norm:
        a("s_mul_i32 s43, s33, 5")
        a("s_add_u32 s43, s43, s52")
        a("s_lshl_b32 s43, s43, 16")
        a("s_lshl_b32 s44, s34, 11")
        a("s_add_u32 s43, s43, s44")
        a("s_lshl_b32 s44, s53, 10")
        a("s_add_u32 s43, s43, s44")
        a(f"s_add_u32 s43, s43, {X1T_OFF}")
        a(f"buffer_load_dwordx4 {vr(EB+4,4)}, v3, s[28:31], s43 offen")
        NE = 3
    for st in range(1, DX): x_load(st)
    a("v_lshrrev_b32 v10, 2, v1")
    a("v_lshl_add_u32 v10, v2, 2, v10")
    a("v_lshrrev_b32 v11, 1, v10")
    a("v_and_b32 v11, 3, v11")
    a("v_and_b32 v12, 3, v1")
    a("v_lshlrev_b32 v12, 3, v12")
    a("v_lshl_add_u32 v12, v10, 7, v12")
    a(f"s_mul_i32 s42, s53, {RINGH}")
    a("v_add_u32 v12, s42, v12")
    for nt in range(4):
        a(f"v_xor_b32 v13, {nt}, v11")
        a(f"v_lshl_add_u32 v{6+nt}, v13, 5, v12")
    for r in range(16): a(f"v_mov_b32 v{ACC+r}, 0")
    a("s_mov_b32 s46, 0xffff0000")
    if norm:
        table_finish(2 * DX + NE)
        a("v_lshlrev_b32 v15, 4, v2")
        a(f"s_mul_i32 s43, s53, {NH*128}")
        a(f"s_add_u32 s43, s43, {TAB}")
        a("v_add_u32 v15, s43, v15")
    TT = 160
    def wreads(st, k2s=(0, 1)):
        ring = st % D; wb = WF + 32 * (st % 2)
        for k2 in k2s:
            for nt in range(4):
                for half in range(2):
                    a(f"ds_read_b64_tr_b16 {vr(wb+16*k2+4*nt+2*half,2)}, v{6+nt} offset:{ring*8192+k2*4096+half*2048}")
    def norm_pieces(st):
        sl = st % DX; xn = XN + 8 * (st % 2)
        out = []
        for k2 in range(2):
            for hh in range(2):
                off = (2 * st + k2) * 128 + 64 * hh
                rd = [f"ds_read_b128 {vr(TT,4)}, v15 offset:{off}", f"ds_read_b128 {vr(TT+4,4)}, v15 offset:{off+8192}"]
                ops = []
                for d2 in range(2):
                    dw = 2 * hh + d2
                    r = XR + 8 * sl + 4 * k2 + dw
                    t0 = 42 + 2 * d2; t1 = t0 + 1
                    ops += [f"v_lshlrev_b32 v{t0}, 16, v{r}", f"v_and_b32 v{t1}, s46, v{r}",
                            f"v_fma_f32 v{t0}, v{t0}, v{TT+2*d2}, v{TT+4+2*d2}",
                            f"v_fma_f32 v{t1}, v{t1}, v{TT+2*d2+1}, v{TT+4+2*d2+1}",
                            f"v_cvt_pk_bf16_f32 v{xn+4*k2+dw}, v{t0}, v{t1}"]
                out.append((rd, ops))
        return out
    def xwait(st):
        issued = min(st + DX - 1 - (1 if True else 0) + 0, NS - 1)
        return issued
    a("s_barrier")
    S.stamp()
    wreads(0)
    a(f"s_waitcnt vmcnt({2*(DX-1)+NE})")
    if norm:
        for rd, ops in norm_pieces(0):
            for x in rd: a(x)
            a("s_waitcnt lgkmcnt(0)")
            for x in ops: a(x)
        if DX < NS: x_load(DX)
    hi = DX if (norm and DX < NS) else DX - 1
    for st in range(NS):
        sl = st % DX; wb = WF + 32 * (st % 2)
        nxt = st + 1 < NS
        a("s_waitcnt lgkmcnt(0)")
        if nxt:
            a("s_barrier")
            if not norm: wreads(st + 1)
        ml = []
        for k2 in range(2):
            x = (XN + 8 * (st % 2) + 4 * k2) if norm else (XR + 8 * sl + 4 * k2)
            for nt in range(4): ml.append((ACC + 4 * nt, wb + 16 * k2 + 4 * nt, x))
        if norm:
            if nxt:
                a(f"s_waitcnt vmcnt({2*(hi-(st+1))})")
                pcs = norm_pieces(st + 1)
                for pi, (rd, ops) in enumerate(pcs):
                    for x in rd: a(x)
                    if pi < 2: wreads(st + 1, (pi,))
                    for m in ml[2*pi:2*pi+2]: mfma16(a, *m)
                    a(f"s_waitcnt lgkmcnt({8 if pi < 2 else 0})")
                    for x in ops: a(x)
                if st + 1 + DX < NS:
                    x_load(st + 1 + DX); hi = st + 1 + DX
            else:
                for m in ml: mfma16(a, *m)
        else:
            if st > 0: a(f"s_waitcnt vmcnt({2*(hi-st)})")
            for m in ml: mfma16(a, *m)
            if st + DX < NS:
                x_load(st + DX); hi = st + DX
    S.stamp()
    a("s_nop 7")
    a("s_barrier")
    a("s_lshl_b32 s43, s32, 11")
    a("v_add_u32 v10, s43, v3")
    a("s_cmp_eq_u32 s53, 0")
    a(f"s_cbranch_scc1 L_{name}_x0")
    a(f"ds_write_b128 v10, {vr(ACC,4)}")
    a(f"ds_write_b128 v10, {vr(ACC+4,4)} offset:1024")
    for r in range(8): a(f"v_mov_b32 v{ACC+r}, v{ACC+8+r}")
    a(f"s_sub_u32 s43, s43, {5*2048}")
    a(f"s_branch L_{name}_x1")
    a.label(f"L_{name}_x0")
    a(f"ds_write_b128 v10, {vr(ACC+8,4)}")
    a(f"ds_write_b128 v10, {vr(ACC+12,4)} offset:1024")
    a(f"s_add_u32 s43, s43, {5*2048}")
    a.label(f"L_{name}_x1")
    a("v_add_u32 v10, s43, v3")
    a("s_waitcnt lgkmcnt(0)")
    a("s_barrier")
    a(f"ds_read_b128 {vr(48,4)}, v10")
    a(f"ds_read_b128 {vr(52,4)}, v10 offset:1024")
    BI = 56
    for j in range(2):
        a(f"v_lshlrev_b32 v{BI+4*j}, 16, v{EB+2*j}")
        a(f"v_and_b32 v{BI+4*j+1}, s46, v{EB+2*j}")
        a(f"v_lshlrev_b32 v{BI+4*j+2}, 16, v{EB+2*j+1}")
        a(f"v_and_b32 v{BI+4*j+3}, s46, v{EB+2*j+1}")
    a("s_waitcnt lgkmcnt(0)")
    for r in range(8):
        a(f"v_add_f32 v{ACC+r}, v{ACC+r}, v{48+r}")
        a(f"v_add_f32 v{ACC+r}, v{ACC+r}, v{BI+r}")
    E0 = 64
    if norm:
        c1 = -2.0 * math.log2(math.e) * 0.7978845608028654
        c2 = c1 * 0.044715
        a(f"s_mov_b32 s47, {hex(f2u(c1))}")
        a(f"s_mov_b32 s48, {hex(f2u(c2))}")
        a("v_mov_b32 v44, s47")
        for r in range(8): a(f"v_mul_f32 v{E0+r}, v{ACC+r}, v{ACC+r}")
        for r in range(8): a(f"v_fma_f32 v{E0+r}, v{E0+r}, s48, v44")
        for r in range(8): a(f"v_mul_f32 v{E0+r}, v{E0+r}, v{ACC+r}")
        for r in range(8): a(f"v_exp_f32 v{E0+r}, v{E0+r}")
        for r in range(8): a(f"v_add_f32 v{E0+r}, 1.0, v{E0+r}")
        for r in range(8): a(f"v_rcp_f32 v{E0+r}, v{E0+r}")
        for r in range(8): a(f"v_mul_f32 v{ACC+r}, v{ACC+r}, v{E0+r}")
        for r in range(4): a(f"v_cvt_pk_bf16_f32 v{E0+8+r}, v{ACC+2*r}, v{ACC+2*r+1}")
        a("s_mul_i32 s43, s33, 5")
        a("s_add_u32 s43, s43, s52")
        a(f"s_mul_i32 s43, s43, {GDT}")
        a("s_lshl_b32 s44, s34, 11")
        a("s_add_u32 s45, s43, s44")
        a("s_lshl_b32 s44, s53, 10")
        a("s_add_u32 s45, s45, s44")
        a(f"s_add_u32 s45, s45, {GF_OFF}")
        a(f"buffer_store_dwordx4 {vr(E0+8,4)}, v3, s[28:31], s45 offen")
        a("s_cmp_lg_u32 s34, 26")
        a(f"s_cbranch_scc1 L_{name}_fin")
        a("s_add_u32 s45, s45, 2048")
        for r in range(4): a(f"v_mov_b32 v{E0+r}, 0")
        a(f"buffer_store_dwordx4 {vr(E0,4)}, v3, s[28:31], s45 offen")
    else:
        a(f"s_mul_i32 s43, s53, {32*160}")
        a("s_lshl_b32 s44, s52, 5")
        a("s_add_u32 s43, s43, s44")
        a(f"s_add_u32 s43, s43, {TR}")
        a("v_mul_u32_u24 v10, 640, v2")
        a("v_lshl_add_u32 v10, v1, 1, v10")
        a("v_add_u32 v10, s43, v10")
        for j in range(2):
            for h in range(2):
                rr = EB + 4 + 2 * j + h
                u = ACC + 4 * j + 2 * h
                a(f"v_lshlrev_b32 v{E0}, 16, v{rr}")
                a(f"v_and_b32 v{E0+1}, s46, v{rr}")
                a(f"v_add_f32 v{E0}, v{E0}, v{u}")
                a(f"v_add_f32 v{E0+1}, v{E0+1}, v{u+1}")
                a(f"v_cvt_pk_bf16_f32 v{E0+2+h}, v{E0}, v{E0+1}")
                a(f"ds_write_b16 v10, v{E0+2+h} offset:{(16*j+2*h)*160}")
                a(f"ds_write_b16_d16_hi v10, v{E0+2+h} offset:{(16*j+2*h+1)*160}")
        a(f"s_add_u32 s14, s12, {hex(X2_OFF)}")
        a("s_addc_u32 s15, s13, 0")
        a("s_cmp_eq_u32 s99, 0")
        a("s_cselect_b32 s8, s14, s8")
        a("s_cselect_b32 s9, s15, s9")
        srd(a, 16, 8, 9, XBYTES)
        a("s_mul_i32 s44, s34, 81920")
        a("s_mul_i32 s45, s33, 160")
        a("s_add_u32 s44, s44, s45")
        a("s_mov_b32 s47, 6554")
        a("s_movk_i32 s48, 1280")
        a("v_mul_lo_u32 v13, v40, s47")
        a("v_lshrrev_b32 v13, 16, v13")
        a("v_mul_u32_u24 v14, 10, v13")
        a("v_sub_u32 v14, v40, v14")
        a("v_mul_lo_u32 v13, v13, s48")
        a("v_lshl_add_u32 v13, v14, 4, v13")
        a("v_lshlrev_b32 v11, 4, v40")
        a("s_waitcnt lgkmcnt(0)")
        a("s_barrier")
        a(f"ds_read_b128 {vr(72,4)}, v11 offset:{TR}")
        a("s_waitcnt lgkmcnt(0)")
        a(f"buffer_store_dwordx4 {vr(72,4)}, v13, s[16:19], s44 offen")
    a(f"s_branch L_{name}_fin")
    a.label(f"L_{name}_prod")
    a("s_sub_u32 s53, s32, 10")
    a("v_lshrrev_b32 v10, 3, v0")
    a("v_lshrrev_b32 v11, 1, v10")
    a("v_and_b32 v11, 3, v11")
    a("v_lshlrev_b32 v11, 1, v11")
    a("v_and_b32 v12, 7, v0")
    a("v_xor_b32 v12, v12, v11")
    a(f"s_movk_i32 s38, {WSTR}")
    a("v_mul_lo_u32 v5, v10, s38")
    a("v_lshl_add_u32 v44, v12, 4, v5")
    for jj in range(1, 4): a(f"v_add_u32 v{44+jj}, {jj*(8*WSTR-1024)}, v44")
    a(f"s_mul_i32 s40, s53, {NH*32*WSTR}")
    a("s_lshl_b32 s41, s34, 7")
    a("s_add_u32 s40, s40, s41")
    a(f"s_mul_i32 s42, s53, {RINGH}")
    a("s_waitcnt lgkmcnt(0)")
    srd(a, 20, 4, 5, WBYTES)
    srd(a, 28, 12, 13, WS_SIZE)
    def w_stage(st):
        ring = st % D
        for k2 in range(2):
            a(f"s_add_u32 s44, s42, {ring*8192 + k2*4096}")
            a("s_mov_b32 m0, s44")
            a("s_nop 0")
            for jj in range(4):
                a(f"buffer_load_dwordx4 v{44+jj}, s[20:23], s40 offen offset:{jj*1024} lds")
            a(f"s_add_u32 s40, s40, {32*WSTR}")
    w_stage(0); w_stage(1); w_stage(2)
    hiw = 2
    a(f"s_waitcnt vmcnt({8*hiw})")
    a("s_barrier")
    for k in range(2):
        w_stage(hiw + 1); hiw += 1
    for st in range(NS - 1):
        a(f"s_waitcnt vmcnt({8*(hiw-(st+1))})")
        a("s_barrier")
        for k in range(2):
            if hiw + 1 < NS and hiw + 1 <= st + D:
                w_stage(hiw + 1); hiw += 1
    a("s_lshr_b32 s43, s2, 3")
    a("s_lshl_b32 s43, s43, 1")
    a("s_add_u32 s43, s43, s53")
    if norm:
        srd(a, 56, 8, 9, WBYTES)
        a(f"s_mul_i32 s43, s43, {32*4096}")
        a("s_and_b32 s44, s2, 7")
        a("s_lshl_b32 s44, s44, 7")
        a("s_add_u32 s43, s43, s44")
        a("v_lshrrev_b32 v10, 3, v0")
        a("v_lshlrev_b32 v10, 12, v10")
        a("v_and_b32 v11, 7, v0")
        a("v_lshl_add_u32 v10, v11, 4, v10")
        for rg in range(4):
            for j in range(4):
                a(f"buffer_load_dwordx4 v[20:23], v10, s[56:59], s43 offen offset:{1024*j}")
            a(f"s_add_u32 s43, s43, {8*4096}")
    else:
        a("s_cmp_lg_u32 s99, 0")
        a(f"s_cbranch_scc1 L_{name}_nopf")
        srd(a, 56, 10, 11, 819200)
        a("s_mul_i32 s43, s43, 12800")
        for j in range(13):
            a(f"buffer_load_dwordx4 v[20:23], v3, s[56:59], s43 offen")
            a("s_add_u32 s43, s43, 1024")
        a.label(f"L_{name}_nopf")
    a("s_mov_b32 s32, s53")
    for k in range(2):
        code_prefetch(a, 4, 12, 20)
        a("s_add_u32 s32, s32, 2")
    a("s_barrier"); a("s_barrier")
    if not norm: a("s_barrier")
    a(f"s_branch L_{name}_end")
    a.label(f"L_{name}_fin")
    S.stamp(); S.real(); S.flush()
    a.label(f"L_{name}_end")
    a("s_endpgm")
    ll = lambda n: f"; @launch kernel={n} grid=({NWG},1,1) block=(768,1,1) lds={LDS}"
    if norm:
        k = (name, a.text(), kd(name, NV), ll(name))
        return k, k
    return (name, a.text(), kd(name, NV) + kd("mlp2_1_kernel", NV), ll(name)), ("mlp2_1_kernel", "", "", ll("mlp2_1_kernel"))

if "--stamps" in sys.argv:
    STAMPS = True; sys.argv.remove("--stamps")
KERNELS = []
QKV = gen_qkv()
ATT = gen_attn()
m = gen_mlp(1, 0); M1 = (m, m)
if os.environ.get("MLPA", "1") == "1":
    M2 = gen_mlpA(2)
else:
    M2 = (gen_mlp(2, 0), gen_mlp(2, 1))
for L in range(2):
    KERNELS += [QKV[L], ATT[L], M1[L], M2[L]]

def emit(kernels, path, order=None):
    launches = [k[3] for k in kernels] if order is None else order
    hdr = open("interleave_layers__grouped_kv_mqa__mixer_token_mlp__prompt.s.ref").read().split("; Override")[0]
    out = hdr + "\n".join(launches) + "\n"
    out += '.amdgcn_target "amdgcn-amd-amdhsa--gfx950"\n.text\n.p2align 8\nL_text_start:\n'
    seen = set()
    for k in kernels:
        if k[0] in seen: continue
        seen.add(k[0]); out += k[1]
    out += 'L_text_end:\n'
    out += '.section .rodata,"a"\n'
    seen = set()
    for k in kernels:
        if k[0] in seen: continue
        seen.add(k[0]); out += k[2]
    open(path, "w").write(out)

if __name__ == "__main__":
    emit(KERNELS, sys.argv[1] if len(sys.argv) > 1 else "k.s")
```

```python
import struct, sys, math, os

def f2u(x): return struct.unpack("<I", struct.pack("<f", x))[0]

QT_OFF   = 0
KV_OFF   = 0x300000
OF_OFF   = 0x400000
X1T_OFF  = 0x700000
ST_OFF   = 0xA00000
GF_OFF   = 0xB00000
X2_OFF   = 0xE00000
CNT_OFF  = 0xA80000
WS_SIZE  = 0x10000000
GDT = 56 * 1024
VHS = 352; VCS = 704
KVT = 1280 + 2 * VCS
XBYTES = 2048 * 640 * 2

class Asm:
    def __init__(self): self.l = []
    def __call__(self, s):
        for x in s.strip("\n").split("\n"):
            self.l.append("    " + x.strip())
    def label(self, n): self.l.append(n + ":")
    def raw(self, s): self.l.append(s)
    def text(self): return "\n".join(self.l) + "\n"

def vr(b, n=1): return f"v{b}" if n == 1 else f"v[{b}:{b+n-1}]"
def sr(b, n=1): return f"s{b}" if n == 1 else f"s[{b}:{b+n-1}]"

def srd(a, d, lo, hi, nbytes):
    a(f"s_mov_b32 s{d}, s{lo}")
    a(f"s_and_b32 s{d+1}, s{hi}, 0xffff")
    a(f"s_mov_b32 s{d+2}, {hex(nbytes)}")
    a(f"s_mov_b32 s{d+3}, 0x00020000")

def header(a, name):
    a.raw(f".globl {name}\n.p2align 8\n.type {name},@function\n{name}:")

def kd(name, nv, ns=102):
    acc = (nv + 3) // 4 * 4
    return f""".p2align 6
.amdhsa_kernel {name}
  .amdhsa_next_free_vgpr {nv}
  .amdhsa_next_free_sgpr {ns}
  .amdhsa_accum_offset {acc}
  .amdhsa_group_segment_fixed_size 0
  .amdhsa_kernarg_size 104
  .amdhsa_user_sgpr_count 2
  .amdhsa_user_sgpr_kernarg_segment_ptr 1
  .amdhsa_system_sgpr_workgroup_id_x 1
.end_amdhsa_kernel
"""

STAMPS = False
DBG_OFF = 0x8000000
class Stamper:
    def __init__(self, a, kidx, maxw): self.a = a; self.n = 0; self.kidx = kidx; self.maxw = maxw
    def stamp(self):
        if not STAMPS: return
        self.a(f"s_memtime s[{72+2*self.n}:{73+2*self.n}]"); self.n += 1
    def real(self):
        if not STAMPS: return
        self.a(f"s_memrealtime s[{72+2*self.n}:{73+2*self.n}]"); self.n += 1
    def flush(self, wave_s="s32", srd_="s[28:31]"):
        if not STAMPS: return
        a = self.a
        a("s_mov_b64 exec, -1")
        a("s_waitcnt lgkmcnt(0) vmcnt(0)")
        a(f"s_mul_i32 s58, s2, {self.maxw}")
        a(f"s_add_u32 s58, s58, {wave_s}")
        a("s_lshl_b32 s58, s58, 6")
        a(f"s_add_u32 s58, s58, {DBG_OFF + self.kidx * 0x100000}")
        a("v_mov_b32 v0, 0")
        for i in range(self.n):
            a(f"v_mov_b32 v1, s{72+2*i}")
            a(f"buffer_store_dword v1, v0, {srd_}, s58 offen offset:{4*i}")
        a("s_waitcnt vmcnt(0)")

_pfn = [0]
def code_prefetch(a, nw, vaddr, vdst):
    if os.environ.get("CODEPF", "1") != "1": return
    _pfn[0] += 1
    L = f"L_pc_ref{_pfn[0]}"
    a("s_getpc_b64 s[90:91]")
    a.label(L)
    a(f"s_sub_u32 s90, s90, {L} - L_text_start")
    a("s_subb_u32 s91, s91, 0")
    a("s_lshr_b32 s92, s2, 3")
    a(f"s_mul_i32 s92, s92, {nw}")
    a("s_add_u32 s92, s92, s32")
    a("s_lshl_b32 s92, s92, 9")
    a("s_min_u32 s92, s92, L_text_end - L_text_start - 512")
    a("s_add_u32 s90, s90, s92")
    a("s_addc_u32 s91, s91, 0")
    a(f"v_lshlrev_b32 v{vaddr}, 3, v0")
    a(f"global_load_dwordx2 v[{vdst}:{vdst+1}], v{vaddr}, s[90:91]")

def mfma16(a, d, x, y, c=None):
    c = vr(d, 4) if c is None else c
    a(f"v_mfma_f32_16x16x32_bf16 {vr(d,4)}, {vr(x,4)}, {vr(y,4)}, {c}")

def gen_qkv():
    name = "qkv0_kernel"
    a = Asm()
    header(a, "qkv1_kernel")
    a("s_mov_b32 s99, 1")
    a("s_branch L_qkv_body")
    header(a, name)
    a("s_mov_b32 s99, 0")
    a.label("L_qkv_body")
    WB = 0; WST = 20480
    XB = 61440; XST = 16384
    WKV = 110592
    MISC = 136192
    LDS = MISC + 512
    a(f"s_cmp_ge_u32 s2, 256")
    a(f"s_cbranch_scc1 L_{name}_end")
    S = Stamper(a, 0, 8); S.real(); S.stamp()
    a(f"s_load_dwordx4 s[4:7], s[0:1], 0")
    a(f"s_load_dwordx4 s[8:11], s[0:1], 16")
    a(f"s_load_dwordx2 s[12:13], s[0:1], 96")
    a("v_lshrrev_b32 v1, 6, v0")
    a("v_and_b32 v0, 63, v0")
    a("v_readfirstlane_b32 s32, v1")
    a("s_and_b32 s33, s2, 7")
    a("s_lshr_b32 s34, s2, 3")
    a("s_and_b32 s34, s34, 3")
    a("s_lshl_b32 s34, s34, 3")
    a("s_add_u32 s33, s33, s34")
    a("s_lshr_b32 s34, s2, 5")
    a("s_movk_i32 s38, 1280")
    a("s_cmp_ge_u32 s32, 4")
    a(f"s_cbranch_scc1 L_{name}_p0")
    a("v_and_b32 v1, 15, v0")
    a("v_lshrrev_b32 v2, 4, v0")
    a("s_lshl_b32 s42, s32, 12")
    a("v_lshrrev_b32 v10, 1, v1")
    a("v_and_b32 v10, 7, v10")
    a("v_lshrrev_b32 v11, 1, v2")
    a("v_and_b32 v12, 1, v2")
    a("v_lshlrev_b32 v13, 7, v1")
    a("v_lshl_add_u32 v13, v12, 3, v13")
    a("v_add_u32 v13, s42, v13")
    a(f"v_add_u32 v13, {XB}, v13")
    for h in range(2):
        for sec in range(2):
            a(f"v_add_u32 v15, {4*h + 2*sec}, v11")
            a("v_xor_b32 v15, v15, v10")
            a(f"v_lshl_add_u32 v{16 + 2*h + sec}, v15, 4, v13")
    a("v_lshrrev_b32 v10, 2, v1")
    a("v_lshl_add_u32 v10, v2, 2, v10")
    a("v_and_b32 v11, 3, v1")
    a("v_lshlrev_b32 v11, 3, v11")
    a("v_mul_u32_u24 v12, 160, v10")
    a("v_add_u32 v20, v12, v11")
    a("s_lshl_b32 s43, s32, 5")
    a("v_add_u32 v21, s43, v20")
    a("v_mul_u32_u24 v12, 40, v10")
    a("v_add_u32 v12, v12, v11")
    a(f"v_add_u32 v22, {WKV}, v12")
    ONES = 24
    ACC = 28
    CS4 = 56; CS5 = 60; CS6 = 64; CSO = 68; RS = 72; GR = 76
    FR = 80
    for r in range(4): a(f"v_mov_b32 v{ONES+r}, 0x3f803f80")
    for r in range(ACC, 80): a(f"v_mov_b32 v{r}, 0")
    a("s_waitcnt lgkmcnt(0)")
    srd(a, 28, 12, 13, WS_SIZE)
    a("s_cmp_ge_u32 s34, 2")
    a(f"s_cbranch_scc1 L_{name}_nokv")
    a("s_cmp_eq_u32 s34, 0")
    a("s_cselect_b32 s14, s8, s10")
    a("s_cselect_b32 s15, s9, s11")
    srd(a, 24, 14, 15, 25600)
    a("v_lshlrev_b32 v14, 4, v0")
    a("s_lshl_b32 s43, s32, 10")
    a.label(f"L_{name}_kvl")
    a(f"s_add_u32 s44, s43, {WKV}")
    a("s_mov_b32 m0, s44")
    a("s_nop 0")
    a("buffer_load_dwordx4 v14, s[24:27], s43 offen lds")
    a("s_add_u32 s43, s43, 4096")
    a("s_cmp_lt_u32 s43, 25600")
    a(f"s_cbranch_scc1 L_{name}_kvl")
    a("s_waitcnt vmcnt(0)")
    a.label(f"L_{name}_nokv")
    a("s_cmp_lt_u32 s34, 2")
    a("s_cselect_b64 vcc, -1, 0")
    a("s_mov_b32 s41, 0")
    a(f"s_mov_b32 s46, {XST}")
    a(f"s_mov_b32 s47, {WST}")
    def reads(ks4, fs):
        b = FR + 36 * fs
        kb = ks4 // 2; h = ks4 % 2
        a(f"ds_read_b64 {vr(b,2)}, v{16+2*h} offset:{kb*2048}")
        a(f"ds_read_b64 {vr(b+2,2)}, v{17+2*h} offset:{kb*2048}")
        for nt in range(5):
            for half in range(2):
                off = (32 * ks4 + 16 * half) * 160 + 32 * nt
                a(f"ds_read_b64_tr_b16 {vr(b+4+4*nt+2*half,2)}, v20 offset:{off}")
        for half in range(2):
            a(f"ds_read_b64_tr_b16 {vr(b+32+2*half,2)}, v21 offset:{(32 * ks4 + 16 * half) * 160}")
    def kvreads(ks4, fs):
        b = FR + 36 * fs
        for t in range(2):
            for half in range(2):
                a(f"ds_read_b64_tr_b16 {vr(b+24+4*t+2*half,2)}, v22 offset:{(32 * ks4 + 16 * half) * 40 + 32 * t}")
    a.label(f"L_{name}_stage")
    a("s_barrier")
    reads(0, 0)
    a(f"s_cbranch_vccz L_{name}_k0")
    kvreads(0, 0)
    a.label(f"L_{name}_k0")
    for ks4 in range(4):
        fs = ks4 % 2; b = FR + 36 * fs
        a("s_waitcnt lgkmcnt(0)")
        if ks4 < 3: reads(ks4 + 1, 1 - fs)
        for nt in range(5): mfma16(a, ACC + 4 * nt, b + 4 + 4 * nt, b)
        mfma16(a, CS4, b + 4 + 16, ONES)
        mfma16(a, CSO, b + 32, ONES)
        mfma16(a, RS, ONES, b)
        mfma16(a, GR, b, b)
        a(f"s_cbranch_vccz L_{name}_k{ks4+1}")
        if ks4 < 3: kvreads(ks4 + 1, 1 - fs)
        mfma16(a, ACC + 20, b + 24, b)
        mfma16(a, ACC + 24, b + 28, b)
        mfma16(a, CS5, b + 24, ONES)
        mfma16(a, CS6, b + 28, ONES)
        a.label(f"L_{name}_k{ks4+1}")
    a("s_cmp_eq_u32 s41, 2")
    a(f"s_cselect_b32 s43, {(-2*XST) & 0xffffffff}, s46")
    a(f"s_cselect_b32 s44, {(-2*WST) & 0xffffffff}, s47")
    for r in range(4): a(f"v_add_u32 v{16+r}, s43, v{16+r}")
    a("v_add_u32 v20, s44, v20")
    a("v_add_u32 v21, s44, v21")
    a(f"v_add_u32 v22, {128*40}, v22")
    a("s_add_u32 s41, s41, 1")
    a("s_cmp_lt_u32 s41, 5")
    a(f"s_cbranch_scc1 L_{name}_stage")
    a(f"s_branch L_{name}_epi")
    a.label(f"L_{name}_p0")
    a("s_sub_u32 s32, s32, 4")
    a("s_mul_i32 s36, s34, 160")
    a("s_mov_b32 s37, 6554")
    for r in range(5):
        a(f"v_add_u32 v10, {64*r}, v0")
        a("v_mul_lo_u32 v11, v10, s37")
        a("v_lshrrev_b32 v11, 16, v11")
        a("v_mul_u32_u24 v12, 10, v11")
        a("v_sub_u32 v12, v10, v12")
        a("v_mul_lo_u32 v11, v11, s38")
        a("v_lshl_add_u32 v11, v12, 4, v11")
        a(f"v_add_u32 v11, s36, v11")
        a(f"v_subrev_u32 v{4+r}, {1024*(r%4)}, v11")
    a("v_lshrrev_b32 v10, 3, v0")
    a("v_and_b32 v11, 7, v0")
    for rh in range(2):
        a(f"v_add_u32 v12, {8*rh}, v10")
        a("v_lshrrev_b32 v13, 1, v12")
        a("v_and_b32 v13, 7, v13")
        a("v_xor_b32 v13, v13, v11")
        a("v_mul_lo_u32 v12, v12, s38")
        a(f"v_lshl_add_u32 v12, v13, 4, v12")
        for kb in range(2):
            a(f"v_add_u32 v{16+2*kb+rh}, {(kb*128 - kb*2048 - rh*1024 + 4096)}, v12")
    a(f"s_mul_i32 s40, s32, {32*1280}")
    a("s_mul_i32 s41, s32, 5120")
    a("s_mul_i32 s42, s33, 81920")
    a(f"s_mul_i32 s43, s32, {16*1280}")
    a("s_add_u32 s42, s42, s43")
    a("s_lshl_b32 s43, s32, 12")
    a(f"s_add_u32 s43, s43, {XB}")
    a("s_waitcnt lgkmcnt(0)")
    srd(a, 20, 6, 7, 819200)
    a(f"s_add_u32 s14, s12, {hex(X2_OFF)}")
    a("s_addc_u32 s15, s13, 0")
    a("s_cmp_eq_u32 s99, 0")
    a("s_cselect_b32 s4, s4, s14")
    a("s_cselect_b32 s5, s5, s15")
    a("s_sub_u32 s4, s4, 4096")
    a("s_subb_u32 s5, s5, 0")
    srd(a, 16, 4, 5, XBYTES + 4096)
    def p_stage():
        a("s_mov_b32 m0, s43")
        a("s_add_u32 s45, s41, 4096")
        for kb in range(2):
            for rh in range(2):
                a(f"buffer_load_dwordx4 v{16+2*kb+rh}, s[16:19], s42 offen offset:{kb*2048+rh*1024} lds")
        a("s_mov_b32 m0, s41")
        a("s_add_u32 s42, s42, 256")
        for r in range(4):
            a(f"buffer_load_dwordx4 v{4+r}, s[20:23], s40 offen offset:{1024*r} lds")
        a("s_mov_b32 m0, s45")
        a(f"s_add_u32 s41, s41, {WST}")
        a("buffer_load_dwordx4 v8, s[20:23], s40 offen lds")
        a(f"s_add_u32 s40, s40, {128*1280}")
        a(f"s_add_u32 s43, s43, {XST}")
    p_stage()
    a("s_cmp_lg_u32 s99, 0")
    a(f"s_cbranch_scc1 L_{name}_ncp")
    code_prefetch(a, 4, 20, 22)
    a.label(f"L_{name}_ncp")
    p_stage(); p_stage()
    a(f"s_sub_u32 s41, s41, {3*WST}")
    a(f"s_sub_u32 s43, s43, {3*XST}")
    a("s_waitcnt vmcnt(18)"); a("s_barrier")
    a("s_waitcnt vmcnt(9)"); a("s_barrier")
    p_stage()
    a("s_waitcnt vmcnt(9)"); a("s_barrier")
    p_stage()
    a("s_waitcnt vmcnt(9)"); a("s_barrier")
    a("s_waitcnt vmcnt(0)"); a("s_barrier")
    a("s_barrier")
    a(f"s_branch L_{name}_end")
    a.label(f"L_{name}_epi")
    S.stamp()
    a("s_nop 7")
    a("s_nop 7")
    a("v_lshlrev_b32 v10, 4, v2")
    a("s_lshl_b32 s43, s32, 6")
    a(f"s_add_u32 s43, s43, {MISC}")
    a("v_add_u32 v11, s43, v10")
    a("v_cmp_eq_u32 vcc, 0, v1")
    a("s_and_saveexec_b64 s[46:47], vcc")
    a(f"ds_write_b128 v11, {vr(CSO,4)}")
    a("s_mov_b64 exec, s[46:47]")
    a("v_and_b32 v12, 3, v1")
    a(f"v_mov_b32 v13, v{GR}")
    for r in range(1, 4):
        a(f"v_cmp_eq_u32 vcc, {r}, v12")
        a("s_nop 1")
        a(f"v_cndmask_b32 v13, v13, v{GR+r}, vcc")
    a("v_lshrrev_b32 v12, 2, v1")
    a("v_lshl_add_u32 v12, v12, 4, v1")
    a("v_lshlrev_b32 v12, 2, v12")
    a("ds_bpermute_b32 v13, v12, v13")
    a("s_waitcnt lgkmcnt(0)")
    a("s_barrier")
    a(f"v_add_u32 v11, {MISC}, v10")
    CSX = FR
    for nt in range(4): a(f"ds_read_b128 {vr(CSX+4*nt,4)}, v11 offset:{64*nt}")
    a(f"s_mov_b32 s43, {hex(f2u(1.0/640))}")
    a(f"v_mul_f32 v14, s43, v{RS}")
    a("v_mul_f32 v13, s43, v13")
    a("v_fma_f32 v13, -v14, v14, v13")
    a("v_max_f32 v13, 0, v13")
    a(f"v_add_f32 v13, {hex(f2u(1e-5))}, v13")
    a("v_rsq_f32 v15, v13")
    a("s_nop 0")
    qs = (20 ** -0.5) * math.log2(math.e)
    a(f"v_mul_f32 v23, {hex(f2u(qs))}, v15")
    a("s_waitcnt lgkmcnt(0)")
    a("s_lshl_b32 s43, s33, 2")
    a("s_add_u32 s43, s43, s32")
    a("s_mul_i32 s44, s43, 20480")
    a("s_mul_i32 s45, s34, 2560")
    a("s_add_u32 s44, s44, s45")
    a(f"s_add_u32 s44, s44, {QT_OFF}")
    a("v_lshlrev_b32 v10, 3, v0")
    T = FR + 16
    for nt in range(5):
        cs = CSX + 4 * nt if nt < 4 else CS4
        for r in range(4):
            a(f"v_fma_f32 v{T+r}, -v14, v{cs+r}, v{ACC+4*nt+r}")
            a(f"v_mul_f32 v{T+r}, v23, v{T+r}")
        a(f"v_cvt_pk_bf16_f32 v{T+4+2*nt}, v{T}, v{T+1}")
        a(f"v_cvt_pk_bf16_f32 v{T+5+2*nt}, v{T+2}, v{T+3}")
        a(f"buffer_store_dwordx2 {vr(T+4+2*nt,2)}, v10, s[28:31], s44 offen offset:{512*nt}")
    a("s_cmp_lg_u32 s32, 0")
    a(f"s_cbranch_scc1 L_{name}_nozero")
    a("v_cmp_gt_u32 vcc, 16, v0")
    a("s_and_saveexec_b64 s[46:47], vcc")
    a("v_mov_b32 v11, 0")
    a("v_lshlrev_b32 v12, 2, v0")
    a("s_lshl_b32 s45, s2, 6")
    a(f"s_add_u32 s45, s45, {ST_OFF}")
    a("buffer_store_dword v11, v12, s[28:31], s45 offen")
    a("s_and_b32 s45, s2, 63")
    a("s_lshl_b32 s45, s45, 8")
    a(f"s_add_u32 s45, s45, {CNT_OFF}")
    a("buffer_store_dword v11, v12, s[28:31], s45 offen")
    a("s_mov_b64 exec, s[46:47]")
    a.label(f"L_{name}_nozero")
    a("s_cmp_ge_u32 s34, 2")
    a(f"s_cbranch_scc1 L_{name}_fin")
    for t, cs in ((0, CS5), (1, CS6)):
        for r in range(4):
            a(f"v_fma_f32 v{T+4*t+r}, -v14, v{cs+r}, v{ACC+20+4*t+r}")
            a(f"v_mul_f32 v{T+4*t+r}, v15, v{T+4*t+r}")
    a("s_lshl_b32 s43, s33, 1")
    a("s_lshr_b32 s44, s32, 1")
    a("s_add_u32 s43, s43, s44")
    a(f"s_mul_i32 s43, s43, {KVT}")
    a(f"s_add_u32 s43, s43, {KV_OFF}")
    a("s_and_b32 s44, s32, 1")
    a("s_cmp_lg_u32 s34, 0")
    a(f"s_cbranch_scc1 L_{name}_vstore")
    a(f"v_cvt_pk_bf16_f32 v{T+8}, v{T}, v{T+1}")
    a(f"v_cvt_pk_bf16_f32 v{T+9}, v{T+2}, v{T+3}")
    a(f"v_cvt_pk_bf16_f32 v{T+10}, v{T+4}, v{T+5}")
    a(f"v_cvt_pk_bf16_f32 v{T+11}, v{T+6}, v{T+7}")
    a("s_lshl_b32 s45, s44, 4")
    a("v_add_u32 v10, s45, v1")
    a("v_lshrrev_b32 v11, 1, v2")
    a("v_lshlrev_b32 v11, 9, v11")
    a("v_lshl_add_u32 v11, v10, 4, v11")
    a("v_and_b32 v12, 1, v2")
    a("v_lshl_add_u32 v11, v12, 3, v11")
    a(f"buffer_store_dwordx2 {vr(T+8,2)}, v11, s[28:31], s43 offen")
    a("v_lshlrev_b32 v11, 2, v10")
    a("v_cmp_eq_u32 vcc, 0, v2")
    a("s_and_saveexec_b64 s[46:47], vcc")
    a(f"buffer_store_dword v{T+10}, v11, s[28:31], s43 offen offset:1024")
    a(f"buffer_store_dword v{T+11}, v11, s[28:31], s43 offen offset:1152")
    a("s_mov_b64 exec, s[46:47]")
    a(f"s_branch L_{name}_fin")
    a.label(f"L_{name}_vstore")
    for r in range(8): a(f"v_cvt_pk_bf16_f32 v{T+8+r}, v{T+r}, v{T+r}")
    a(f"s_mul_i32 s45, s44, {VCS}")
    a("s_add_u32 s43, s43, s45")
    a("v_lshrrev_b32 v10, 3, v1")
    a("v_lshlrev_b32 v10, 2, v10")
    a("v_and_b32 v11, 3, v1")
    a("v_add_u32 v10, v10, v11")
    a("v_lshlrev_b32 v10, 1, v10")
    a("v_bfe_u32 v11, v1, 2, 1")
    a(f"v_mul_u32_u24 v11, {VHS}, v11")
    a("v_add_u32 v10, v10, v11")
    a("v_lshl_add_u32 v11, v2, 6, v10")
    for r in range(4):
        a(f"buffer_store_short v{T+8+r}, v11, s[28:31], s43 offen offset:{1280 + 16*r}")
    a("v_cmp_eq_u32 vcc, 0, v2")
    a("s_and_saveexec_b64 s[46:47], vcc")
    for r in range(4):
        a(f"buffer_store_short v{T+12+r}, v10, s[28:31], s43 offen offset:{1280 + 16*(16+r)}")
    a(f"buffer_store_short v{ONES}, v10, s[28:31], s43 offen offset:{1280 + 16*20}")
    a("v_mov_b32 v11, 0")
    a(f"buffer_store_short v11, v10, s[28:31], s43 offen offset:{1280 + 16*21}")
    a("s_mov_b64 exec, s[46:47]")
    a.label(f"L_{name}_fin")
    S.stamp(); S.real(); S.flush()
    a.label(f"L_{name}_end")
    a("s_endpgm")
    ll = lambda n: f"; @launch kernel={n} grid=(256,1,1) block=(512,1,1) lds={LDS}"
    return (name, a.text(), kd(name, 160) + kd("qkv1_kernel", 160), ll(name)), ("qkv1_kernel", "", "", ll("qkv1_kernel"))

def mfma32(a, d, x, y, c=None):
    c = vr(d, 16) if c is None else c
    a(f"v_mfma_f32_32x32x16_bf16 {vr(d,16)}, {vr(x,4)}, {vr(y,4)}, {c}")

def gen_attn():
    name = "attn0_kernel"
    a = Asm()
    header(a, "attn1_kernel")
    a("s_mov_b32 s99, 1")
    a("s_branch L_attn_body")
    header(a, name)
    a("s_mov_b32 s99, 0")
    a.label("L_attn_body")
    NLT = 60
    CH = 16 * KVT
    QL = 56 * KVT
    QMAX = (NLT * KVT + 1023) // 1024 - 1
    LDS = (QMAX + 1) * 1024
    QF1 = 8; QF2 = 12; NEGM = 16; S_ = [32, 48]; O = 64; P = [80, 88]
    KB = [96, 104]
    VB = [112, 120]
    AC = 128
    VOFF = 134; K2OFF = 135; PFO = 136; DUM = 140
    RT = 144
    WA = RT + 64
    NV = WA + 8
    RES = 102400; RED = RES + 10240
    OST = 113664
    a(f"s_cmp_ge_u32 s2, 256")
    a(f"s_cbranch_scc1 L_{name}_end")
    S = Stamper(a, 1, 8); S.real(); S.stamp()
    a(f"s_load_dwordx2 s[12:13], s[0:1], 96")
    a("s_load_dwordx2 s[14:15], s[0:1], 32")
    a("s_load_dwordx2 s[16:17], s[0:1], 48")
    a("v_lshrrev_b32 v1, 6, v0")
    a("v_and_b32 v0, 63, v0")
    a("v_readfirstlane_b32 s32, v1")
    a("s_and_b32 s33, s2, 7")
    a("s_lshr_b32 s34, s2, 3")
    a("s_and_b32 s34, s34, 3")
    a("s_lshl_b32 s34, s34, 3")
    a("s_add_u32 s33, s33, s34")
    a("s_lshl_b32 s33, s33, 6")
    a("s_lshr_b32 s34, s2, 5")
    a("s_lshl_b32 s34, s34, 3")
    a("s_add_u32 s33, s33, s34")
    a("v_lshlrev_b32 v3, 4, v0")
    a("v_lshrrev_b32 v4, 2, v0")
    a("v_lshlrev_b32 v4, 7, v4")
    a("v_and_b32 v5, 3, v0")
    a("v_lshl_add_u32 v4, v5, 4, v4")
    a("s_lshr_b32 s34, s33, 4")
    a("s_mul_i32 s34, s34, 20480")
    a("s_and_b32 s35, s33, 15")
    a("s_lshl_b32 s36, s35, 3")
    a("s_add_u32 s34, s34, s36")
    a(f"s_add_u32 s34, s34, {QT_OFF}")
    a("s_lshl_b32 s36, s32, 11")
    a("s_add_u32 s36, s36, s34")
    a("s_lshl_b32 s37, s32, 10")
    a(f"s_add_u32 s37, s37, {QL}")
    a("s_lshl_b32 s50, s32, 10")
    a("s_waitcnt lgkmcnt(0)")
    srd(a, 28, 12, 13, WS_SIZE)
    a("s_mov_b32 m0, s37")
    a("s_add_u32 s33, s33, s32")
    a("buffer_load_dwordx4 v4, s[28:31], s36 offen lds")
    a("s_cmp_ge_u32 s32, 2")
    a(f"s_cbranch_scc1 L_{name}_q1")
    a("s_add_u32 s37, s37, 8192")
    a("s_mov_b32 m0, s37")
    a("s_add_u32 s36, s36, 16384")
    a("buffer_load_dwordx4 v4, s[28:31], s36 offen lds")
    a.label(f"L_{name}_q1")
    a("s_mov_b32 s40, 0")
    def dma_piece():
        a(f"s_min_u32 s43, s50, {QMAX*1024}")
        a("s_mov_b32 m0, s43")
        a(f"s_add_u32 s43, s43, {KV_OFF}")
        a("buffer_load_dwordx4 v3, s[28:31], s43 offen lds")
        a("s_add_u32 s50, s50, 8192")
    for i in range(6): dma_piece()
    a("s_and_b32 s35, s33, 15")
    srd(a, 20, 14, 15, 819200)
    srd(a, 24, 16, 17, 2048*1728*2)
    a("s_lshr_b32 s54, s2, 3")
    a("s_lshl_b32 s54, s54, 3")
    a("s_add_u32 s54, s54, s32")
    a("s_mul_i32 s55, s54, 3200")
    a("s_and_b32 s56, s2, 7")
    a("s_mul_i32 s56, s56, 27")
    a("s_lshr_b32 s56, s56, 3")
    a("s_lshl_b32 s56, s56, 7")
    a(f"s_mul_i32 s57, s54, {8*3456}")
    a("s_add_u32 s56, s56, s57")
    a("v_lshrrev_b32 v4, 3, v0")
    a("v_mul_u32_u24 v4, 3456, v4")
    a("v_and_b32 v5, 7, v0")
    a(f"v_lshl_add_u32 v{PFO}, v5, 4, v4")
    a("v_and_b32 v1, 31, v0")
    a("v_lshrrev_b32 v2, 5, v0")
    for r in range(1, 4): a(f"v_mov_b32 v{QF2+r}, 0")
    for kb in KB + [RT + 16 * j for j in range(4)]:
        for r in range(5, 8): a(f"v_mov_b32 v{kb+r}, 0")
    a("v_min_u32 v4, 21, v1")
    a("v_lshlrev_b32 v4, 4, v4")
    a(f"v_mul_u32_u24 v5, {VHS}, v2")
    a("v_add_u32 v4, v4, v5")
    a(f"v_add_u32 v{VOFF}, 1280, v4")
    a(f"v_lshlrev_b32 v{K2OFF}, 2, v0")
    a(f"v_add_u32 v{K2OFF}, 1024, v{K2OFF}")
    a("v_mul_u32_u24 v4, 5, v1")
    a("v_lshl_add_u32 v5, v2, 1, v4")
    a("v_lshlrev_b32 v5, 6, v5")
    a("s_lshl_b32 s36, s32, 3")
    a(f"s_add_u32 s36, s36, {QL}")
    a("v_add_u32 v5, s36, v5")
    a("v_add_u32 v6, 4, v4")
    a("v_lshlrev_b32 v6, 6, v6")
    a("v_lshl_add_u32 v6, v2, 2, v6")
    a("v_add_u32 v6, s36, v6")
    a("s_waitcnt vmcnt(4) lgkmcnt(0)")
    a("s_barrier")
    a(f"ds_read_b64 {vr(QF1,2)}, v5")
    a(f"ds_read_b64 {vr(QF1+2,2)}, v5 offset:64")
    a(f"ds_read_b32 v{QF2}, v6")
    a(f"ds_read_b128 {vr(KB[0],4)}, v3")
    a(f"ds_read_b32 v{KB[0]+4}, v{K2OFF}")
    a("s_waitcnt lgkmcnt(0)")
    mfma32(a, S_[0], KB[0], QF1, "0")
    mfma32(a, S_[0], KB[0] + 4, QF2)
    a("s_nop 15")
    a("s_nop 3")
    a(f"v_max_f32 v7, v{S_[0]}, v{S_[0]+1}")
    for r in range(2, 16, 2): a(f"v_max3_f32 v7, v7, v{S_[0]+r}, v{S_[0]+r+1}")
    a.label(f"L_{name}_havemax")
    S.stamp()
    a("v_mov_b32 v4, v7")
    a("v_mov_b32 v5, v7")
    a("s_nop 1")
    a("v_permlane32_swap_b32 v4, v5")
    a("s_nop 1")
    a("v_max_f32 v7, v4, v5")
    a("v_sub_f32 v7, 0, v7")
    for r in range(16): a(f"v_mov_b32 v{NEGM+r}, v7")
    for r in range(16): a(f"v_mov_b32 v{O+r}, 0")
    for r in range(8): a(f"v_mov_b32 v{P[1]+r}, 0")
    for r in range(8): a(f"v_mov_b32 v{VB[1]+r}, 0")
    a(f"v_mov_b32 v{AC}, v3"); a(f"v_mov_b32 v{AC+1}, v{K2OFF}"); a(f"v_mov_b32 v{AC+2}, v{VOFF}")
    a(f"ds_read_b128 {vr(KB[0],4)}, v{AC}")
    a(f"ds_read_b32 v{KB[0]+4}, v{AC+1}")
    a(f"ds_read_b128 {vr(KB[1],4)}, v{AC} offset:{KVT}")
    a(f"ds_read_b32 v{KB[1]+4}, v{AC+1} offset:{KVT}")
    a("s_waitcnt lgkmcnt(2)")
    mfma32(a, S_[0], KB[0], QF1, vr(NEGM, 16))
    mfma32(a, S_[0], KB[0] + 4, QF2)
    a("s_mov_b32 s41, 0")
    a("s_mov_b32 s42, 0")
    PON = int(os.environ.get("PON", "0")); POFF = int(os.environ.get("POFF", "12"))
    def wgroup(srd_, soff, ldsb):
        a(f"s_mov_b32 m0, {ldsb}")
        a(f"s_add_u32 s45, {ldsb}, 4096")
        for r in range(4):
            a(f"buffer_load_dwordx4 v{WA+r}, {srd_}, {soff} offen offset:{1024*r} lds")
        a("s_mov_b32 m0, s45")
        a("s_nop 0")
        a(f"buffer_load_dwordx4 v{WA+4}, {srd_}, {soff} offen lds")
    def body(t, last):
        sc = S_[t % 2]; sn = S_[(t + 1) % 2]
        kl = KB[t % 2]; vl = VB[t % 2]
        pp = P[(t + 1) % 2]; pc = P[t % 2]
        gt = 48 + t if last else None
        kn = KB[(t + 1) % 2] if not (last and gt + 1 >= NLT) else RT + 16 * (gt + 1 - NLT)
        vp = VB[(t + 1) % 2] if not (last and gt - 1 >= NLT) else RT + 16 * (gt - 1 - NLT) + 8
        tag = "L" if last else ""
        if not last:
            if t == 4:
                a("s_cmp_lg_u32 s41, 0")
                a(f"s_cbranch_scc1 L_{name}_nb4")
                a("s_waitcnt vmcnt(4)")
                a("s_barrier")
                a.label(f"L_{name}_nb4")
            if t == 14:
                a("s_cmp_lg_u32 s41, 0")
                a(f"s_cbranch_scc1 L_{name}_nb14")
                a("s_waitcnt vmcnt(0)")
                a("s_barrier")
                a.label(f"L_{name}_nb14")
            if t in (0, 5, 8, 11):
                a("s_cmp_lg_u32 s41, 0")
                a(f"s_cbranch_scc1 L_{name}_sk{t}")
                for i in range(4 if t < 11 else 2): dma_piece()
                a.label(f"L_{name}_sk{t}")
            if t in (2, 9):
                a("s_cmp_lg_u32 s41, 1")
                a(f"s_cbranch_scc1 L_{name}_pf{t}")
                if t == 2:
                    for j in range(4):
                        a(f"s_mov_b32 s43, {KV_OFF + (NLT+j)*KVT}")
                        a(f"buffer_load_dwordx4 {vr(RT+16*j,4)}, v3, s[28:31], s43 offen")
                        a(f"buffer_load_dword v{RT+16*j+4}, v{K2OFF}, s[28:31], s43 offen")
                        a(f"buffer_load_dwordx4 {vr(RT+16*j+8,4)}, v{VOFF}, s[28:31], s43 offen")
                        a(f"buffer_load_dwordx4 {vr(RT+16*j+12,4)}, v{VOFF}, s[28:31], s43 offen offset:{VCS}")
                else:
                    for k in range(4):
                        a(f"buffer_load_dwordx4 {vr(DUM,4)}, v3, s[20:23], s55 offen offset:{min(k*1024, 3200-1024)}")
                    for k in range(5):
                        a(f"buffer_load_dwordx4 {vr(DUM,4)}, v{PFO}, s[24:27], s56 offen offset:{k*128}")
                    code_prefetch(a, 8, PFO + 1, DUM)
                a.label(f"L_{name}_pf{t}")
        if last and t in (1, 5):
            wgroup("s[20:23]", "s60", "s61")
            a(f"s_add_u32 s60, s60, {8*32*1280}")
            a(f"s_add_u32 s61, s61, {8*5120}")
        if last and t == 9:
            a("s_cmp_ge_u32 s32, 4")
            a(f"s_cbranch_scc1 L_{name}_w3")
            wgroup("s[20:23]", "s60", "s61")
            a(f"s_branch L_{name}_w4")
            a.label(f"L_{name}_w3")
            a("s_cmp_ge_u32 s32, 6")
            a(f"s_cbranch_scc1 L_{name}_w4")
            a("s_sub_u32 s43, s32, 4")
            a(f"s_mul_i32 s60, s43, {32*1280}")
            a("s_mul_i32 s44, s58, 81920")
            a("s_add_u32 s60, s60, s44")
            a("s_mul_i32 s61, s43, 5120")
            a(f"s_add_u32 s61, s61, {RES}")
            wgroup("s[16:19]", "s60", "s61")
            a.label(f"L_{name}_w4")
        if t == PON:
            a("s_cmp_lt_u32 s32, 4")
            a(f"s_cbranch_scc1 L_{name}_np{tag}")
            a("s_setprio 1")
            a.label(f"L_{name}_np{tag}")
        if t == POFF: a("s_setprio 0")
        a("s_waitcnt lgkmcnt(0)")
        ldk = not (last and gt + 2 >= NLT)
        ldv = not (last and gt >= NLT)
        dos = not (last and t == 15)
        if dos: mfma32(a, sn, kn, QF1, vr(NEGM, 16))
        if ldk:
            a(f"ds_read_b128 {vr(kl,4)}, v{AC} offset:{(t+2)*KVT}")
            a(f"ds_read_b32 v{kl+4}, v{AC+1} offset:{(t+2)*KVT}")
        for r in range(0, 4): a(f"v_exp_f32 v{sc+r}, v{sc+r}")
        mfma32(a, O, vp, pp)
        if ldv:
            a(f"ds_read_b128 {vr(vl,4)}, v{AC+2} offset:{t*KVT}")
            a(f"ds_read_b128 {vr(vl+4,4)}, v{AC+2} offset:{t*KVT+VCS}")
        for r in range(4, 8): a(f"v_exp_f32 v{sc+r}, v{sc+r}")
        for r in range(4): a(f"v_cvt_pk_bf16_f32 v{pc+r}, v{sc+2*r}, v{sc+2*r+1}")
        if dos: mfma32(a, sn, kn + 4, QF2)
        for r in range(8, 12): a(f"v_exp_f32 v{sc+r}, v{sc+r}")
        mfma32(a, O, vp + 4, pp + 4)
        for r in range(12, 16): a(f"v_exp_f32 v{sc+r}, v{sc+r}")
        for r in range(4): a(f"v_cvt_pk_bf16_f32 v{pc+4+r}, v{sc+8+2*r}, v{sc+8+2*r+1}")
    a.label(f"L_{name}_chunk")
    for t in range(16): body(t, False)
    for r in range(3): a(f"v_add_u32 v{AC+r}, {CH}, v{AC+r}")
    a("s_add_u32 s41, s41, 1")
    a("s_add_u32 s42, s42, 1")
    a("s_cmp_lt_u32 s42, 3")
    a(f"s_cbranch_scc1 L_{name}_chunk")
    a("s_load_dwordx2 s[4:5], s[0:1], 0")
    a("s_lshr_b32 s58, s33, 6")
    a("s_lshr_b32 s59, s2, 5")
    a("s_mul_i32 s36, s59, 160")
    a("s_mov_b32 s37, 6554")
    a("s_movk_i32 s38, 1280")
    for r in range(5):
        a(f"v_add_u32 v4, {64*r}, v0")
        a("v_mul_lo_u32 v5, v4, s37")
        a("v_lshrrev_b32 v5, 16, v5")
        a("v_mul_u32_u24 v6, 10, v5")
        a("v_sub_u32 v6, v4, v6")
        a("v_mul_lo_u32 v5, v5, s38")
        a("v_lshl_add_u32 v5, v6, 4, v5")
        a(f"v_add_u32 v5, s36, v5")
        a(f"v_subrev_u32 v{WA+r}, {1024*(r%4)}, v5")
    a("s_waitcnt vmcnt(0) lgkmcnt(0)")
    a(f"s_add_u32 s8, s12, {hex(X2_OFF)}")
    a("s_addc_u32 s9, s13, 0")
    a("s_cmp_eq_u32 s99, 0")
    a("s_cselect_b32 s4, s4, s8")
    a("s_cselect_b32 s5, s5, s9")
    srd(a, 16, 4, 5, XBYTES)
    a(f"s_mul_i32 s60, s32, {32*1280}")
    a("s_mul_i32 s61, s32, 5120")
    a("s_barrier")
    for t in range(16): body(t, True)
    a("s_setprio 0")
    a("s_nop 1")
    mfma32(a, O, RT + 48 + 8, P[1])
    mfma32(a, O, RT + 48 + 12, P[1] + 4)
    S.stamp()
    a.label(f"L_{name}_check")
    a("s_nop 15")
    a("s_nop 3")
    a(f"v_mov_b32 v4, v{O+8}")
    a(f"v_mov_b32 v5, v{O+8}")
    a("s_nop 1")
    a("v_permlane32_swap_b32 v4, v5")
    a("v_mov_b32 v6, 0")
    for r in range(12): a(f"v_fma_f32 v6, v{O+r}, 0, v6")
    a(f"v_fma_f32 v6, v5, 0, v6")
    a(f"s_mov_b32 s43, {hex(f2u(2.0**100))}")
    a("v_cmp_neq_f32 vcc, 0, v6")
    a("v_cmp_nlt_f32 s[46:47], v5, s43")
    a("s_or_b64 vcc, vcc, s[46:47]")
    a("s_cmp_lg_u32 s40, 0")
    a(f"s_cbranch_scc1 L_{name}_store")
    a(f"s_cbranch_vccz L_{name}_store")
    a("s_mov_b32 s40, 1")
    a(f"s_branch L_{name}_restart")
    a.label(f"L_{name}_store")
    a("v_rcp_f32 v5, v5")
    a("s_nop 0")
    for r in range(12): a(f"v_mul_f32 v{O+r}, v5, v{O+r}")
    for r in range(6): a(f"v_cvt_pk_bf16_f32 v{S_[0]+r}, v{O+2*r}, v{O+2*r+1}")
    a("v_mul_u32_u24 v4, 20, v1")
    a("v_lshl_add_u32 v4, v2, 2, v4")
    a("s_lshl_b32 s36, s32, 4")
    a(f"s_add_u32 s36, s36, {OST}")
    for grp in range(3):
        a(f"v_add_u32 v5, {8*grp}, v4")
        a("v_lshrrev_b32 v6, 5, v5")
        a("v_lshlrev_b32 v6, 9, v6")
        a("v_bfe_u32 v7, v5, 2, 2")
        a("v_lshl_add_u32 v6, v7, 7, v6")
        a("v_bfe_u32 v7, v5, 4, 1")
        a("v_lshl_add_u32 v6, v7, 3, v6")
        a(f"v_add_u32 v{10+grp}, s36, v6")
    for grp in range(3):
        if grp == 2:
            a("v_cmp_eq_u32 vcc, 0, v2")
            a("s_and_saveexec_b64 s[46:47], vcc")
        a(f"ds_write_b64 v{10+grp}, {vr(S_[0]+2*grp,2)}")
    a("s_mov_b64 exec, -1")
    S.stamp()
    a("s_lshr_b32 s33, s33, 6")
    a("s_lshr_b32 s34, s2, 5")
    a("v_and_b32 v1, 15, v0")
    a("v_lshrrev_b32 v2, 4, v0")
    a("s_waitcnt lgkmcnt(0)")
    a("s_barrier")
    a("s_lshl_b32 s43, s32, 10")
    a(f"s_add_u32 s43, s43, {OST}")
    a("v_add_u32 v10, s43, v3")
    a(f"ds_read_b128 v[32:35], v10")
    a(f"ds_read_b128 v[36:39], v10 offset:8192")
    a("v_lshrrev_b32 v11, 3, v0")
    a("v_lshlrev_b32 v11, 8, v11")
    a("v_and_b32 v12, 7, v0")
    a("v_lshl_add_u32 v11, v12, 4, v11")
    a("s_lshl_b32 s44, s33, 2")
    a("s_lshr_b32 s45, s34, 1")
    a("s_add_u32 s44, s44, s45")
    a("s_mul_i32 s44, s44, 20480")
    a("s_and_b32 s45, s34, 1")
    a("s_lshl_b32 s45, s45, 7")
    a("s_add_u32 s44, s44, s45")
    a("s_lshl_b32 s45, s32, 11")
    a("s_add_u32 s44, s44, s45")
    a(f"s_add_u32 s44, s44, {OF_OFF}")
    a("s_waitcnt lgkmcnt(0)")
    a("buffer_store_dwordx4 v[32:35], v11, s[28:31], s44 offen sc1")
    a("s_cmp_ge_u32 s32, 2")
    a(f"s_cbranch_scc1 L_{name}_os")
    a("s_add_u32 s44, s44, 16384")
    a("buffer_store_dwordx4 v[36:39], v11, s[28:31], s44 offen sc1")
    a.label(f"L_{name}_os")
    a("s_waitcnt vmcnt(0)")
    a("s_barrier")
    a("s_lshl_b32 s43, s33, 8")
    a(f"s_add_u32 s43, s43, {CNT_OFF}")
    a("v_mov_b32 v10, s43")
    a("v_mov_b32 v11, 1")
    a("s_cmp_lg_u32 s32, 0")
    a(f"s_cbranch_scc1 L_{name}_nosig")
    a("s_mov_b64 exec, 1")
    a("buffer_atomic_add v11, v10, s[28:31], 0 offen")
    a("s_mov_b64 exec, -1")
    a.label(f"L_{name}_nosig")
    a("s_and_b32 s52, s32, 3")
    a("s_lshr_b32 s53, s32, 2")
    a("s_lshl_b32 s42, s33, 2")
    a("s_add_u32 s42, s42, s52")
    a("s_mul_i32 s49, s42, 20480")
    a("s_mul_i32 s44, s53, 10240")
    a("s_add_u32 s49, s49, s44")
    a(f"s_add_u32 s49, s49, {OF_OFF}")
    a("v_lshrrev_b32 v13, 2, v1")
    a("v_lshl_add_u32 v13, v2, 2, v13")
    a("v_and_b32 v14, 3, v1")
    a("v_lshlrev_b32 v14, 3, v14")
    a("v_mul_u32_u24 v15, 160, v13")
    a("v_add_u32 v20, v15, v14")
    a("s_mul_i32 s48, s52, 2560")
    a(f"s_add_u32 s48, s48, {RES}")
    a("v_add_u32 v22, s48, v20")
    a("s_mul_i32 s48, s53, 51200")
    a("v_add_u32 v20, s48, v20")
    ACC = 24; XF = 64; WF = 104
    for r in range(ACC, ACC + 20): a(f"v_mov_b32 v{r}, 0")
    def reads(ks, fs):
        b = WF + 20 * fs
        for nt in range(5):
            for half in range(2):
                off = (32 * ks + 16 * half) * 160 + 32 * nt
                a(f"ds_read_b64_tr_b16 {vr(b+4*nt+2*half,2)}, v20 offset:{off}")
    reads(0, 0)
    a("s_cmp_lg_u32 s32, 0")
    a(f"s_cbranch_scc1 L_{name}_nopoll")
    a("s_mov_b64 exec, 1")
    a.label(f"L_{name}_poll")
    a("buffer_load_dword v12, v10, s[28:31], 0 offen sc1")
    a("s_waitcnt vmcnt(0)")
    a("v_readfirstlane_b32 s43, v12")
    a("s_cmp_ge_u32 s43, 8")
    a(f"s_cbranch_scc1 L_{name}_polled")
    a("s_sleep 1")
    a(f"s_branch L_{name}_poll")
    a.label(f"L_{name}_polled")
    a("s_mov_b64 exec, -1")
    a.label(f"L_{name}_nopoll")
    a("s_waitcnt vmcnt(0)")
    a("s_barrier")
    S.stamp()
    for j in range(10):
        if j == 4: a("s_add_u32 s49, s49, 4096")
        if j == 8: a("s_add_u32 s49, s49, 4096")
        a(f"buffer_load_dwordx4 {vr(XF+4*j,4)}, v3, s[28:31], s49 offen offset:{1024*(j%4)} sc1")
    for j in range(10):
        a(f"s_waitcnt lgkmcnt(0) vmcnt({9-j})")
        if j < 9: reads(j + 1, (j + 1) % 2)
        b = WF + 20 * (j % 2)
        for nt in range(5): mfma16(a, ACC + 4 * nt, XF + 4 * j, b + 4 * nt)
    a("s_mul_i32 s44, s52, 5120")
    a(f"s_add_u32 s44, s44, {RED}")
    a("v_add_u32 v10, s44, v3")
    a("s_cmp_eq_u32 s53, 0")
    a(f"s_cbranch_scc1 L_{name}_kh0")
    a("s_nop 7")
    for nt in range(5): a(f"ds_write_b128 v10, {vr(ACC+4*nt,4)} offset:{1024*nt}")
    a("s_waitcnt lgkmcnt(0)")
    a("s_barrier")
    a(f"s_branch L_{name}_fin")
    a.label(f"L_{name}_kh0")
    RS = 144
    for nt in range(5): a(f"ds_read_b64_tr_b16 {vr(RS+2*nt,2)}, v22 offset:{32*nt}")
    SUM = 44; SQ = 48; T = 52
    for r in range(8): a(f"v_mov_b32 v{SUM+r}, 0")
    a("s_mul_i32 s44, s34, 327680")
    a("s_lshr_b32 s45, s42, 1")
    a("s_lshl_b32 s45, s45, 10")
    a("s_add_u32 s44, s44, s45")
    a("s_and_b32 s45, s42, 1")
    a("s_lshl_b32 s45, s45, 3")
    a("s_add_u32 s44, s44, s45")
    a(f"s_add_u32 s44, s44, {X1T_OFF}")
    a("s_mov_b32 s46, 0xffff0000")
    a("s_barrier")
    for nt in range(5): a(f"ds_read_b128 {vr(XF+4*nt,4)}, v10 offset:{1024*nt}")
    a("s_waitcnt lgkmcnt(0)")
    for r in range(20): a(f"v_add_f32 v{ACC+r}, v{ACC+r}, v{XF+r}")
    OUT = 160
    for nt in range(5):
        for h in range(2):
            a(f"v_lshlrev_b32 v{T}, 16, v{RS+2*nt+h}")
            a(f"v_and_b32 v{T+1}, s46, v{RS+2*nt+h}")
            a(f"v_add_f32 v{T}, v{T}, v{ACC+4*nt+2*h}")
            a(f"v_add_f32 v{T+1}, v{T+1}, v{ACC+4*nt+2*h+1}")
            o = OUT + 2 * nt + h
            a(f"v_cvt_pk_bf16_f32 v{o}, v{T}, v{T+1}")
            a(f"v_lshlrev_b32 v{T}, 16, v{o}")
            a(f"v_and_b32 v{T+1}, s46, v{o}")
            a(f"v_add_f32 v{SUM+2*h}, v{SUM+2*h}, v{T}")
            a(f"v_add_f32 v{SUM+2*h+1}, v{SUM+2*h+1}, v{T+1}")
            a(f"v_fma_f32 v{SQ+2*h}, v{T}, v{T}, v{SQ+2*h}")
            a(f"v_fma_f32 v{SQ+2*h+1}, v{T+1}, v{T+1}, v{SQ+2*h+1}")
        a(f"buffer_store_dwordx2 {vr(OUT+2*nt,2)}, v3, s[28:31], s44 offen")
        if nt < 4: a("s_add_u32 s44, s44, 65536")
    for sh in (8, 4, 2, 1):
        a("s_nop 1")
        for r in range(8):
            a(f"v_add_f32_dpp v{SUM+r}, v{SUM+r}, v{SUM+r} row_ror:{sh} row_mask:0xf bank_mask:0xf")
    a("s_lshl_b32 s44, s42, 7")
    a(f"s_add_u32 s44, s44, {ST_OFF}")
    a("v_lshlrev_b32 v10, 5, v2")
    a("v_lshl_add_u32 v10, v1, 2, v10")
    a(f"v_mov_b32 v11, v{SUM}")
    for e in range(1, 8):
        src = (SQ if e & 1 else SUM) + (e >> 1)
        a(f"v_cmp_eq_u32 vcc, {e}, v1")
        a("s_nop 1")
        a(f"v_cndmask_b32 v11, v11, v{src}, vcc")
    a("v_cmp_gt_u32 vcc, 8, v1")
    a("s_and_saveexec_b64 s[46:47], vcc")
    a(f"buffer_atomic_add_f32 v11, v10, s[28:31], s44 offen")
    a.label(f"L_{name}_fin")
    S.stamp(); S.real(); S.flush()
    a(f"s_branch L_{name}_end")
    a.label(f"L_{name}_restart")
    a(f"v_mov_b32 v7, 0xff800000")
    a(f"s_mov_b32 s43, {KV_OFF}")
    a.label(f"L_{name}_mx")
    a(f"buffer_load_dwordx4 {vr(KB[0],4)}, v3, s[28:31], s43 offen")
    a(f"buffer_load_dword v{KB[0]+4}, v{K2OFF}, s[28:31], s43 offen")
    a("s_waitcnt vmcnt(0)")
    mfma32(a, S_[0], KB[0], QF1, "0")
    mfma32(a, S_[0], KB[0] + 4, QF2)
    a("s_nop 15")
    a("s_nop 3")
    for r in range(0, 16, 2): a(f"v_max3_f32 v7, v7, v{S_[0]+r}, v{S_[0]+r+1}")
    a(f"s_add_u32 s43, s43, {KVT}")
    a(f"s_cmp_lt_u32 s43, {KV_OFF + 64*KVT}")
    a(f"s_cbranch_scc1 L_{name}_mx")
    a("v_mov_b32 v4, v7")
    a("v_mov_b32 v5, v7")
    a("s_nop 1")
    a("v_permlane32_swap_b32 v4, v5")
    a("s_nop 1")
    a("v_max_f32 v7, v4, v5")
    a("v_sub_f32 v7, 0, v7")
    for r in range(16): a(f"v_mov_b32 v{NEGM+r}, v7")
    for r in range(16): a(f"v_mov_b32 v{O+r}, 0")
    a(f"s_mov_b32 s43, {KV_OFF}")
    a.label(f"L_{name}_sl")
    a(f"buffer_load_dwordx4 {vr(KB[0],4)}, v3, s[28:31], s43 offen")
    a(f"buffer_load_dword v{KB[0]+4}, v{K2OFF}, s[28:31], s43 offen")
    a(f"buffer_load_dwordx4 {vr(VB[0],4)}, v{VOFF}, s[28:31], s43 offen")
    a(f"buffer_load_dwordx4 {vr(VB[0]+4,4)}, v{VOFF}, s[28:31], s43 offen offset:{VCS}")
    a("s_waitcnt vmcnt(0)")
    mfma32(a, S_[0], KB[0], QF1, vr(NEGM, 16))
    mfma32(a, S_[0], KB[0] + 4, QF2)
    a("s_nop 15")
    a("s_nop 3")
    for r in range(16): a(f"v_exp_f32 v{S_[0]+r}, v{S_[0]+r}")
    a("s_nop 0")
    for r in range(8): a(f"v_cvt_pk_bf16_f32 v{P[0]+r}, v{S_[0]+2*r}, v{S_[0]+2*r+1}")
    a("s_nop 1")
    mfma32(a, O, VB[0], P[0])
    mfma32(a, O, VB[0] + 4, P[0] + 4)
    a("s_nop 15")
    a(f"s_add_u32 s43, s43, {KVT}")
    a(f"s_cmp_lt_u32 s43, {KV_OFF + 64*KVT}")
    a(f"s_cbranch_scc1 L_{name}_sl")
    a(f"s_branch L_{name}_check")
    a.label(f"L_{name}_end")
    a("s_endpgm")
    ll = lambda n: f"; @launch kernel={n} grid=(256,1,1) block=(512,1,1) lds={LDS}"
    return (name, a.text(), kd(name, NV) + kd("attn1_kernel", NV), ll(name)), ("attn1_kernel", "", "", ll("attn1_kernel"))

def gen_oproj(layer):
    name = f"oproj{layer}_kernel"
    a = Asm(); header(a, name)
    RES = 102400
    LDS = RES + 10240
    a(f"s_cmp_ge_u32 s2, 256")
    a(f"s_cbranch_scc1 L_{name}_end")
    S = Stamper(a, 2 + 5*layer, 4); S.real(); S.stamp()
    a(f"s_load_dwordx2 s[4:5], s[0:1], 0")
    a(f"s_load_dwordx2 s[6:7], s[0:1], 32")
    a(f"s_load_dwordx2 s[12:13], s[0:1], 96")
    a("v_lshrrev_b32 v1, 6, v0")
    a("v_and_b32 v0, 63, v0")
    a("v_readfirstlane_b32 s32, v1")
    a("s_and_b32 s33, s2, 7")
    a("s_lshr_b32 s34, s2, 3")
    a("s_and_b32 s34, s34, 3")
    a("s_lshl_b32 s34, s34, 3")
    a("s_add_u32 s33, s33, s34")
    a("s_lshr_b32 s34, s2, 5")
    a("s_waitcnt lgkmcnt(0)")
    if layer == 1:
        a(f"s_add_u32 s4, s12, {hex(X2_OFF)}")
        a(f"s_addc_u32 s5, s13, 0")
    srd(a, 16, 4, 5, XBYTES)
    srd(a, 20, 6, 7, 819200)
    srd(a, 28, 12, 13, WS_SIZE)
    a("v_and_b32 v1, 15, v0")
    a("v_lshrrev_b32 v2, 4, v0")
    a("s_mul_i32 s35, s32, 320")
    a("s_mul_i32 s36, s34, 160")
    a("s_mov_b32 s37, 6554")
    a("s_movk_i32 s38, 1280")
    for jj in range(5):
        a(f"v_add_u32 v10, s35, v0")
        if jj: a(f"v_add_u32 v10, {64*jj}, v10")
        a("v_mul_lo_u32 v11, v10, s37")
        a("v_lshrrev_b32 v11, 16, v11")
        a("v_mul_u32_u24 v12, 10, v11")
        a("v_sub_u32 v12, v10, v12")
        a("v_mul_lo_u32 v11, v11, s38")
        a("v_lshl_add_u32 v11, v12, 4, v11")
        a(f"v_add_u32 v{4+jj}, s36, v11")
    a("v_lshlrev_b32 v3, 4, v0")
    a("s_mul_i32 s40, s33, 81920")
    a("s_mul_i32 s41, s32, 5120")
    a("s_cmp_ge_u32 s32, 2")
    a(f"s_cbranch_scc1 L_{name}_nores")
    for jj in range(5):
        a(f"s_add_u32 s44, s41, {RES + jj*1024}")
        a("s_mov_b32 m0, s44")
        a("s_nop 0")
        a(f"buffer_load_dwordx4 v{4+jj}, s[16:19], s40 offen lds")
    a.label(f"L_{name}_nores")
    a("s_lshl_b32 s42, s33, 2")
    a("s_add_u32 s42, s42, s32")
    a("s_mul_i32 s43, s42, 20480")
    a(f"s_add_u32 s43, s43, {OF_OFF}")
    XF = 64
    def stage_ops(st):
        ops = []
        for jj in range(5):
            ops.append([f"s_add_u32 s44, s41, {st*20480 + jj*1024}", "s_mov_b32 m0, s44",
                        f"s_mov_b32 s45, {st*128*1280}", f"buffer_load_dwordx4 v{4+jj}, s[20:23], s45 offen lds"])
        for k4 in range(4):
            ops.append([f"s_add_u32 s45, s43, {st*4096}",
                        f"buffer_load_dwordx4 {vr(XF+4*(4*st+k4),4)}, v3, s[28:31], s45 offen offset:{1024*k4}"])
        return ops
    for st in range(2):
        for op in stage_ops(st):
            for x in op: a(x)
    S.stamp()
    a("v_lshrrev_b32 v10, 2, v1")
    a("v_lshl_add_u32 v10, v2, 2, v10")
    a("v_and_b32 v11, 3, v1")
    a("v_lshlrev_b32 v11, 3, v11")
    a("v_mul_u32_u24 v12, 160, v10")
    a("v_add_u32 v20, v12, v11")
    a(f"v_add_u32 v21, {51200}, v20")
    a("s_mul_i32 s48, s32, 2560")
    a(f"s_add_u32 s48, s48, {RES}")
    a("v_add_u32 v22, s48, v20")
    ACC = 24
    WF = 144
    for r in range(ACC, ACC + 20): a(f"v_mov_b32 v{r}, 0")
    def reads(ks, fs):
        b = WF + 20 * fs
        for nt in range(5):
            for half in range(2):
                off = (32 * ks + 16 * half) * 160 + 32 * nt
                va = 20
                if off >= 51200: off -= 51200; va = 21
                a(f"ds_read_b64_tr_b16 {vr(b+4*nt+2*half,2)}, v{va} offset:{off}")
    for st in range(5):
        a(f"s_waitcnt vmcnt({9 if st < 4 else 0})")
        a("s_barrier")
        if st == 0: S.stamp()
        pend = stage_ops(st + 2) if st + 2 < 5 else []
        reads(4 * st, 0)
        for k4 in range(4):
            a("s_waitcnt lgkmcnt(0)")
            if k4 < 3: reads(4 * st + k4 + 1, (k4 + 1) % 2)
            b = WF + 20 * (k4 % 2)
            for nt in range(5):
                mfma16(a, ACC + 4 * nt, XF + 4 * (4 * st + k4), b + 4 * nt)
                if nt % 2 == 0 and pend:
                    for x_ in pend.pop(0): a(x_)
        assert not pend
    S.stamp()
    RS = WF
    for nt in range(5): a(f"ds_read_b64_tr_b16 {vr(RS+2*nt,2)}, v22 offset:{32*nt}")
    SUM = 44; SQ = 48; T = 52
    for r in range(8): a(f"v_mov_b32 v{SUM+r}, 0")
    a("s_mul_i32 s44, s34, 327680")
    a("s_lshr_b32 s45, s42, 1")
    a("s_lshl_b32 s45, s45, 10")
    a("s_add_u32 s44, s44, s45")
    a("s_and_b32 s45, s42, 1")
    a("s_lshl_b32 s45, s45, 3")
    a("s_add_u32 s44, s44, s45")
    a(f"s_add_u32 s44, s44, {X1T_OFF}")
    a("s_mov_b32 s46, 0xffff0000")
    a("s_waitcnt lgkmcnt(0)")
    a("s_nop 7")
    OUT = WF + 12
    for nt in range(5):
        for h in range(2):
            a(f"v_lshlrev_b32 v{T}, 16, v{RS+2*nt+h}")
            a(f"v_and_b32 v{T+1}, s46, v{RS+2*nt+h}")
            a(f"v_add_f32 v{T}, v{T}, v{ACC+4*nt+2*h}")
            a(f"v_add_f32 v{T+1}, v{T+1}, v{ACC+4*nt+2*h+1}")
            o = OUT + 2 * nt + h
            a(f"v_cvt_pk_bf16_f32 v{o}, v{T}, v{T+1}")
            a(f"v_lshlrev_b32 v{T}, 16, v{o}")
            a(f"v_and_b32 v{T+1}, s46, v{o}")
            a(f"v_add_f32 v{SUM+2*h}, v{SUM+2*h}, v{T}")
            a(f"v_add_f32 v{SUM+2*h+1}, v{SUM+2*h+1}, v{T+1}")
            a(f"v_fma_f32 v{SQ+2*h}, v{T}, v{T}, v{SQ+2*h}")
            a(f"v_fma_f32 v{SQ+2*h+1}, v{T+1}, v{T+1}, v{SQ+2*h+1}")
        a(f"buffer_store_dwordx2 {vr(OUT+2*nt,2)}, v3, s[28:31], s44 offen")
        if nt < 4: a("s_add_u32 s44, s44, 65536")
    for sh in (8, 4, 2, 1):
        a("s_nop 1")
        for r in range(8):
            a(f"v_add_f32_dpp v{SUM+r}, v{SUM+r}, v{SUM+r} row_ror:{sh} row_mask:0xf bank_mask:0xf")
    a("s_lshl_b32 s44, s42, 7")
    a(f"s_add_u32 s44, s44, {ST_OFF}")
    a("v_lshlrev_b32 v10, 5, v2")
    a("v_cmp_eq_u32 vcc, 0, v1")
    a("s_and_saveexec_b64 s[46:47], vcc")
    for r in range(4):
        a(f"buffer_atomic_add_f32 v{SUM+r}, v10, s[28:31], s44 offen offset:{8*r}")
        a(f"buffer_atomic_add_f32 v{SQ+r}, v10, s[28:31], s44 offen offset:{8*r+4}")
    S.stamp(); S.real(); S.flush()
    a.label(f"L_{name}_end")
    a("s_endpgm")
    return name, a.text(), kd(name, 192), f"; @launch kernel={name} grid=(256,1,1) block=(256,1,1) lds={LDS}"

def mfma16a(a, d, x, y):
    a(f"v_mfma_f32_16x16x32_bf16 a[{d}:{d+3}], {vr(x,4)}, {vr(y,4)}, a[{d}:{d+3}]")

def gen_mlp(which, layer):
    name = f"mlp{which}_{layer}_kernel"
    a = Asm(); header(a, name)
    norm = which == 1
    NW = 8 if norm else int(os.environ.get("K5NW", "4"))
    U = 2 if norm else int(os.environ.get("K5U", "4"))
    RING = U * 4096
    TAB = NW * RING
    NWG = 216 if norm else 256
    WSTR = 3456 if norm else 4096
    WBYTES = 2048 * 1728 * 2
    XDT = 65536 if norm else GDT
    XOFF = X1T_OFF if norm else GF_OFF
    if NW == 8: own_dts = lambda w: (0, 1, 2) if w < 4 else (3, 4)
    else: own_dts = lambda w: (0, 1, 2, 3, 4)
    MT = 3 if NW == 8 else 5
    NS = NW - 1
    own_base = []; off = 0
    for w in range(NW):
        own_base.append(off); off += NS * len(own_dts(w)) * 1024
    REDSZ = off
    TR = REDSZ + 1024
    LDS = max(TAB + NW * 2048, TR + 4 * 2560)
    a(f"s_cmp_ge_u32 s2, {NWG}")
    a(f"s_cbranch_scc1 L_{name}_end")
    S = Stamper(a, 2 + which + 5*layer, 8); S.real(); S.stamp()
    a(f"s_load_dwordx4 s[4:7], s[0:1], {48 if norm else 64}")
    a(f"s_load_dwordx2 s[12:13], s[0:1], 96")
    if not norm:
        a(f"s_load_dwordx2 s[8:9], s[0:1], 80")
    a("v_lshrrev_b32 v1, 6, v0")
    a("v_and_b32 v0, 63, v0")
    a("v_readfirstlane_b32 s32, v1")
    if norm:
        a("s_and_b32 s33, s2, 7")
        a(f"s_mul_i32 s33, s33, {NWG//8}")
        a("s_lshr_b32 s34, s2, 3")
        a("s_add_u32 s33, s33, s34")
        a("s_lshr_b32 s34, s33, 3")
        a("s_and_b32 s33, s33, 7")
        a(f"s_load_dwordx2 s[8:9], s[0:1], 64")
    else:
        a("s_and_b32 s34, s2, 7")
        a("s_lshr_b32 s33, s2, 3")
        a("s_and_b32 s33, s33, 3")
        a("s_lshl_b32 s33, s33, 3")
        a("s_add_u32 s34, s34, s33")
        a("s_lshr_b32 s33, s2, 5")
        a(f"s_load_dwordx2 s[10:11], s[0:1], 8")
    a("v_and_b32 v1, 15, v0")
    a("v_lshrrev_b32 v2, 4, v0")
    a("v_lshlrev_b32 v3, 4, v0")
    NST = 64 // NW if norm else 56 // NW
    a(f"s_mul_i32 s35, s32, {NST}")
    a("v_lshrrev_b32 v10, 3, v0")
    a("v_lshrrev_b32 v11, 1, v10")
    a("v_and_b32 v11, 3, v11")
    a("v_lshlrev_b32 v11, 1, v11")
    a("v_and_b32 v12, 7, v0")
    a("v_xor_b32 v12, v12, v11")
    a(f"s_movk_i32 s38, {WSTR}")
    a("v_mul_lo_u32 v5, v10, s38")
    a("v_lshl_add_u32 v44, v12, 4, v5")
    for jj in range(1, 4): a(f"v_add_u32 v{44+jj}, {jj*(8*WSTR-1024)}, v44")
    for dt in range(1, 5): a(f"v_add_u32 v{19+dt}, {dt*XDT}, v3")
    a(f"s_mul_i32 s40, s35, {32*WSTR}")
    a("s_lshl_b32 s41, s34, 7")
    a("s_add_u32 s40, s40, s41")
    a(f"s_mul_i32 s41, s33, {5*XDT}")
    a("s_lshl_b32 s42, s35, 10")
    a("s_add_u32 s41, s41, s42")
    a(f"s_add_u32 s41, s41, {XOFF}")
    a(f"s_mul_i32 s42, s32, {RING}")
    a("s_and_b32 s52, s32, 3")
    a("s_lshr_b32 s53, s32, 2")
    a("s_waitcnt lgkmcnt(0)")
    srd(a, 20, 4, 5, WBYTES)
    srd(a, 28, 12, 13, WS_SIZE)
    XR = 48
    XN = XR + 20 * U
    WF = XN + (40 if norm else 0)
    TT = WF + 32
    NV = max(TT + (16 if norm else 0), 176)
    TMP = 16
    TB = 36
    EB = 24
    if norm:
        a("s_lshl_b32 s37, s32, 11")
        a(f"s_add_u32 s37, s37, {ST_OFF}")
        a("v_lshlrev_b32 v4, 3, v0")
        for i2 in range(4):
            a(f"buffer_load_dwordx2 {vr(TB+2*i2,2)}, v4, s[28:31], s37 offen offset:{512*i2}")
    def w_ops(slot):
        ops = []
        for jj in range(4):
            op = [f"s_mov_b32 m0, s{64+slot}"] if jj == 0 else []
            if jj == 0: op.append("s_nop 0")
            op.append(f"buffer_load_dwordx4 v{44+jj}, s[20:23], s40 offen offset:{jj*1024} lds")
            ops.append(op)
        ops[-1] += [f"s_add_u32 s40, s40, {32*WSTR}"]
        return ops
    def x_ops(slot):
        ops = []
        for dt in range(5):
            va = 3 if dt == 0 else 19 + dt
            ops.append([f"buffer_load_dwordx4 {vr(XR+20*slot+4*dt,4)}, v{va}, s[60:63], s41 offen"])
        ops[-1] += ["s_add_u32 s41, s41, 1024"]
        return ops
    lab = [0]
    def emit_ops(ops, guard=False):
        for op in ops:
            for x in op: a(x)
    srd(a, 60, 12, 13, WS_SIZE)
    for u in range(U): a(f"s_add_u32 s{64+u}, s42, {u*4096}")
    emit_ops(w_ops(0)); emit_ops(x_ops(0))
    srd(a, 24, 6, 7, 1728 * 2 if norm else 2048 * 2)
    if not norm:
        if layer == 0:
            a(f"s_add_u32 s8, s12, {hex(X2_OFF)}")
            a(f"s_addc_u32 s9, s13, 0")
        srd(a, 16, 8, 9, XBYTES)
    a("s_lshl_b32 s43, s34, 7")
    a("s_lshl_b32 s44, s52, 5")
    a("s_add_u32 s43, s43, s44")
    a("v_lshlrev_b32 v10, 3, v2")
    a(f"buffer_load_dwordx2 {vr(EB,2)}, v10, s[24:27], s43 offen")
    NE = 1
    if not norm:
        a("s_mul_i32 s43, s33, 327680")
        a("s_mul_i32 s44, s53, 196608")
        a("s_add_u32 s43, s43, s44")
        a("s_lshl_b32 s44, s34, 11")
        a("s_add_u32 s43, s43, s44")
        a("s_lshr_b32 s44, s52, 1")
        a("s_lshl_b32 s44, s44, 10")
        a("s_add_u32 s43, s43, s44")
        a("s_and_b32 s44, s52, 1")
        a("s_lshl_b32 s44, s44, 3")
        a("s_add_u32 s43, s43, s44")
        a(f"s_add_u32 s43, s43, {X1T_OFF}")
        for j in range(MT):
            a(f"buffer_load_dwordx2 {vr(EB+2+2*j,2)}, v3, s[28:31], s43 offen")
            if j < MT - 1: a("s_add_u32 s43, s43, 65536")
        NE = 1 + MT
    for u in range(1, U):
        emit_ops(w_ops(u)); emit_ops(x_ops(u))
    S.stamp()
    a("v_lshrrev_b32 v10, 2, v1")
    a("v_lshl_add_u32 v10, v2, 2, v10")
    a("v_lshrrev_b32 v11, 1, v10")
    a("v_and_b32 v11, 3, v11")
    a("v_and_b32 v12, 3, v1")
    a("v_lshlrev_b32 v12, 3, v12")
    a("v_lshl_add_u32 v12, v10, 7, v12")
    a("v_add_u32 v12, s42, v12")
    for nt in range(4):
        a(f"v_xor_b32 v13, {nt}, v11")
        a(f"v_lshl_add_u32 v{6+nt}, v13, 5, v12")
    for r in range(80): a(f"v_accvgpr_write_b32 a{r}, 0")
    a("s_mov_b32 s46, 0xffff0000")
    if norm:
        a(f"s_waitcnt vmcnt({9*U+NE})")
        a("s_lshl_b32 s43, s32, 11")
        a(f"s_add_u32 s43, s43, {TAB}")
        a("v_lshlrev_b32 v14, 2, v0")
        a("v_add_u32 v14, s43, v14")
        a("v_lshlrev_b32 v15, 4, v2")
        a("v_add_u32 v15, s43, v15")
        a(f"s_mov_b32 s47, {hex(f2u(1.0/640))}")
        a(f"s_mov_b32 s48, {hex(f2u(1e-5))}")
        for i2 in range(4):
            m = TB + 2 * i2; q = m + 1
            a(f"v_mul_f32 v{m}, s47, v{m}")
            a(f"v_mul_f32 v{q}, s47, v{q}")
            a(f"v_fma_f32 v{q}, -v{m}, v{m}, v{q}")
            a(f"v_max_f32 v{q}, 0, v{q}")
            a(f"v_add_f32 v{TMP}, s48, v{q}")
            a(f"v_rsq_f32 v{TMP}, v{TMP}")
            a("s_nop 0")
            a(f"v_mul_f32 v{q}, v{q}, v{TMP}")
            a(f"v_fma_f32 v{q}, v{q}, v{TMP}, s48")
            a(f"v_rsq_f32 v{q}, v{q}")
            a("s_nop 0")
            a(f"v_mul_f32 v{q}, v{q}, v{TMP}")
            a(f"v_mul_f32 v{m}, v{m}, v{q}")
            a(f"v_sub_f32 v{m}, 0, v{m}")
            a(f"ds_write_b32 v14, v{q} offset:{256*i2}")
            a(f"ds_write_b32 v14, v{m} offset:{1024+256*i2}")
        a("s_waitcnt lgkmcnt(0)")
    def wreads(slot, fs):
        for nt in range(4):
            for half in range(2):
                a(f"ds_read_b64_tr_b16 {vr(WF+16*fs+4*nt+2*half,2)}, v{6+nt} offset:{slot*4096+half*2048}")
    def treads():
        a(f"ds_read_b128 {vr(TT,4)}, v15")
        a(f"ds_read_b128 {vr(TT+4,4)}, v15 offset:64")
        a(f"ds_read_b128 {vr(TT+8,4)}, v15 offset:1024")
        a(f"ds_read_b128 {vr(TT+12,4)}, v15 offset:1088")
        a("v_add_u32 v15, 128, v15")
    def norm_ops(slot, fs):
        ops = []
        for dt in range(5):
            for dw in range(4):
                r = XR + 20 * slot + 4 * dt + dw
                e = (dw % 2) * 2 + (dw // 2) * 4
                t0 = TMP + 2 * (dw % 2); t1 = t0 + 1
                ops.append(f"v_lshlrev_b32 v{t0}, 16, v{r}")
                ops.append(f"v_and_b32 v{t1}, s46, v{r}")
                ops.append(f"v_fma_f32 v{t0}, v{t0}, v{TT+e}, v{TT+8+e}")
                ops.append(f"v_fma_f32 v{t1}, v{t1}, v{TT+e+1}, v{TT+8+e+1}")
                ops.append(f"v_cvt_pk_bf16_f32 v{XN+20*fs+4*dt+dw}, v{t0}, v{t1}")
        return ops
    def mfma_list(slot, fs):
        l = []
        for dt in range(5):
            x = (XN + 20 * fs + 4 * dt) if norm else (XR + 20 * slot + 4 * dt)
            for nt in range(4):
                w = WF + 16 * fs + 4 * nt
                t = 4 * (dt * 4 + nt)
                l.append(f"v_mfma_f32_16x16x32_bf16 a[{t}:{t+3}], {vr(w,4)}, {vr(x,4)}, a[{t}:{t+3}]")
        return l
    def norm_step(nu, nfs, ml, ld):
        treads()
        wreads(nu, nfs)
        ops = norm_ops(nu, nfs)
        xo = x_ops(nu) if ld else []; wo = w_ops(nu) if ld else []
        k = 0
        for m in ml[:3]: a(m); k += 1
        a("s_waitcnt lgkmcnt(8)")
        for idx, op in enumerate(ops):
            a(op)
            if idx % 6 == 5 and k < len(ml):
                a(ml[k]); k += 1
            if idx % 20 == 19 and xo:
                emit_ops([xo.pop(0)])
            if idx == 30 and ld: a("s_waitcnt lgkmcnt(0)")
            if idx in (40, 55, 70, 85) and wo:
                emit_ops([wo.pop(0)])
        while k < len(ml): a(ml[k]); k += 1
        assert not xo and not wo
    if NW == 8 and os.environ.get("K4PRIO", "1") != "0":
        a("s_cmp_lt_u32 s32, 4")
        a(f"s_cbranch_scc1 L_{name}_np")
        a("s_setprio 1")
        a.label(f"L_{name}_np")
    a(f"s_waitcnt vmcnt({9*(U-1)+NE})")
    if norm:
        norm_step(0, 0, [], U < NST)
    else:
        wreads(0, 0)
    S.stamp()
    for j in range(NST):
        u = j % U; fs = j % 2; nu = (j + 1) % U; nfs = 1 - fs
        if norm:
            if j + 1 < NST:
                younger = min(j + U, NST - 1) - (j + 1)
                a(f"s_waitcnt vmcnt({9*younger}) lgkmcnt(0)")
                norm_step(nu, nfs, mfma_list(u, fs), j + 1 + U < NST)
            else:
                a("s_waitcnt lgkmcnt(0)")
                for m in mfma_list(u, fs): a(m)
        else:
            if j + 1 < NST:
                younger = min(j + U - 1, NST - 1) - (j + 1)
                a(f"s_waitcnt vmcnt({9*younger}) lgkmcnt(0)")
                wreads(nu, nfs)
            else:
                a("s_waitcnt vmcnt(0) lgkmcnt(0)")
            ld = j + U < NST
            xo = x_ops(u) if ld else []; wo = w_ops(u) if ld else []
            for idx, m in enumerate(mfma_list(u, fs)):
                a(m)
                if idx % 4 == 3 and xo: emit_ops([xo.pop(0)])
                if idx % 4 == 1 and wo: emit_ops([wo.pop(0)])
            assert not xo and not wo
        if NW == 8 and j == NST - int(os.environ.get("K4OFF", "3")): a("s_setprio 0")
    a.label(f"L_{name}_done")
    S.stamp()
    a("s_waitcnt vmcnt(0) lgkmcnt(0)")
    if norm:
        a("s_cmp_lg_u32 s34, 26")
        a(f"s_cbranch_scc1 L_{name}_nozf")
        a("s_cmp_ge_u32 s32, 5")
        a(f"s_cbranch_scc1 L_{name}_nozf")
        a("s_mul_i32 s43, s33, 5")
        a("s_add_u32 s43, s43, s32")
        a(f"s_mul_i32 s43, s43, {GDT}")
        a(f"s_add_u32 s43, s43, {GF_OFF + 54*1024}")
        for r in range(4): a(f"v_mov_b32 v{16+r}, 0")
        a("buffer_store_dwordx4 v[16:19], v3, s[28:31], s43 offen")
        a("buffer_store_dwordx4 v[16:19], v3, s[28:31], s43 offen offset:1024")
        a.label(f"L_{name}_nozf")
        srd(a, 56, 8, 9, WBYTES)
        a("s_lshr_b32 s43, s2, 3")
        a("s_lshl_b32 s43, s43, 3")
        a("s_add_u32 s43, s43, s32")
        a(f"s_mul_i32 s43, s43, {8*4096}")
        a("s_and_b32 s44, s2, 7")
        a("s_lshl_b32 s44, s44, 7")
        a("s_add_u32 s43, s43, s44")
        a("v_lshrrev_b32 v10, 3, v0")
        a("v_lshlrev_b32 v10, 12, v10")
        a("v_and_b32 v11, 7, v0")
        a("v_lshl_add_u32 v10, v11, 4, v10")
        for j in range(4):
            a(f"buffer_load_dwordx4 v[20:23], v10, s[56:59], s43 offen offset:{1024*j}")
    elif layer == 0:
        srd(a, 56, 10, 11, 819200)
        per = 819200 // (32 * NW)
        a("s_lshr_b32 s43, s2, 3")
        a(f"s_mul_i32 s43, s43, {NW}")
        a("s_add_u32 s43, s43, s32")
        a(f"s_mul_i32 s43, s43, {per}")
        for j in range((per + 1023) // 1024):
            if j == 4: a("s_add_u32 s43, s43, 4096")
            a(f"buffer_load_dwordx4 v[20:23], v3, s[56:59], s43 offen offset:{min(1024*j, per-1024) - (4096 if j >= 4 else 0)}")
    code_prefetch(a, NW, 12, 20)
    a("s_barrier")
    OWN = 88
    for o in range(NW):
        dts = own_dts(o); nt = o % 4
        a(f"s_cmp_eq_u32 s32, {o}")
        a(f"s_cbranch_scc1 L_{name}_own{o}")
        a(f"s_sub_u32 s43, s32, {o+1}")
        a(f"s_and_b32 s43, s43, {NW-1}")
        a(f"s_mul_i32 s43, s43, {len(dts)*1024}")
        a(f"s_add_u32 s43, s43, {own_base[o]}")
        a("v_add_u32 v10, s43, v3")
        for j, dt in enumerate(dts):
            t = 4 * (dt * 4 + nt)
            a(f"ds_write_b128 v10, a[{t}:{t+3}] offset:{j*1024}")
        a(f"s_branch L_{name}_nx{o}")
        a.label(f"L_{name}_own{o}")
        for j, dt in enumerate(dts):
            for r in range(4):
                a(f"v_accvgpr_read_b32 v{OWN+4*j+r}, a{4*(dt*4+nt)+r}")
        for r in range(4 * len(dts), 4 * MT): a(f"v_mov_b32 v{OWN+r}, 0")
        a(f"s_mov_b32 s54, {own_base[o]}")
        a(f"s_mov_b32 s55, {len(dts)*1024}")
        a.label(f"L_{name}_nx{o}")
    a("s_waitcnt lgkmcnt(0)")
    a("s_barrier")
    a("v_add_u32 v10, s54, v3")
    BI = 40
    a(f"v_lshlrev_b32 v{BI}, 16, v{EB}")
    a(f"v_and_b32 v{BI+1}, s46, v{EB}")
    a(f"v_lshlrev_b32 v{BI+2}, 16, v{EB+1}")
    a(f"v_and_b32 v{BI+3}, s46, v{EB+1}")
    if NW == 8: PRS = [108, 120, 132, 144, 156, 48, 60]
    else: PRS = [108, 128, 148]
    issued = 0; done = 0
    for sidx in range(NS):
        for j in range(MT):
            a(f"ds_read_b128 {vr(PRS[sidx]+4*j,4)}, v10 offset:{j*1024}")
        issued += 1
        if sidx < NS - 1: a("v_add_u32 v10, s55, v10")
        if (issued - done) * MT >= 12 and sidx < NS - 1:
            a(f"s_waitcnt lgkmcnt({(issued-done-1)*MT})")
            for r in range(4 * MT): a(f"v_add_f32 v{OWN+r}, v{OWN+r}, v{PRS[done]+r}")
            done += 1
    while done < NS:
        a(f"s_waitcnt lgkmcnt({(NS-done-1)*MT})")
        for r in range(4 * MT): a(f"v_add_f32 v{OWN+r}, v{OWN+r}, v{PRS[done]+r}")
        done += 1
    S.stamp()
    E0 = 112
    if norm:
        c1 = -2.0 * math.log2(math.e) * 0.7978845608028654
        c2 = c1 * 0.044715
        a(f"s_mov_b32 s47, {hex(f2u(c1))}")
        a(f"s_mov_b32 s48, {hex(f2u(c2))}")
        a("v_mov_b32 v44, s47")
        a(f"s_mul_i32 s43, s33, {5*GDT}")
        a(f"s_mul_i32 s44, s53, {3*GDT}")
        a("s_add_u32 s43, s43, s44")
        a("s_lshl_b32 s44, s34, 11")
        a("s_add_u32 s43, s43, s44")
        a("s_lshr_b32 s44, s52, 1")
        a("s_lshl_b32 s44, s44, 10")
        a("s_add_u32 s43, s43, s44")
        a("s_and_b32 s44, s52, 1")
        a("s_lshl_b32 s44, s44, 3")
        a("s_add_u32 s43, s43, s44")
        a(f"s_add_u32 s43, s43, {GF_OFF}")
        for j in range(MT):
            if NW == 8 and j == 2:
                a("s_cmp_lg_u32 s53, 0")
                a(f"s_cbranch_scc1 L_{name}_fin")
            for r in range(4):
                u = OWN + 4 * j + r
                a(f"v_add_f32 v{u}, v{u}, v{BI+r}")
            for r in range(4):
                u = OWN + 4 * j + r; t = E0 + r
                a(f"v_mul_f32 v{t}, v{u}, v{u}")
            for r in range(4):
                t = E0 + r
                a(f"v_fma_f32 v{t}, v{t}, s48, v44")
            for r in range(4):
                u = OWN + 4 * j + r; t = E0 + r
                a(f"v_mul_f32 v{t}, v{t}, v{u}")
            for r in range(4): a(f"v_exp_f32 v{E0+r}, v{E0+r}")
            for r in range(4): a(f"v_add_f32 v{E0+r}, 1.0, v{E0+r}")
            for r in range(4): a(f"v_rcp_f32 v{E0+r}, v{E0+r}")
            for r in range(4):
                u = OWN + 4 * j + r
                a(f"v_mul_f32 v{u}, v{u}, v{E0+r}")
            o = E0 + 6 + 2 * j
            a(f"v_cvt_pk_bf16_f32 v{o}, v{OWN+4*j}, v{OWN+4*j+1}")
            a(f"v_cvt_pk_bf16_f32 v{o+1}, v{OWN+4*j+2}, v{OWN+4*j+3}")
            a(f"buffer_store_dwordx2 {vr(o,2)}, v3, s[28:31], s43 offen")
            if j < MT - 1: a(f"s_add_u32 s43, s43, {GDT}")
    else:
        a("s_mul_i32 s43, s52, 2560")
        a(f"s_add_u32 s43, s43, {TR}")
        a("s_mul_i32 s44, s53, 96")
        a("s_add_u32 s44, s44, s43")
        a("v_mul_u32_u24 v10, 640, v2")
        a("v_lshl_add_u32 v10, v1, 1, v10")
        a("v_add_u32 v10, s44, v10")
        for j in range(MT):
            if NW == 8 and j == 2:
                a("s_cmp_lg_u32 s53, 0")
                a(f"s_cbranch_scc1 L_{name}_tr")
            for h in range(2):
                rr = EB + 2 + 2 * j + h
                a(f"v_lshlrev_b32 v{E0}, 16, v{rr}")
                a(f"v_and_b32 v{E0+1}, s46, v{rr}")
                u = OWN + 4 * j + 2 * h
                a(f"v_add_f32 v{u}, v{u}, v{BI+2*h}")
                a(f"v_add_f32 v{u+1}, v{u+1}, v{BI+2*h+1}")
                a(f"v_add_f32 v{E0}, v{E0}, v{u}")
                a(f"v_add_f32 v{E0+1}, v{E0+1}, v{u+1}")
                a(f"v_cvt_pk_bf16_f32 v{E0+2+h}, v{E0}, v{E0+1}")
                a(f"ds_write_b16 v10, v{E0+2+h} offset:{(2*h)*160 + 32*j}")
                a(f"ds_write_b16_d16_hi v10, v{E0+2+h} offset:{(2*h+1)*160 + 32*j}")
        a.label(f"L_{name}_tr")
        NCH = 2 if NW == 8 else 3
        LASTN = 16 if NW == 8 else 32
        a("s_lshl_b32 s44, s34, 6")
        a("s_lshl_b32 s45, s52, 4")
        a("s_add_u32 s44, s44, s45")
        a("s_mul_i32 s44, s44, 1280")
        a("s_mul_i32 s45, s33, 160")
        a("s_add_u32 s44, s44, s45")
        a("s_mov_b32 s47, 6554")
        a("s_movk_i32 s48, 1280")
        a("s_mul_i32 s45, s53, 80")
        a("v_add_u32 v12, s45, v0")
        a("v_lshlrev_b32 v11, 4, v12")
        a("v_add_u32 v11, s43, v11")
        for j in range(NCH):
            if j: a("v_add_u32 v12, 64, v12")
            a("v_mul_lo_u32 v13, v12, s47")
            a("v_lshrrev_b32 v13, 16, v13")
            a("v_mul_u32_u24 v14, 10, v13")
            a("v_sub_u32 v14, v12, v14")
            a("v_mul_lo_u32 v13, v13, s48")
            a(f"v_lshl_add_u32 v{16+j}, v14, 4, v13")
        a("s_waitcnt lgkmcnt(0)")
        if NW == 8: a("s_barrier")
        for j in range(NCH):
            a(f"ds_read_b128 {vr(120+4*j,4)}, v11 offset:{1024*j}")
        a("s_waitcnt lgkmcnt(0)")
        for j in range(NCH):
            if j == NCH - 1:
                a(f"v_cmp_gt_u32 vcc, {LASTN}, v0")
                a("s_and_saveexec_b64 s[46:47], vcc")
            a(f"buffer_store_dwordx4 {vr(120+4*j,4)}, v{16+j}, s[16:19], s44 offen")
    a.label(f"L_{name}_fin")
    S.stamp(); S.real(); S.flush()
    a.label(f"L_{name}_end")
    a("s_endpgm")
    kdt = kd(name, NV + 80).replace(f".amdhsa_accum_offset {NV+80}", f".amdhsa_accum_offset {NV}")
    return name, a.text(), kdt, f"; @launch kernel={name} grid=({NWG},1,1) block=({64*NW},1,1) lds={LDS}"


def gen_mlpA(which):
    norm = which == 1
    name = "mlp1_kernel" if norm else "mlp2_0_kernel"
    a = Asm()
    if not norm:
        header(a, "mlp2_1_kernel")
        a("s_mov_b32 s99, 1")
        a("s_branch L_mlp2_body")
        header(a, name)
        a("s_mov_b32 s99, 0")
        a.label("L_mlp2_body")
    else:
        header(a, name)
    D = 8
    NH = 32 if norm else 28
    NS = NH // 2
    DX = 4
    RINGH = D * 8192
    TAB = 2 * RINGH
    RED = 0
    TR = 32768
    LDS = TAB + (16384 if norm else 0)
    NWG = 216 if norm else 256
    WSTR = 3456 if norm else 4096
    WBYTES = 2048 * 1728 * 2
    XDT = 65536 if norm else GDT
    XOFF = X1T_OFF if norm else GF_OFF
    a(f"s_cmp_ge_u32 s2, {NWG}")
    a(f"s_cbranch_scc1 L_{name}_end")
    S = Stamper(a, 2 + which, 16); S.real(); S.stamp()
    a(f"s_load_dwordx4 s[4:7], s[0:1], {48 if norm else 64}")
    a(f"s_load_dwordx2 s[12:13], s[0:1], 96")
    if norm:
        a(f"s_load_dwordx2 s[8:9], s[0:1], 64")
    else:
        a(f"s_load_dwordx2 s[8:9], s[0:1], 80")
        a(f"s_load_dwordx2 s[10:11], s[0:1], 8")
    a("v_mov_b32 v40, v0")
    a("v_lshrrev_b32 v1, 6, v0")
    a("v_and_b32 v0, 63, v0")
    a("v_readfirstlane_b32 s32, v1")
    if norm:
        a("s_and_b32 s33, s2, 7")
        a(f"s_mul_i32 s33, s33, {NWG//8}")
        a("s_lshr_b32 s34, s2, 3")
        a("s_add_u32 s33, s33, s34")
        a("s_lshr_b32 s34, s33, 3")
        a("s_and_b32 s33, s33, 7")
    else:
        a("s_and_b32 s34, s2, 7")
        a("s_lshr_b32 s33, s2, 3")
        a("s_and_b32 s33, s33, 3")
        a("s_lshl_b32 s33, s33, 3")
        a("s_add_u32 s34, s34, s33")
        a("s_lshr_b32 s33, s2, 5")
    a("v_and_b32 v1, 15, v0")
    a("v_lshrrev_b32 v2, 4, v0")
    a("v_lshlrev_b32 v3, 4, v0")
    a("s_cmp_ge_u32 s32, 10")
    a(f"s_cbranch_scc1 L_{name}_prod")
    a("s_cmp_ge_u32 s32, 5")
    a("s_cselect_b32 s53, 1, 0")
    a("s_mul_i32 s52, s53, 5")
    a("s_sub_u32 s52, s32, s52")
    a("s_mul_i32 s41, s33, 5")
    a("s_add_u32 s41, s41, s52")
    a(f"s_mul_i32 s41, s41, {XDT}")
    a(f"s_mul_i32 s42, s53, {NH*1024}")
    a("s_add_u32 s41, s41, s42")
    a(f"s_add_u32 s41, s41, {XOFF}")
    a("s_waitcnt lgkmcnt(0)")
    srd(a, 28, 12, 13, WS_SIZE)
    XR = 48
    XN = 80
    WF = 96
    ACC = 24
    EB = 16
    NV = 168
    TBL = 104
    TR0 = 96
    def table_compute():
        a("v_lshlrev_b32 v4, 3, v40")
        a(f"s_mov_b32 s43, {ST_OFF}")
        for i2 in range(4):
            if i2 == 3:
                a("v_cmp_gt_u32 vcc, 128, v40")
                a("s_and_saveexec_b64 s[50:51], vcc")
            a(f"buffer_load_dwordx2 {vr(TR0+2*i2,2)}, v4, s[28:31], s43 offen")
            if i2 < 3: a(f"s_add_u32 s43, s43, {640*8}")
        a("s_mov_b64 exec, -1")
    def table_finish(nyounger):
        a(f"s_waitcnt vmcnt({nyounger})")
        a("v_lshlrev_b32 v4, 2, v40")
        a(f"v_add_u32 v4, {TAB}, v4")
        a(f"s_mov_b32 s47, {hex(f2u(1.0/640))}")
        a(f"s_mov_b32 s48, {hex(f2u(1e-5))}")
        for i2 in range(4):
            m = TR0 + 2 * i2; q = m + 1; T_ = 110
            a(f"v_mul_f32 v{m}, s47, v{m}")
            a(f"v_mul_f32 v{q}, s47, v{q}")
            a(f"v_fma_f32 v{q}, -v{m}, v{m}, v{q}")
            a(f"v_max_f32 v{q}, 0, v{q}")
            a(f"v_add_f32 v{T_}, s48, v{q}")
            a(f"v_rsq_f32 v{T_}, v{T_}")
            a("s_nop 0")
            a(f"v_mul_f32 v{q}, v{q}, v{T_}")
            a(f"v_fma_f32 v{q}, v{q}, v{T_}, s48")
            a(f"v_rsq_f32 v{q}, v{q}")
            a("s_nop 0")
            a(f"v_mul_f32 v{q}, v{q}, v{T_}")
            a(f"v_mul_f32 v{m}, v{m}, v{q}")
            a(f"v_sub_f32 v{m}, 0, v{m}")
            if i2 == 3:
                a("v_cmp_gt_u32 vcc, 128, v40")
                a("s_and_saveexec_b64 s[50:51], vcc")
            a(f"ds_write_b32 v4, v{q} offset:{2560*i2}")
            a(f"ds_write_b32 v4, v{m} offset:{8192+2560*i2}")
        a("s_mov_b64 exec, -1")
        a("s_waitcnt lgkmcnt(0)")
    if norm: table_compute()
    def x_load(st):
        sl = st % DX
        a(f"buffer_load_dwordx4 {vr(XR+8*sl,4)}, v3, s[28:31], s41 offen")
        a(f"buffer_load_dwordx4 {vr(XR+8*sl+4,4)}, v3, s[28:31], s41 offen offset:1024")
        a("s_add_u32 s41, s41, 2048")
    x_load(0)
    srd(a, 24, 6, 7, 1728 * 2 if norm else 2048 * 2)
    a("s_lshl_b32 s43, s34, 7")
    a("s_lshl_b32 s44, s53, 6")
    a("s_add_u32 s43, s43, s44")
    a("v_lshlrev_b32 v10, 3, v2")
    a(f"buffer_load_dwordx2 {vr(EB,2)}, v10, s[24:27], s43 offen")
    a(f"buffer_load_dwordx2 {vr(EB+2,2)}, v10, s[24:27], s43 offen offset:32")
    NE = 2
    if not norm:
        a("s_mul_i32 s43, s33, 5")
        a("s_add_u32 s43, s43, s52")
        a("s_lshl_b32 s43, s43, 16")
        a("s_lshl_b32 s44, s34, 11")
        a("s_add_u32 s43, s43, s44")
        a("s_lshl_b32 s44, s53, 10")
        a("s_add_u32 s43, s43, s44")
        a(f"s_add_u32 s43, s43, {X1T_OFF}")
        a(f"buffer_load_dwordx4 {vr(EB+4,4)}, v3, s[28:31], s43 offen")
        NE = 3
    for st in range(1, DX): x_load(st)
    a("v_lshrrev_b32 v10, 2, v1")
    a("v_lshl_add_u32 v10, v2, 2, v10")
    a("v_lshrrev_b32 v11, 1, v10")
    a("v_and_b32 v11, 3, v11")
    a("v_and_b32 v12, 3, v1")
    a("v_lshlrev_b32 v12, 3, v12")
    a("v_lshl_add_u32 v12, v10, 7, v12")
    a(f"s_mul_i32 s42, s53, {RINGH}")
    a("v_add_u32 v12, s42, v12")
    for nt in range(4):
        a(f"v_xor_b32 v13, {nt}, v11")
        a(f"v_lshl_add_u32 v{6+nt}, v13, 5, v12")
    for r in range(16): a(f"v_mov_b32 v{ACC+r}, 0")
    a("s_mov_b32 s46, 0xffff0000")
    if norm:
        table_finish(2 * DX + NE)
        a("v_lshlrev_b32 v15, 4, v2")
        a(f"s_mul_i32 s43, s53, {NH*128}")
        a(f"s_add_u32 s43, s43, {TAB}")
        a("v_add_u32 v15, s43, v15")
    TT = 160
    def wreads(st, k2s=(0, 1)):
        ring = st % D; wb = WF + 32 * (st % 2)
        for k2 in k2s:
            for nt in range(4):
                for half in range(2):
                    a(f"ds_read_b64_tr_b16 {vr(wb+16*k2+4*nt+2*half,2)}, v{6+nt} offset:{ring*8192+k2*4096+half*2048}")
    def norm_pieces(st):
        sl = st % DX; xn = XN + 8 * (st % 2)
        out = []
        for k2 in range(2):
            for hh in range(2):
                off = (2 * st + k2) * 128 + 64 * hh
                rd = [f"ds_read_b128 {vr(TT,4)}, v15 offset:{off}", f"ds_read_b128 {vr(TT+4,4)}, v15 offset:{off+8192}"]
                ops = []
                for d2 in range(2):
                    dw = 2 * hh + d2
                    r = XR + 8 * sl + 4 * k2 + dw
                    t0 = 42 + 2 * d2; t1 = t0 + 1
                    ops += [f"v_lshlrev_b32 v{t0}, 16, v{r}", f"v_and_b32 v{t1}, s46, v{r}",
                            f"v_fma_f32 v{t0}, v{t0}, v{TT+2*d2}, v{TT+4+2*d2}",
                            f"v_fma_f32 v{t1}, v{t1}, v{TT+2*d2+1}, v{TT+4+2*d2+1}",
                            f"v_cvt_pk_bf16_f32 v{xn+4*k2+dw}, v{t0}, v{t1}"]
                out.append((rd, ops))
        return out
    def xwait(st):
        issued = min(st + DX - 1 - (1 if True else 0) + 0, NS - 1)
        return issued
    a("s_barrier")
    S.stamp()
    wreads(0)
    a(f"s_waitcnt vmcnt({2*(DX-1)+NE})")
    if norm:
        for rd, ops in norm_pieces(0):
            for x in rd: a(x)
            a("s_waitcnt lgkmcnt(0)")
            for x in ops: a(x)
        if DX < NS: x_load(DX)
    hi = DX if (norm and DX < NS) else DX - 1
    for st in range(NS):
        sl = st % DX; wb = WF + 32 * (st % 2)
        nxt = st + 1 < NS
        a("s_waitcnt lgkmcnt(0)")
        if nxt:
            a("s_barrier")
            if not norm: wreads(st + 1)
        ml = []
        for k2 in range(2):
            x = (XN + 8 * (st % 2) + 4 * k2) if norm else (XR + 8 * sl + 4 * k2)
            for nt in range(4): ml.append((ACC + 4 * nt, wb + 16 * k2 + 4 * nt, x))
        if norm:
            if nxt:
                a(f"s_waitcnt vmcnt({2*(hi-(st+1))})")
                pcs = norm_pieces(st + 1)
                for pi, (rd, ops) in enumerate(pcs):
                    for x in rd: a(x)
                    if pi < 2: wreads(st + 1, (pi,))
                    for m in ml[2*pi:2*pi+2]: mfma16(a, *m)
                    a(f"s_waitcnt lgkmcnt({8 if pi < 2 else 0})")
                    for x in ops: a(x)
                if st + 1 + DX < NS:
                    x_load(st + 1 + DX); hi = st + 1 + DX
            else:
                for m in ml: mfma16(a, *m)
        else:
            if st > 0: a(f"s_waitcnt vmcnt({2*(hi-st)})")
            for m in ml: mfma16(a, *m)
            if st + DX < NS:
                x_load(st + DX); hi = st + DX
    S.stamp()
    a("s_nop 7")
    a("s_barrier")
    a("s_lshl_b32 s43, s32, 11")
    a("v_add_u32 v10, s43, v3")
    a("s_cmp_eq_u32 s53, 0")
    a(f"s_cbranch_scc1 L_{name}_x0")
    a(f"ds_write_b128 v10, {vr(ACC,4)}")
    a(f"ds_write_b128 v10, {vr(ACC+4,4)} offset:1024")
    for r in range(8): a(f"v_mov_b32 v{ACC+r}, v{ACC+8+r}")
    a(f"s_sub_u32 s43, s43, {5*2048}")
    a(f"s_branch L_{name}_x1")
    a.label(f"L_{name}_x0")
    a(f"ds_write_b128 v10, {vr(ACC+8,4)}")
    a(f"ds_write_b128 v10, {vr(ACC+12,4)} offset:1024")
    a(f"s_add_u32 s43, s43, {5*2048}")
    a.label(f"L_{name}_x1")
    a("v_add_u32 v10, s43, v3")
    a("s_waitcnt lgkmcnt(0)")
    a("s_barrier")
    a(f"ds_read_b128 {vr(48,4)}, v10")
    a(f"ds_read_b128 {vr(52,4)}, v10 offset:1024")
    BI = 56
    for j in range(2):
        a(f"v_lshlrev_b32 v{BI+4*j}, 16, v{EB+2*j}")
        a(f"v_and_b32 v{BI+4*j+1}, s46, v{EB+2*j}")
        a(f"v_lshlrev_b32 v{BI+4*j+2}, 16, v{EB+2*j+1}")
        a(f"v_and_b32 v{BI+4*j+3}, s46, v{EB+2*j+1}")
    a("s_waitcnt lgkmcnt(0)")
    for r in range(8):
        a(f"v_add_f32 v{ACC+r}, v{ACC+r}, v{48+r}")
        a(f"v_add_f32 v{ACC+r}, v{ACC+r}, v{BI+r}")
    E0 = 64
    if norm:
        c1 = -2.0 * math.log2(math.e) * 0.7978845608028654
        c2 = c1 * 0.044715
        a(f"s_mov_b32 s47, {hex(f2u(c1))}")
        a(f"s_mov_b32 s48, {hex(f2u(c2))}")
        a("v_mov_b32 v44, s47")
        for r in range(8): a(f"v_mul_f32 v{E0+r}, v{ACC+r}, v{ACC+r}")
        for r in range(8): a(f"v_fma_f32 v{E0+r}, v{E0+r}, s48, v44")
        for r in range(8): a(f"v_mul_f32 v{E0+r}, v{E0+r}, v{ACC+r}")
        for r in range(8): a(f"v_exp_f32 v{E0+r}, v{E0+r}")
        for r in range(8): a(f"v_add_f32 v{E0+r}, 1.0, v{E0+r}")
        for r in range(8): a(f"v_rcp_f32 v{E0+r}, v{E0+r}")
        for r in range(8): a(f"v_mul_f32 v{ACC+r}, v{ACC+r}, v{E0+r}")
        for r in range(4): a(f"v_cvt_pk_bf16_f32 v{E0+8+r}, v{ACC+2*r}, v{ACC+2*r+1}")
        a("s_mul_i32 s43, s33, 5")
        a("s_add_u32 s43, s43, s52")
        a(f"s_mul_i32 s43, s43, {GDT}")
        a("s_lshl_b32 s44, s34, 11")
        a("s_add_u32 s45, s43, s44")
        a("s_lshl_b32 s44, s53, 10")
        a("s_add_u32 s45, s45, s44")
        a(f"s_add_u32 s45, s45, {GF_OFF}")
        a(f"buffer_store_dwordx4 {vr(E0+8,4)}, v3, s[28:31], s45 offen")
        a("s_cmp_lg_u32 s34, 26")
        a(f"s_cbranch_scc1 L_{name}_fin")
        a("s_add_u32 s45, s45, 2048")
        for r in range(4): a(f"v_mov_b32 v{E0+r}, 0")
        a(f"buffer_store_dwordx4 {vr(E0,4)}, v3, s[28:31], s45 offen")
    else:
        a(f"s_mul_i32 s43, s53, {32*160}")
        a("s_lshl_b32 s44, s52, 5")
        a("s_add_u32 s43, s43, s44")
        a(f"s_add_u32 s43, s43, {TR}")
        a("v_mul_u32_u24 v10, 640, v2")
        a("v_lshl_add_u32 v10, v1, 1, v10")
        a("v_add_u32 v10, s43, v10")
        for j in range(2):
            for h in range(2):
                rr = EB + 4 + 2 * j + h
                u = ACC + 4 * j + 2 * h
                a(f"v_lshlrev_b32 v{E0}, 16, v{rr}")
                a(f"v_and_b32 v{E0+1}, s46, v{rr}")
                a(f"v_add_f32 v{E0}, v{E0}, v{u}")
                a(f"v_add_f32 v{E0+1}, v{E0+1}, v{u+1}")
                a(f"v_cvt_pk_bf16_f32 v{E0+2+h}, v{E0}, v{E0+1}")
                a(f"ds_write_b16 v10, v{E0+2+h} offset:{(16*j+2*h)*160}")
                a(f"ds_write_b16_d16_hi v10, v{E0+2+h} offset:{(16*j+2*h+1)*160}")
        a(f"s_add_u32 s14, s12, {hex(X2_OFF)}")
        a("s_addc_u32 s15, s13, 0")
        a("s_cmp_eq_u32 s99, 0")
        a("s_cselect_b32 s8, s14, s8")
        a("s_cselect_b32 s9, s15, s9")
        srd(a, 16, 8, 9, XBYTES)
        a("s_mul_i32 s44, s34, 81920")
        a("s_mul_i32 s45, s33, 160")
        a("s_add_u32 s44, s44, s45")
        a("s_mov_b32 s47, 6554")
        a("s_movk_i32 s48, 1280")
        a("v_mul_lo_u32 v13, v40, s47")
        a("v_lshrrev_b32 v13, 16, v13")
        a("v_mul_u32_u24 v14, 10, v13")
        a("v_sub_u32 v14, v40, v14")
        a("v_mul_lo_u32 v13, v13, s48")
        a("v_lshl_add_u32 v13, v14, 4, v13")
        a("v_lshlrev_b32 v11, 4, v40")
        a("s_waitcnt lgkmcnt(0)")
        a("s_barrier")
        a(f"ds_read_b128 {vr(72,4)}, v11 offset:{TR}")
        a("s_waitcnt lgkmcnt(0)")
        a(f"buffer_store_dwordx4 {vr(72,4)}, v13, s[16:19], s44 offen")
    a(f"s_branch L_{name}_fin")
    a.label(f"L_{name}_prod")
    a("s_sub_u32 s53, s32, 10")
    a("v_lshrrev_b32 v10, 3, v0")
    a("v_lshrrev_b32 v11, 1, v10")
    a("v_and_b32 v11, 3, v11")
    a("v_lshlrev_b32 v11, 1, v11")
    a("v_and_b32 v12, 7, v0")
    a("v_xor_b32 v12, v12, v11")
    a(f"s_movk_i32 s38, {WSTR}")
    a("v_mul_lo_u32 v5, v10, s38")
    a("v_lshl_add_u32 v44, v12, 4, v5")
    for jj in range(1, 4): a(f"v_add_u32 v{44+jj}, {jj*(8*WSTR-1024)}, v44")
    a(f"s_mul_i32 s40, s53, {NH*32*WSTR}")
    a("s_lshl_b32 s41, s34, 7")
    a("s_add_u32 s40, s40, s41")
    a(f"s_mul_i32 s42, s53, {RINGH}")
    a("s_waitcnt lgkmcnt(0)")
    srd(a, 20, 4, 5, WBYTES)
    srd(a, 28, 12, 13, WS_SIZE)
    def w_stage(st):
        ring = st % D
        for k2 in range(2):
            a(f"s_add_u32 s44, s42, {ring*8192 + k2*4096}")
            a("s_mov_b32 m0, s44")
            a("s_nop 0")
            for jj in range(4):
                a(f"buffer_load_dwordx4 v{44+jj}, s[20:23], s40 offen offset:{jj*1024} lds")
            a(f"s_add_u32 s40, s40, {32*WSTR}")
    w_stage(0); w_stage(1); w_stage(2)
    hiw = 2
    a(f"s_waitcnt vmcnt({8*hiw})")
    a("s_barrier")
    for k in range(2):
        w_stage(hiw + 1); hiw += 1
    for st in range(NS - 1):
        a(f"s_waitcnt vmcnt({8*(hiw-(st+1))})")
        a("s_barrier")
        for k in range(2):
            if hiw + 1 < NS and hiw + 1 <= st + D:
                w_stage(hiw + 1); hiw += 1
    a("s_lshr_b32 s43, s2, 3")
    a("s_lshl_b32 s43, s43, 1")
    a("s_add_u32 s43, s43, s53")
    if norm:
        srd(a, 56, 8, 9, WBYTES)
        a(f"s_mul_i32 s43, s43, {32*4096}")
        a("s_and_b32 s44, s2, 7")
        a("s_lshl_b32 s44, s44, 7")
        a("s_add_u32 s43, s43, s44")
        a("v_lshrrev_b32 v10, 3, v0")
        a("v_lshlrev_b32 v10, 12, v10")
        a("v_and_b32 v11, 7, v0")
        a("v_lshl_add_u32 v10, v11, 4, v10")
        for rg in range(4):
            for j in range(4):
                a(f"buffer_load_dwordx4 v[20:23], v10, s[56:59], s43 offen offset:{1024*j}")
            a(f"s_add_u32 s43, s43, {8*4096}")
    else:
        a("s_cmp_lg_u32 s99, 0")
        a(f"s_cbranch_scc1 L_{name}_nopf")
        srd(a, 56, 10, 11, 819200)
        a("s_mul_i32 s43, s43, 12800")
        for j in range(13):
            a(f"buffer_load_dwordx4 v[20:23], v3, s[56:59], s43 offen")
            a("s_add_u32 s43, s43, 1024")
        a.label(f"L_{name}_nopf")
    a("s_mov_b32 s32, s53")
    for k in range(2):
        code_prefetch(a, 4, 12, 20)
        a("s_add_u32 s32, s32, 2")
    a("s_barrier"); a("s_barrier")
    if not norm: a("s_barrier")
    a(f"s_branch L_{name}_end")
    a.label(f"L_{name}_fin")
    S.stamp(); S.real(); S.flush()
    a.label(f"L_{name}_end")
    a("s_endpgm")
    ll = lambda n: f"; @launch kernel={n} grid=({NWG},1,1) block=(768,1,1) lds={LDS}"
    if norm:
        k = (name, a.text(), kd(name, NV), ll(name))
        return k, k
    return (name, a.text(), kd(name, NV) + kd("mlp2_1_kernel", NV), ll(name)), ("mlp2_1_kernel", "", "", ll("mlp2_1_kernel"))

if "--stamps" in sys.argv:
    STAMPS = True; sys.argv.remove("--stamps")
KERNELS = []
QKV = gen_qkv()
ATT = gen_attn()
m = gen_mlp(1, 0); M1 = (m, m)
if os.environ.get("MLPA", "1") == "1":
    M2 = gen_mlpA(2)
else:
    M2 = (gen_mlp(2, 0), gen_mlp(2, 1))
for L in range(2):
    KERNELS += [QKV[L], ATT[L], M1[L], M2[L]]

def emit(kernels, path, order=None):
    launches = [k[3] for k in kernels] if order is None else order
    hdr = open("interleave_layers__grouped_kv_mqa__mixer_token_mlp__prompt.s.ref").read().split("; Override")[0]
    out = hdr + "\n".join(launches) + "\n"
    out += '.amdgcn_target "amdgcn-amd-amdhsa--gfx950"\n.text\n.p2align 8\nL_text_start:\n'
    seen = set()
    for k in kernels:
        if k[0] in seen: continue
        seen.add(k[0]); out += k[1]
    out += 'L_text_end:\n'
    out += '.section .rodata,"a"\n'
    seen = set()
    for k in kernels:
        if k[0] in seen: continue
        seen.add(k[0]); out += k[2]
    open(path, "w").write(out)

if __name__ == "__main__":
    emit(KERNELS, sys.argv[1] if len(sys.argv) > 1 else "k.s")
```

```python
import struct, sys, math, os

def f2u(x): return struct.unpack("<I", struct.pack("<f", x))[0]

QT_OFF   = 0
KV_OFF   = 0x300000
OF_OFF   = 0x400000
X1T_OFF  = 0x700000
ST_OFF   = 0xA00000
GF_OFF   = 0xB00000
X2_OFF   = 0xE00000
CNT_OFF  = 0xA80000
WS_SIZE  = 0x10000000
GDT = 56 * 1024
VHS = 352; VCS = 704
KVT = 1280 + 2 * VCS
XBYTES = 2048 * 640 * 2

class Asm:
    def __init__(self): self.l = []
    def __call__(self, s):
        for x in s.strip("\n").split("\n"):
            self.l.append("    " + x.strip())
    def label(self, n): self.l.append(n + ":")
    def raw(self, s): self.l.append(s)
    def text(self): return "\n".join(self.l) + "\n"

def vr(b, n=1): return f"v{b}" if n == 1 else f"v[{b}:{b+n-1}]"
def sr(b, n=1): return f"s{b}" if n == 1 else f"s[{b}:{b+n-1}]"

def srd(a, d, lo, hi, nbytes):
    a(f"s_mov_b32 s{d}, s{lo}")
    a(f"s_and_b32 s{d+1}, s{hi}, 0xffff")
    a(f"s_mov_b32 s{d+2}, {hex(nbytes)}")
    a(f"s_mov_b32 s{d+3}, 0x00020000")

def header(a, name):
    a.raw(f".globl {name}\n.p2align 8\n.type {name},@function\n{name}:")

def kd(name, nv, ns=102):
    acc = (nv + 3) // 4 * 4
    return f""".p2align 6
.amdhsa_kernel {name}
  .amdhsa_next_free_vgpr {nv}
  .amdhsa_next_free_sgpr {ns}
  .amdhsa_accum_offset {acc}
  .amdhsa_group_segment_fixed_size 0
  .amdhsa_kernarg_size 104
  .amdhsa_user_sgpr_count 2
  .amdhsa_user_sgpr_kernarg_segment_ptr 1
  .amdhsa_system_sgpr_workgroup_id_x 1
.end_amdhsa_kernel
"""

STAMPS = False
DBG_OFF = 0x8000000
class Stamper:
    def __init__(self, a, kidx, maxw): self.a = a; self.n = 0; self.kidx = kidx; self.maxw = maxw
    def stamp(self):
        if not STAMPS: return
        self.a(f"s_memtime s[{72+2*self.n}:{73+2*self.n}]"); self.n += 1
    def real(self):
        if not STAMPS: return
        self.a(f"s_memrealtime s[{72+2*self.n}:{73+2*self.n}]"); self.n += 1
    def flush(self, wave_s="s32", srd_="s[28:31]"):
        if not STAMPS: return
        a = self.a
        a("s_mov_b64 exec, -1")
        a("s_waitcnt lgkmcnt(0) vmcnt(0)")
        a(f"s_mul_i32 s58, s2, {self.maxw}")
        a(f"s_add_u32 s58, s58, {wave_s}")
        a("s_lshl_b32 s58, s58, 6")
        a(f"s_add_u32 s58, s58, {DBG_OFF + self.kidx * 0x100000}")
        a("v_mov_b32 v0, 0")
        for i in range(self.n):
            a(f"v_mov_b32 v1, s{72+2*i}")
            a(f"buffer_store_dword v1, v0, {srd_}, s58 offen offset:{4*i}")
        a("s_waitcnt vmcnt(0)")

_pfn = [0]
def code_prefetch(a, nw, vaddr, vdst):
    if os.environ.get("CODEPF", "1") != "1": return
    _pfn[0] += 1
    L = f"L_pc_ref{_pfn[0]}"
    a("s_getpc_b64 s[90:91]")
    a.label(L)
    a(f"s_sub_u32 s90, s90, {L} - L_text_start")
    a("s_subb_u32 s91, s91, 0")
    a("s_lshr_b32 s92, s2, 3")
    a(f"s_mul_i32 s92, s92, {nw}")
    a("s_add_u32 s92, s92, s32")
    a("s_lshl_b32 s92, s92, 9")
    a("s_min_u32 s92, s92, L_text_end - L_text_start - 512")
    a("s_add_u32 s90, s90, s92")
    a("s_addc_u32 s91, s91, 0")
    a(f"v_lshlrev_b32 v{vaddr}, 3, v0")
    a(f"global_load_dwordx2 v[{vdst}:{vdst+1}], v{vaddr}, s[90:91]")

def mfma16(a, d, x, y, c=None):
    c = vr(d, 4) if c is None else c
    a(f"v_mfma_f32_16x16x32_bf16 {vr(d,4)}, {vr(x,4)}, {vr(y,4)}, {c}")

def gen_qkv():
    name = "qkv0_kernel"
    a = Asm()
    header(a, "qkv1_kernel")
    a("s_mov_b32 s99, 1")
    a("s_branch L_qkv_body")
    header(a, name)
    a("s_mov_b32 s99, 0")
    a.label("L_qkv_body")
    WB = 0; WST = 20480
    XB = 61440; XST = 16384
    WKV = 110592
    MISC = 136192
    LDS = MISC + 512
    a(f"s_cmp_ge_u32 s2, 256")
    a(f"s_cbranch_scc1 L_{name}_end")
    S = Stamper(a, 0, 8); S.real(); S.stamp()
    a(f"s_load_dwordx4 s[4:7], s[0:1], 0")
    a(f"s_load_dwordx4 s[8:11], s[0:1], 16")
    a(f"s_load_dwordx2 s[12:13], s[0:1], 96")
    a("v_lshrrev_b32 v1, 6, v0")
    a("v_and_b32 v0, 63, v0")
    a("v_readfirstlane_b32 s32, v1")
    a("s_and_b32 s33, s2, 7")
    a("s_lshr_b32 s34, s2, 3")
    a("s_and_b32 s34, s34, 3")
    a("s_lshl_b32 s34, s34, 3")
    a("s_add_u32 s33, s33, s34")
    a("s_lshr_b32 s34, s2, 5")
    a("s_movk_i32 s38, 1280")
    a("s_cmp_ge_u32 s32, 4")
    a(f"s_cbranch_scc1 L_{name}_p0")
    a("v_and_b32 v1, 15, v0")
    a("v_lshrrev_b32 v2, 4, v0")
    a("s_lshl_b32 s42, s32, 12")
    a("v_lshrrev_b32 v10, 1, v1")
    a("v_and_b32 v10, 7, v10")
    a("v_lshrrev_b32 v11, 1, v2")
    a("v_and_b32 v12, 1, v2")
    a("v_lshlrev_b32 v13, 7, v1")
    a("v_lshl_add_u32 v13, v12, 3, v13")
    a("v_add_u32 v13, s42, v13")
    a(f"v_add_u32 v13, {XB}, v13")
    for h in range(2):
        for sec in range(2):
            a(f"v_add_u32 v15, {4*h + 2*sec}, v11")
            a("v_xor_b32 v15, v15, v10")
            a(f"v_lshl_add_u32 v{16 + 2*h + sec}, v15, 4, v13")
    a("v_lshrrev_b32 v10, 2, v1")
    a("v_lshl_add_u32 v10, v2, 2, v10")
    a("v_and_b32 v11, 3, v1")
    a("v_lshlrev_b32 v11, 3, v11")
    a("v_mul_u32_u24 v12, 160, v10")
    a("v_add_u32 v20, v12, v11")
    a("s_lshl_b32 s43, s32, 5")
    a("v_add_u32 v21, s43, v20")
    a("v_mul_u32_u24 v12, 40, v10")
    a("v_add_u32 v12, v12, v11")
    a("s_lshr_b32 s43, s34, 1")
    a("s_lshl_b32 s43, s43, 5")
    a(f"s_add_u32 s43, s43, {WKV}")
    a(f"v_add_u32 v22, s43, v12")
    ONES = 24
    ACC = 28
    CS4 = 56; CS5 = 60; CS6 = 64; CSO = 68; RS = 72; GR = 76
    FR = 80
    for r in range(4): a(f"v_mov_b32 v{ONES+r}, 0x3f803f80")
    for r in range(ACC, 80): a(f"v_mov_b32 v{r}, 0")
    a("s_waitcnt lgkmcnt(0)")
    srd(a, 28, 12, 13, WS_SIZE)
    a("s_cmp_ge_u32 s34, 4")
    a(f"s_cbranch_scc1 L_{name}_nokv")
    a("s_bitcmp0_b32 s34, 0")
    a("s_cselect_b32 s14, s8, s10")
    a("s_cselect_b32 s15, s9, s11")
    srd(a, 24, 14, 15, 25600)
    a("v_lshlrev_b32 v14, 4, v0")
    a("s_lshl_b32 s43, s32, 10")
    a.label(f"L_{name}_kvl")
    a(f"s_add_u32 s44, s43, {WKV}")
    a("s_mov_b32 m0, s44")
    a("s_nop 0")
    a("buffer_load_dwordx4 v14, s[24:27], s43 offen lds")
    a("s_add_u32 s43, s43, 4096")
    a("s_cmp_lt_u32 s43, 25600")
    a(f"s_cbranch_scc1 L_{name}_kvl")
    a("s_waitcnt vmcnt(0)")
    a.label(f"L_{name}_nokv")
    a("s_cmp_lt_u32 s34, 4")
    a("s_cselect_b64 vcc, -1, 0")
    a("s_mov_b32 s41, 0")
    a(f"s_mov_b32 s46, {XST}")
    a(f"s_mov_b32 s47, {WST}")
    def reads(ks4, fs):
        b = FR + 36 * fs
        kb = ks4 // 2; h = ks4 % 2
        l = [f"ds_read_b64 {vr(b,2)}, v{16+2*h} offset:{kb*2048}", f"ds_read_b64 {vr(b+2,2)}, v{17+2*h} offset:{kb*2048}"]
        for nt in range(5):
            for half in range(2):
                off = (32 * ks4 + 16 * half) * 160 + 32 * nt
                l.append(f"ds_read_b64_tr_b16 {vr(b+4+4*nt+2*half,2)}, v20 offset:{off}")
        for half in range(2):
            l.append(f"ds_read_b64_tr_b16 {vr(b+32+2*half,2)}, v21 offset:{(32 * ks4 + 16 * half) * 160}")
        return l
    def kvreads(ks4, fs):
        b = FR + 36 * fs
        return [f"ds_read_b64_tr_b16 {vr(b+24+2*half,2)}, v22 offset:{(32 * ks4 + 16 * half) * 40}" for half in range(2)]
    def inter(ml, rl, per):
        for m in ml:
            mfma16(a, *m)
            for _ in range(per):
                if rl: a(rl.pop(0))
        for x in rl: a(x)
    a.label(f"L_{name}_stage")
    a("s_barrier")
    for x in reads(0, 0): a(x)
    a(f"s_cbranch_vccz L_{name}_k0")
    for x in kvreads(0, 0): a(x)
    a.label(f"L_{name}_k0")
    for ks4 in range(4):
        fs = ks4 % 2; b = FR + 36 * fs
        a("s_waitcnt lgkmcnt(0)")
        ml = [(ACC + 4 * nt, b + 4 + 4 * nt, b) for nt in range(5)] + [(CS4, b + 4 + 16, ONES), (CSO, b + 32, ONES), (RS, ONES, b), (GR, b, b)]
        inter(ml, reads(ks4 + 1, 1 - fs) if ks4 < 3 else [], 2)
        a(f"s_cbranch_vccz L_{name}_k{ks4+1}")
        ml = [(ACC + 20, b + 24, b), (CS5, b + 24, ONES)]
        inter(ml, kvreads(ks4 + 1, 1 - fs) if ks4 < 3 else [], 1)
        a.label(f"L_{name}_k{ks4+1}")
    a("s_cmp_eq_u32 s41, 2")
    a(f"s_cselect_b32 s43, {(-2*XST) & 0xffffffff}, s46")
    a(f"s_cselect_b32 s44, {(-2*WST) & 0xffffffff}, s47")
    for r in range(4): a(f"v_add_u32 v{16+r}, s43, v{16+r}")
    a("v_add_u32 v20, s44, v20")
    a("v_add_u32 v21, s44, v21")
    a(f"v_add_u32 v22, {128*40}, v22")
    a("s_add_u32 s41, s41, 1")
    a("s_cmp_lt_u32 s41, 5")
    a(f"s_cbranch_scc1 L_{name}_stage")
    a(f"s_branch L_{name}_epi")
    a.label(f"L_{name}_p0")
    a("s_sub_u32 s32, s32, 4")
    a("s_mul_i32 s36, s34, 160")
    a("s_mov_b32 s37, 6554")
    for r in range(5):
        a(f"v_add_u32 v10, {64*r}, v0")
        a("v_mul_lo_u32 v11, v10, s37")
        a("v_lshrrev_b32 v11, 16, v11")
        a("v_mul_u32_u24 v12, 10, v11")
        a("v_sub_u32 v12, v10, v12")
        a("v_mul_lo_u32 v11, v11, s38")
        a("v_lshl_add_u32 v11, v12, 4, v11")
        a(f"v_add_u32 v11, s36, v11")
        a(f"v_subrev_u32 v{4+r}, {1024*(r%4)}, v11")
    a("v_lshrrev_b32 v10, 3, v0")
    a("v_and_b32 v11, 7, v0")
    for rh in range(2):
        a(f"v_add_u32 v12, {8*rh}, v10")
        a("v_lshrrev_b32 v13, 1, v12")
        a("v_and_b32 v13, 7, v13")
        a("v_xor_b32 v13, v13, v11")
        a("v_mul_lo_u32 v12, v12, s38")
        a(f"v_lshl_add_u32 v12, v13, 4, v12")
        for kb in range(2):
            a(f"v_add_u32 v{16+2*kb+rh}, {(kb*128 - kb*2048 - rh*1024 + 4096)}, v12")
    a(f"s_mul_i32 s40, s32, {32*1280}")
    a("s_mul_i32 s41, s32, 5120")
    a("s_mul_i32 s42, s33, 81920")
    a(f"s_mul_i32 s43, s32, {16*1280}")
    a("s_add_u32 s42, s42, s43")
    a("s_lshl_b32 s43, s32, 12")
    a(f"s_add_u32 s43, s43, {XB}")
    a("s_waitcnt lgkmcnt(0)")
    srd(a, 20, 6, 7, 819200)
    a(f"s_add_u32 s14, s12, {hex(X2_OFF)}")
    a("s_addc_u32 s15, s13, 0")
    a("s_cmp_eq_u32 s99, 0")
    a("s_cselect_b32 s4, s4, s14")
    a("s_cselect_b32 s5, s5, s15")
    a("s_sub_u32 s4, s4, 4096")
    a("s_subb_u32 s5, s5, 0")
    srd(a, 16, 4, 5, XBYTES + 4096)
    def p_stage():
        a("s_mov_b32 m0, s43")
        a("s_add_u32 s45, s41, 4096")
        for kb in range(2):
            for rh in range(2):
                a(f"buffer_load_dwordx4 v{16+2*kb+rh}, s[16:19], s42 offen offset:{kb*2048+rh*1024} lds")
        a("s_mov_b32 m0, s41")
        a("s_add_u32 s42, s42, 256")
        for r in range(4):
            a(f"buffer_load_dwordx4 v{4+r}, s[20:23], s40 offen offset:{1024*r} lds")
        a("s_mov_b32 m0, s45")
        a(f"s_add_u32 s41, s41, {WST}")
        a("buffer_load_dwordx4 v8, s[20:23], s40 offen lds")
        a(f"s_add_u32 s40, s40, {128*1280}")
        a(f"s_add_u32 s43, s43, {XST}")
    p_stage()
    a("s_cmp_lg_u32 s99, 0")
    a(f"s_cbranch_scc1 L_{name}_ncp")
    code_prefetch(a, 4, 20, 22)
    a.label(f"L_{name}_ncp")
    p_stage(); p_stage()
    a(f"s_sub_u32 s41, s41, {3*WST}")
    a(f"s_sub_u32 s43, s43, {3*XST}")
    a("s_waitcnt vmcnt(18)"); a("s_barrier")
    a("s_waitcnt vmcnt(9)"); a("s_barrier")
    p_stage()
    a("s_waitcnt vmcnt(9)"); a("s_barrier")
    p_stage()
    a("s_waitcnt vmcnt(9)"); a("s_barrier")
    a("s_waitcnt vmcnt(0)"); a("s_barrier")
    a("s_barrier")
    a(f"s_branch L_{name}_end")
    a.label(f"L_{name}_epi")
    S.stamp()
    a("s_nop 7")
    a("s_nop 7")
    a("v_lshlrev_b32 v10, 4, v2")
    a("s_lshl_b32 s43, s32, 6")
    a(f"s_add_u32 s43, s43, {MISC}")
    a("v_add_u32 v11, s43, v10")
    a("v_cmp_eq_u32 vcc, 0, v1")
    a("s_and_saveexec_b64 s[46:47], vcc")
    a(f"ds_write_b128 v11, {vr(CSO,4)}")
    a("s_mov_b64 exec, s[46:47]")
    a("v_and_b32 v12, 3, v1")
    a(f"v_mov_b32 v13, v{GR}")
    for r in range(1, 4):
        a(f"v_cmp_eq_u32 vcc, {r}, v12")
        a("s_nop 1")
        a(f"v_cndmask_b32 v13, v13, v{GR+r}, vcc")
    a("v_lshrrev_b32 v12, 2, v1")
    a("v_lshl_add_u32 v12, v12, 4, v1")
    a("v_lshlrev_b32 v12, 2, v12")
    a("ds_bpermute_b32 v13, v12, v13")
    a("s_waitcnt lgkmcnt(0)")
    a("s_barrier")
    a(f"v_add_u32 v11, {MISC}, v10")
    CSX = FR
    for nt in range(4): a(f"ds_read_b128 {vr(CSX+4*nt,4)}, v11 offset:{64*nt}")
    a(f"s_mov_b32 s43, {hex(f2u(1.0/640))}")
    a(f"v_mul_f32 v14, s43, v{RS}")
    a("v_mul_f32 v13, s43, v13")
    a("v_fma_f32 v13, -v14, v14, v13")
    a("v_max_f32 v13, 0, v13")
    a(f"v_add_f32 v13, {hex(f2u(1e-5))}, v13")
    a("v_rsq_f32 v15, v13")
    a("s_nop 0")
    qs = (20 ** -0.5) * math.log2(math.e)
    a(f"v_mul_f32 v23, {hex(f2u(qs))}, v15")
    a("s_waitcnt lgkmcnt(0)")
    a("s_lshl_b32 s43, s33, 2")
    a("s_add_u32 s43, s43, s32")
    a("s_mul_i32 s44, s43, 20480")
    a("s_mul_i32 s45, s34, 2560")
    a("s_add_u32 s44, s44, s45")
    a(f"s_add_u32 s44, s44, {QT_OFF}")
    a("v_lshlrev_b32 v10, 3, v0")
    T = FR + 16
    for nt in range(5):
        cs = CSX + 4 * nt if nt < 4 else CS4
        for r in range(4):
            a(f"v_fma_f32 v{T+r}, -v14, v{cs+r}, v{ACC+4*nt+r}")
            a(f"v_mul_f32 v{T+r}, v23, v{T+r}")
        a(f"v_cvt_pk_bf16_f32 v{T+4+2*nt}, v{T}, v{T+1}")
        a(f"v_cvt_pk_bf16_f32 v{T+5+2*nt}, v{T+2}, v{T+3}")
        a(f"buffer_store_dwordx2 {vr(T+4+2*nt,2)}, v10, s[28:31], s44 offen offset:{512*nt}")
    a("s_cmp_lg_u32 s32, 0")
    a(f"s_cbranch_scc1 L_{name}_nozero")
    a("v_cmp_gt_u32 vcc, 16, v0")
    a("s_and_saveexec_b64 s[46:47], vcc")
    a("v_mov_b32 v11, 0")
    a("v_lshlrev_b32 v12, 2, v0")
    a("s_lshl_b32 s45, s2, 6")
    a(f"s_add_u32 s45, s45, {ST_OFF}")
    a("buffer_store_dword v11, v12, s[28:31], s45 offen")
    a("s_and_b32 s45, s2, 63")
    a("s_lshl_b32 s45, s45, 8")
    a(f"s_add_u32 s45, s45, {CNT_OFF}")
    a("buffer_store_dword v11, v12, s[28:31], s45 offen")
    a("s_mov_b64 exec, s[46:47]")
    a.label(f"L_{name}_nozero")
    a("s_cmp_ge_u32 s34, 4")
    a(f"s_cbranch_scc1 L_{name}_fin")
    for r in range(4):
        a(f"v_fma_f32 v{T+r}, -v14, v{CS5+r}, v{ACC+20+r}")
        a(f"v_mul_f32 v{T+r}, v15, v{T+r}")
    a("s_lshl_b32 s43, s33, 1")
    a("s_lshr_b32 s44, s32, 1")
    a("s_add_u32 s43, s43, s44")
    a(f"s_mul_i32 s43, s43, {KVT}")
    a(f"s_add_u32 s43, s43, {KV_OFF}")
    a("s_and_b32 s44, s32, 1")
    a("s_bitcmp1_b32 s34, 0")
    a(f"s_cbranch_scc1 L_{name}_vstore")
    a(f"v_cvt_pk_bf16_f32 v{T+8}, v{T}, v{T+1}")
    a(f"v_cvt_pk_bf16_f32 v{T+9}, v{T+2}, v{T+3}")
    a("s_lshl_b32 s45, s44, 4")
    a("v_add_u32 v10, s45, v1")
    a("s_cmp_lg_u32 s34, 0")
    a(f"s_cbranch_scc1 L_{name}_kst2")
    a("v_lshrrev_b32 v11, 1, v2")
    a("v_lshlrev_b32 v11, 9, v11")
    a("v_lshl_add_u32 v11, v10, 4, v11")
    a("v_and_b32 v12, 1, v2")
    a("v_lshl_add_u32 v11, v12, 3, v11")
    a(f"buffer_store_dwordx2 {vr(T+8,2)}, v11, s[28:31], s43 offen")
    a(f"s_branch L_{name}_fin")
    a.label(f"L_{name}_kst2")
    a("v_lshlrev_b32 v11, 2, v10")
    a("v_cmp_eq_u32 vcc, 0, v2")
    a("s_and_saveexec_b64 s[46:47], vcc")
    a(f"buffer_store_dword v{T+8}, v11, s[28:31], s43 offen offset:1024")
    a(f"buffer_store_dword v{T+9}, v11, s[28:31], s43 offen offset:1152")
    a("s_mov_b64 exec, s[46:47]")
    a(f"s_branch L_{name}_fin")
    a.label(f"L_{name}_vstore")
    for r in range(4): a(f"v_cvt_pk_bf16_f32 v{T+8+r}, v{T+r}, v{T+r}")
    a(f"s_mul_i32 s45, s44, {VCS}")
    a("s_add_u32 s43, s43, s45")
    a("v_lshrrev_b32 v10, 3, v1")
    a("v_lshlrev_b32 v10, 2, v10")
    a("v_and_b32 v11, 3, v1")
    a("v_add_u32 v10, v10, v11")
    a("v_lshlrev_b32 v10, 1, v10")
    a("v_bfe_u32 v11, v1, 2, 1")
    a(f"v_mul_u32_u24 v11, {VHS}, v11")
    a("v_add_u32 v10, v10, v11")
    a("s_cmp_lg_u32 s34, 1")
    a(f"s_cbranch_scc1 L_{name}_v2")
    a("v_lshl_add_u32 v11, v2, 6, v10")
    for r in range(4):
        a(f"buffer_store_short v{T+8+r}, v11, s[28:31], s43 offen offset:{1280 + 16*r}")
    a(f"s_branch L_{name}_fin")
    a.label(f"L_{name}_v2")
    a("v_cmp_eq_u32 vcc, 0, v2")
    a("s_and_saveexec_b64 s[46:47], vcc")
    for r in range(4):
        a(f"buffer_store_short v{T+8+r}, v10, s[28:31], s43 offen offset:{1280 + 16*(16+r)}")
    a(f"buffer_store_short v{ONES}, v10, s[28:31], s43 offen offset:{1280 + 16*20}")
    a("v_mov_b32 v11, 0")
    a(f"buffer_store_short v11, v10, s[28:31], s43 offen offset:{1280 + 16*21}")
    a("s_mov_b64 exec, s[46:47]")
    a.label(f"L_{name}_fin")
    S.stamp(); S.real(); S.flush()
    a.label(f"L_{name}_end")
    a("s_endpgm")
    ll = lambda n: f"; @launch kernel={n} grid=(256,1,1) block=(512,1,1) lds={LDS}"
    return (name, a.text(), kd(name, 160) + kd("qkv1_kernel", 160), ll(name)), ("qkv1_kernel", "", "", ll("qkv1_kernel"))

def mfma32(a, d, x, y, c=None):
    c = vr(d, 16) if c is None else c
    a(f"v_mfma_f32_32x32x16_bf16 {vr(d,16)}, {vr(x,4)}, {vr(y,4)}, {c}")

def gen_attn():
    name = "attn0_kernel"
    a = Asm()
    header(a, "attn1_kernel")
    a("s_mov_b32 s99, 1")
    a("s_branch L_attn_body")
    header(a, name)
    a("s_mov_b32 s99, 0")
    a.label("L_attn_body")
    NLT = 60
    CH = 16 * KVT
    QL = 56 * KVT
    QMAX = (NLT * KVT + 1023) // 1024 - 1
    LDS = (QMAX + 1) * 1024
    QF1 = 8; QF2 = 12; NEGM = 16; S_ = [32, 48]; O = 64; P = [80, 88]
    KB = [96, 104]
    VB = [112, 120]
    AC = 128
    VOFF = 134; K2OFF = 135; PFO = 136; DUM = 140
    RT = 144
    WA = RT + 64
    NV = WA + 8
    RES = 102400; RED = RES + 10240
    OST = 113664
    a(f"s_cmp_ge_u32 s2, 256")
    a(f"s_cbranch_scc1 L_{name}_end")
    S = Stamper(a, 1, 8); S.real(); S.stamp()
    a(f"s_load_dwordx2 s[12:13], s[0:1], 96")
    a("s_load_dwordx2 s[14:15], s[0:1], 32")
    a("s_load_dwordx2 s[16:17], s[0:1], 48")
    a("v_lshrrev_b32 v1, 6, v0")
    a("v_and_b32 v0, 63, v0")
    a("v_readfirstlane_b32 s32, v1")
    a("s_and_b32 s33, s2, 7")
    a("s_lshr_b32 s34, s2, 3")
    a("s_and_b32 s34, s34, 3")
    a("s_lshl_b32 s34, s34, 3")
    a("s_add_u32 s33, s33, s34")
    a("s_lshl_b32 s33, s33, 6")
    a("s_lshr_b32 s34, s2, 5")
    a("s_lshl_b32 s34, s34, 3")
    a("s_add_u32 s33, s33, s34")
    a("v_lshlrev_b32 v3, 4, v0")
    a("v_lshrrev_b32 v4, 2, v0")
    a("v_lshlrev_b32 v4, 7, v4")
    a("v_and_b32 v5, 3, v0")
    a("v_lshl_add_u32 v4, v5, 4, v4")
    a("s_lshr_b32 s34, s33, 4")
    a("s_mul_i32 s34, s34, 20480")
    a("s_and_b32 s35, s33, 15")
    a("s_lshl_b32 s36, s35, 3")
    a("s_add_u32 s34, s34, s36")
    a(f"s_add_u32 s34, s34, {QT_OFF}")
    a("s_lshl_b32 s36, s32, 11")
    a("s_add_u32 s36, s36, s34")
    a("s_lshl_b32 s37, s32, 10")
    a(f"s_add_u32 s37, s37, {QL}")
    a("s_lshl_b32 s50, s32, 10")
    a("s_waitcnt lgkmcnt(0)")
    srd(a, 28, 12, 13, WS_SIZE)
    a("s_mov_b32 m0, s37")
    a("s_add_u32 s33, s33, s32")
    a("buffer_load_dwordx4 v4, s[28:31], s36 offen lds")
    a("s_cmp_ge_u32 s32, 2")
    a(f"s_cbranch_scc1 L_{name}_q1")
    a("s_add_u32 s37, s37, 8192")
    a("s_mov_b32 m0, s37")
    a("s_add_u32 s36, s36, 16384")
    a("buffer_load_dwordx4 v4, s[28:31], s36 offen lds")
    a.label(f"L_{name}_q1")
    a("s_mov_b32 s40, 0")
    def dma_piece():
        a(f"s_min_u32 s43, s50, {QMAX*1024}")
        a("s_mov_b32 m0, s43")
        a(f"s_add_u32 s43, s43, {KV_OFF}")
        a("buffer_load_dwordx4 v3, s[28:31], s43 offen lds")
        a("s_add_u32 s50, s50, 8192")
    for i in range(6): dma_piece()
    a("s_and_b32 s35, s33, 15")
    srd(a, 20, 14, 15, 819200)
    srd(a, 24, 16, 17, 2048*1728*2)
    a("s_lshr_b32 s54, s2, 3")
    a("s_lshl_b32 s54, s54, 3")
    a("s_add_u32 s54, s54, s32")
    a("s_mul_i32 s55, s54, 3200")
    a("s_and_b32 s56, s2, 7")
    a("s_mul_i32 s56, s56, 27")
    a("s_lshr_b32 s56, s56, 3")
    a("s_lshl_b32 s56, s56, 7")
    a(f"s_mul_i32 s57, s54, {8*3456}")
    a("s_add_u32 s56, s56, s57")
    a("v_lshrrev_b32 v4, 3, v0")
    a("v_mul_u32_u24 v4, 3456, v4")
    a("v_and_b32 v5, 7, v0")
    a(f"v_lshl_add_u32 v{PFO}, v5, 4, v4")
    a("v_and_b32 v1, 31, v0")
    a("v_lshrrev_b32 v2, 5, v0")
    for r in range(1, 4): a(f"v_mov_b32 v{QF2+r}, 0")
    for kb in KB + [RT + 16 * j for j in range(4)]:
        for r in range(5, 8): a(f"v_mov_b32 v{kb+r}, 0")
    a("v_min_u32 v4, 21, v1")
    a("v_lshlrev_b32 v4, 4, v4")
    a(f"v_mul_u32_u24 v5, {VHS}, v2")
    a("v_add_u32 v4, v4, v5")
    a(f"v_add_u32 v{VOFF}, 1280, v4")
    a(f"v_lshlrev_b32 v{K2OFF}, 2, v0")
    a(f"v_add_u32 v{K2OFF}, 1024, v{K2OFF}")
    a("v_mul_u32_u24 v4, 5, v1")
    a("v_lshl_add_u32 v5, v2, 1, v4")
    a("v_lshlrev_b32 v5, 6, v5")
    a("s_lshl_b32 s36, s32, 3")
    a(f"s_add_u32 s36, s36, {QL}")
    a("v_add_u32 v5, s36, v5")
    a("v_add_u32 v6, 4, v4")
    a("v_lshlrev_b32 v6, 6, v6")
    a("v_lshl_add_u32 v6, v2, 2, v6")
    a("v_add_u32 v6, s36, v6")
    a("s_waitcnt vmcnt(4) lgkmcnt(0)")
    a("s_barrier")
    a(f"ds_read_b64 {vr(QF1,2)}, v5")
    a(f"ds_read_b64 {vr(QF1+2,2)}, v5 offset:64")
    a(f"ds_read_b32 v{QF2}, v6")
    a(f"ds_read_b128 {vr(KB[0],4)}, v3")
    a(f"ds_read_b32 v{KB[0]+4}, v{K2OFF}")
    a("s_waitcnt lgkmcnt(0)")
    mfma32(a, S_[0], KB[0], QF1, "0")
    mfma32(a, S_[0], KB[0] + 4, QF2)
    a("s_nop 15")
    a("s_nop 3")
    a(f"v_max_f32 v7, v{S_[0]}, v{S_[0]+1}")
    for r in range(2, 16, 2): a(f"v_max3_f32 v7, v7, v{S_[0]+r}, v{S_[0]+r+1}")
    a.label(f"L_{name}_havemax")
    S.stamp()
    a("v_mov_b32 v4, v7")
    a("v_mov_b32 v5, v7")
    a("s_nop 1")
    a("v_permlane32_swap_b32 v4, v5")
    a("s_nop 1")
    a("v_max_f32 v7, v4, v5")
    a("v_sub_f32 v7, 0, v7")
    for r in range(16): a(f"v_mov_b32 v{NEGM+r}, v7")
    for r in range(16): a(f"v_mov_b32 v{O+r}, 0")
    for r in range(8): a(f"v_mov_b32 v{P[1]+r}, 0")
    for r in range(8): a(f"v_mov_b32 v{VB[1]+r}, 0")
    a(f"v_mov_b32 v{AC}, v3"); a(f"v_mov_b32 v{AC+1}, v{K2OFF}"); a(f"v_mov_b32 v{AC+2}, v{VOFF}")
    a(f"ds_read_b128 {vr(KB[0],4)}, v{AC}")
    a(f"ds_read_b32 v{KB[0]+4}, v{AC+1}")
    a(f"ds_read_b128 {vr(KB[1],4)}, v{AC} offset:{KVT}")
    a(f"ds_read_b32 v{KB[1]+4}, v{AC+1} offset:{KVT}")
    a("s_waitcnt lgkmcnt(2)")
    mfma32(a, S_[0], KB[0], QF1, vr(NEGM, 16))
    mfma32(a, S_[0], KB[0] + 4, QF2)
    a("s_mov_b32 s41, 0")
    a("s_mov_b32 s42, 0")
    PON = int(os.environ.get("PON", "0")); POFF = int(os.environ.get("POFF", "12"))
    def wgroup(srd_, soff, ldsb):
        a(f"s_mov_b32 m0, {ldsb}")
        a(f"s_add_u32 s45, {ldsb}, 4096")
        for r in range(4):
            a(f"buffer_load_dwordx4 v{WA+r}, {srd_}, {soff} offen offset:{1024*r} lds")
        a("s_mov_b32 m0, s45")
        a("s_nop 0")
        a(f"buffer_load_dwordx4 v{WA+4}, {srd_}, {soff} offen lds")
    def body(t, last):
        sc = S_[t % 2]; sn = S_[(t + 1) % 2]
        kl = KB[t % 2]; vl = VB[t % 2]
        pp = P[(t + 1) % 2]; pc = P[t % 2]
        gt = 48 + t if last else None
        kn = KB[(t + 1) % 2] if not (last and gt + 1 >= NLT) else RT + 16 * (gt + 1 - NLT)
        vp = VB[(t + 1) % 2] if not (last and gt - 1 >= NLT) else RT + 16 * (gt - 1 - NLT) + 8
        tag = "L" if last else ""
        if not last:
            if t == 4:
                a("s_cmp_lg_u32 s41, 0")
                a(f"s_cbranch_scc1 L_{name}_nb4")
                a("s_waitcnt vmcnt(4)")
                a("s_barrier")
                a.label(f"L_{name}_nb4")
            if t == 14:
                a("s_cmp_lg_u32 s41, 0")
                a(f"s_cbranch_scc1 L_{name}_nb14")
                a("s_waitcnt vmcnt(0)")
                a("s_barrier")
                a.label(f"L_{name}_nb14")
            if t in (0, 5, 8, 11):
                a("s_cmp_lg_u32 s41, 0")
                a(f"s_cbranch_scc1 L_{name}_sk{t}")
                for i in range(4 if t < 11 else 2): dma_piece()
                a.label(f"L_{name}_sk{t}")
            if t in (2, 9):
                a("s_cmp_lg_u32 s41, 1")
                a(f"s_cbranch_scc1 L_{name}_pf{t}")
                if t == 2:
                    for j in range(4):
                        a(f"s_mov_b32 s43, {KV_OFF + (NLT+j)*KVT}")
                        a(f"buffer_load_dwordx4 {vr(RT+16*j,4)}, v3, s[28:31], s43 offen")
                        a(f"buffer_load_dword v{RT+16*j+4}, v{K2OFF}, s[28:31], s43 offen")
                        a(f"buffer_load_dwordx4 {vr(RT+16*j+8,4)}, v{VOFF}, s[28:31], s43 offen")
                        a(f"buffer_load_dwordx4 {vr(RT+16*j+12,4)}, v{VOFF}, s[28:31], s43 offen offset:{VCS}")
                else:
                    for k in range(4):
                        a(f"buffer_load_dwordx4 {vr(DUM,4)}, v3, s[20:23], s55 offen offset:{min(k*1024, 3200-1024)}")
                    for k in range(5):
                        a(f"buffer_load_dwordx4 {vr(DUM,4)}, v{PFO}, s[24:27], s56 offen offset:{k*128}")
                    code_prefetch(a, 8, PFO + 1, DUM)
                a.label(f"L_{name}_pf{t}")
        if last and t in (1, 5):
            wgroup("s[20:23]", "s60", "s61")
            a(f"s_add_u32 s60, s60, {8*32*1280}")
            a(f"s_add_u32 s61, s61, {8*5120}")
        if last and t == 9:
            a("s_cmp_ge_u32 s32, 4")
            a(f"s_cbranch_scc1 L_{name}_w3")
            wgroup("s[20:23]", "s60", "s61")
            a(f"s_branch L_{name}_w4")
            a.label(f"L_{name}_w3")
            a("s_cmp_ge_u32 s32, 6")
            a(f"s_cbranch_scc1 L_{name}_w4")
            a("s_sub_u32 s43, s32, 4")
            a(f"s_mul_i32 s60, s43, {32*1280}")
            a("s_mul_i32 s44, s58, 81920")
            a("s_add_u32 s60, s60, s44")
            a("s_mul_i32 s61, s43, 5120")
            a(f"s_add_u32 s61, s61, {RES}")
            wgroup("s[16:19]", "s60", "s61")
            a.label(f"L_{name}_w4")
        if t == PON:
            a("s_cmp_lt_u32 s32, 4")
            a(f"s_cbranch_scc1 L_{name}_np{tag}")
            a("s_setprio 1")
            a.label(f"L_{name}_np{tag}")
        if t == POFF: a("s_setprio 0")
        a("s_waitcnt lgkmcnt(0)")
        ldk = not (last and gt + 2 >= NLT)
        ldv = not (last and gt >= NLT)
        dos = not (last and t == 15)
        if dos: mfma32(a, sn, kn, QF1, vr(NEGM, 16))
        if ldk:
            a(f"ds_read_b128 {vr(kl,4)}, v{AC} offset:{(t+2)*KVT}")
            a(f"ds_read_b32 v{kl+4}, v{AC+1} offset:{(t+2)*KVT}")
        for r in range(0, 4): a(f"v_exp_f32 v{sc+r}, v{sc+r}")
        mfma32(a, O, vp, pp)
        if ldv:
            a(f"ds_read_b128 {vr(vl,4)}, v{AC+2} offset:{t*KVT}")
            a(f"ds_read_b128 {vr(vl+4,4)}, v{AC+2} offset:{t*KVT+VCS}")
        for r in range(4, 8): a(f"v_exp_f32 v{sc+r}, v{sc+r}")
        for r in range(4): a(f"v_cvt_pk_bf16_f32 v{pc+r}, v{sc+2*r}, v{sc+2*r+1}")
        if dos: mfma32(a, sn, kn + 4, QF2)
        for r in range(8, 12): a(f"v_exp_f32 v{sc+r}, v{sc+r}")
        mfma32(a, O, vp + 4, pp + 4)
        for r in range(12, 16): a(f"v_exp_f32 v{sc+r}, v{sc+r}")
        for r in range(4): a(f"v_cvt_pk_bf16_f32 v{pc+4+r}, v{sc+8+2*r}, v{sc+8+2*r+1}")
    a.label(f"L_{name}_chunk")
    for t in range(16): body(t, False)
    for r in range(3): a(f"v_add_u32 v{AC+r}, {CH}, v{AC+r}")
    a("s_add_u32 s41, s41, 1")
    a("s_add_u32 s42, s42, 1")
    a("s_cmp_lt_u32 s42, 3")
    a(f"s_cbranch_scc1 L_{name}_chunk")
    a("s_load_dwordx2 s[4:5], s[0:1], 0")
    a("s_lshr_b32 s58, s33, 6")
    a("s_lshr_b32 s59, s2, 5")
    a("s_mul_i32 s36, s59, 160")
    a("s_mov_b32 s37, 6554")
    a("s_movk_i32 s38, 1280")
    for r in range(5):
        a(f"v_add_u32 v4, {64*r}, v0")
        a("v_mul_lo_u32 v5, v4, s37")
        a("v_lshrrev_b32 v5, 16, v5")
        a("v_mul_u32_u24 v6, 10, v5")
        a("v_sub_u32 v6, v4, v6")
        a("v_mul_lo_u32 v5, v5, s38")
        a("v_lshl_add_u32 v5, v6, 4, v5")
        a(f"v_add_u32 v5, s36, v5")
        a(f"v_subrev_u32 v{WA+r}, {1024*(r%4)}, v5")
    a("s_waitcnt vmcnt(0) lgkmcnt(0)")
    a(f"s_add_u32 s8, s12, {hex(X2_OFF)}")
    a("s_addc_u32 s9, s13, 0")
    a("s_cmp_eq_u32 s99, 0")
    a("s_cselect_b32 s4, s4, s8")
    a("s_cselect_b32 s5, s5, s9")
    srd(a, 16, 4, 5, XBYTES)
    a(f"s_mul_i32 s60, s32, {32*1280}")
    a("s_mul_i32 s61, s32, 5120")
    a("s_barrier")
    for t in range(16): body(t, True)
    a("s_setprio 0")
    a("s_nop 1")
    mfma32(a, O, RT + 48 + 8, P[1])
    mfma32(a, O, RT + 48 + 12, P[1] + 4)
    S.stamp()
    a.label(f"L_{name}_check")
    a("s_nop 15")
    a("s_nop 3")
    a(f"v_mov_b32 v4, v{O+8}")
    a(f"v_mov_b32 v5, v{O+8}")
    a("s_nop 1")
    a("v_permlane32_swap_b32 v4, v5")
    a("v_mov_b32 v6, 0")
    for r in range(12): a(f"v_fma_f32 v6, v{O+r}, 0, v6")
    a(f"v_fma_f32 v6, v5, 0, v6")
    a(f"s_mov_b32 s43, {hex(f2u(2.0**100))}")
    a("v_cmp_neq_f32 vcc, 0, v6")
    a("v_cmp_nlt_f32 s[46:47], v5, s43")
    a("s_or_b64 vcc, vcc, s[46:47]")
    a("s_cmp_lg_u32 s40, 0")
    a(f"s_cbranch_scc1 L_{name}_store")
    a(f"s_cbranch_vccz L_{name}_store")
    a("s_mov_b32 s40, 1")
    a(f"s_branch L_{name}_restart")
    a.label(f"L_{name}_store")
    a("v_rcp_f32 v5, v5")
    a("s_nop 0")
    for r in range(12): a(f"v_mul_f32 v{O+r}, v5, v{O+r}")
    for r in range(6): a(f"v_cvt_pk_bf16_f32 v{S_[0]+r}, v{O+2*r}, v{O+2*r+1}")
    a("v_mul_u32_u24 v4, 20, v1")
    a("v_lshl_add_u32 v4, v2, 2, v4")
    a("s_lshl_b32 s36, s32, 4")
    a(f"s_add_u32 s36, s36, {OST}")
    for grp in range(3):
        a(f"v_add_u32 v5, {8*grp}, v4")
        a("v_lshrrev_b32 v6, 5, v5")
        a("v_lshlrev_b32 v6, 9, v6")
        a("v_bfe_u32 v7, v5, 2, 2")
        a("v_lshl_add_u32 v6, v7, 7, v6")
        a("v_bfe_u32 v7, v5, 4, 1")
        a("v_lshl_add_u32 v6, v7, 3, v6")
        a(f"v_add_u32 v{10+grp}, s36, v6")
    for grp in range(3):
        if grp == 2:
            a("v_cmp_eq_u32 vcc, 0, v2")
            a("s_and_saveexec_b64 s[46:47], vcc")
        a(f"ds_write_b64 v{10+grp}, {vr(S_[0]+2*grp,2)}")
    a("s_mov_b64 exec, -1")
    S.stamp()
    a("s_lshr_b32 s33, s33, 6")
    a("s_lshr_b32 s34, s2, 5")
    a("v_and_b32 v1, 15, v0")
    a("v_lshrrev_b32 v2, 4, v0")
    a("s_waitcnt lgkmcnt(0)")
    a("s_barrier")
    a("s_lshl_b32 s43, s32, 10")
    a(f"s_add_u32 s43, s43, {OST}")
    a("v_add_u32 v10, s43, v3")
    a(f"ds_read_b128 v[32:35], v10")
    a(f"ds_read_b128 v[36:39], v10 offset:8192")
    a("v_lshrrev_b32 v11, 3, v0")
    a("v_lshlrev_b32 v11, 8, v11")
    a("v_and_b32 v12, 7, v0")
    a("v_lshl_add_u32 v11, v12, 4, v11")
    a("s_lshl_b32 s44, s33, 2")
    a("s_lshr_b32 s45, s34, 1")
    a("s_add_u32 s44, s44, s45")
    a("s_mul_i32 s44, s44, 20480")
    a("s_and_b32 s45, s34, 1")
    a("s_lshl_b32 s45, s45, 7")
    a("s_add_u32 s44, s44, s45")
    a("s_lshl_b32 s45, s32, 11")
    a("s_add_u32 s44, s44, s45")
    a(f"s_add_u32 s44, s44, {OF_OFF}")
    a("s_waitcnt lgkmcnt(0)")
    a("buffer_store_dwordx4 v[32:35], v11, s[28:31], s44 offen sc1")
    a("s_cmp_ge_u32 s32, 2")
    a(f"s_cbranch_scc1 L_{name}_os")
    a("s_add_u32 s44, s44, 16384")
    a("buffer_store_dwordx4 v[36:39], v11, s[28:31], s44 offen sc1")
    a.label(f"L_{name}_os")
    a("s_waitcnt vmcnt(0)")
    a("s_barrier")
    a("s_lshl_b32 s43, s33, 8")
    a(f"s_add_u32 s43, s43, {CNT_OFF}")
    a("v_mov_b32 v10, s43")
    a("v_mov_b32 v11, 1")
    a("s_cmp_lg_u32 s32, 0")
    a(f"s_cbranch_scc1 L_{name}_nosig")
    a("s_mov_b64 exec, 1")
    a("buffer_atomic_add v11, v10, s[28:31], 0 offen")
    a("s_mov_b64 exec, -1")
    a.label(f"L_{name}_nosig")
    a("s_and_b32 s52, s32, 3")
    a("s_lshr_b32 s53, s32, 2")
    a("s_lshl_b32 s42, s33, 2")
    a("s_add_u32 s42, s42, s52")
    a("s_mul_i32 s49, s42, 20480")
    a("s_mul_i32 s44, s53, 10240")
    a("s_add_u32 s49, s49, s44")
    a(f"s_add_u32 s49, s49, {OF_OFF}")
    a("v_lshrrev_b32 v13, 2, v1")
    a("v_lshl_add_u32 v13, v2, 2, v13")
    a("v_and_b32 v14, 3, v1")
    a("v_lshlrev_b32 v14, 3, v14")
    a("v_mul_u32_u24 v15, 160, v13")
    a("v_add_u32 v20, v15, v14")
    a("s_mul_i32 s48, s52, 2560")
    a(f"s_add_u32 s48, s48, {RES}")
    a("v_add_u32 v22, s48, v20")
    a("s_mul_i32 s48, s53, 51200")
    a("v_add_u32 v20, s48, v20")
    ACC = 24; XF = 64; WF = 104
    for r in range(ACC, ACC + 20): a(f"v_mov_b32 v{r}, 0")
    def reads(ks, fs):
        b = WF + 20 * fs
        return [f"ds_read_b64_tr_b16 {vr(b+4*nt+2*half,2)}, v20 offset:{(32 * ks + 16 * half) * 160 + 32 * nt}" for nt in range(5) for half in range(2)]
    for x in reads(0, 0): a(x)
    a("s_cmp_lg_u32 s32, 0")
    a(f"s_cbranch_scc1 L_{name}_nopoll")
    a("s_mov_b64 exec, 1")
    a.label(f"L_{name}_poll")
    a("buffer_load_dword v12, v10, s[28:31], 0 offen sc1")
    a("s_waitcnt vmcnt(0)")
    a("v_readfirstlane_b32 s43, v12")
    a("s_cmp_ge_u32 s43, 8")
    a(f"s_cbranch_scc1 L_{name}_polled")
    a("s_sleep 1")
    a(f"s_branch L_{name}_poll")
    a.label(f"L_{name}_polled")
    a("s_mov_b64 exec, -1")
    a.label(f"L_{name}_nopoll")
    a("s_waitcnt vmcnt(0)")
    a("s_barrier")
    S.stamp()
    for j in range(10):
        if j == 4: a("s_add_u32 s49, s49, 4096")
        if j == 8: a("s_add_u32 s49, s49, 4096")
        a(f"buffer_load_dwordx4 {vr(XF+4*j,4)}, v3, s[28:31], s49 offen offset:{1024*(j%4)} sc1")
    for j in range(10):
        a(f"s_waitcnt lgkmcnt(0) vmcnt({9-j})")
        rl = reads(j + 1, (j + 1) % 2) if j < 9 else []
        b = WF + 20 * (j % 2)
        for nt in range(5):
            mfma16(a, ACC + 4 * nt, XF + 4 * j, b + 4 * nt)
            for _ in range(2):
                if rl: a(rl.pop(0))
    a("s_mul_i32 s44, s52, 5120")
    a(f"s_add_u32 s44, s44, {RED}")
    a("v_add_u32 v10, s44, v3")
    a("s_cmp_eq_u32 s53, 0")
    a(f"s_cbranch_scc1 L_{name}_kh0")
    a("s_nop 7")
    for nt in range(5): a(f"ds_write_b128 v10, {vr(ACC+4*nt,4)} offset:{1024*nt}")
    a("s_waitcnt lgkmcnt(0)")
    a("s_barrier")
    a(f"s_branch L_{name}_fin")
    a.label(f"L_{name}_kh0")
    RS = 144
    for nt in range(5): a(f"ds_read_b64_tr_b16 {vr(RS+2*nt,2)}, v22 offset:{32*nt}")
    SUM = 44; SQ = 48; T = 52
    for r in range(8): a(f"v_mov_b32 v{SUM+r}, 0")
    a("s_mul_i32 s44, s34, 327680")
    a("s_lshr_b32 s45, s42, 1")
    a("s_lshl_b32 s45, s45, 10")
    a("s_add_u32 s44, s44, s45")
    a("s_and_b32 s45, s42, 1")
    a("s_lshl_b32 s45, s45, 3")
    a("s_add_u32 s44, s44, s45")
    a(f"s_add_u32 s44, s44, {X1T_OFF}")
    a("s_mov_b32 s46, 0xffff0000")
    a("s_barrier")
    for nt in range(5): a(f"ds_read_b128 {vr(XF+4*nt,4)}, v10 offset:{1024*nt}")
    a("s_waitcnt lgkmcnt(0)")
    for r in range(20): a(f"v_add_f32 v{ACC+r}, v{ACC+r}, v{XF+r}")
    OUT = 160
    for nt in range(5):
        for h in range(2):
            a(f"v_lshlrev_b32 v{T}, 16, v{RS+2*nt+h}")
            a(f"v_and_b32 v{T+1}, s46, v{RS+2*nt+h}")
            a(f"v_add_f32 v{T}, v{T}, v{ACC+4*nt+2*h}")
            a(f"v_add_f32 v{T+1}, v{T+1}, v{ACC+4*nt+2*h+1}")
            o = OUT + 2 * nt + h
            a(f"v_cvt_pk_bf16_f32 v{o}, v{T}, v{T+1}")
            a(f"v_lshlrev_b32 v{T}, 16, v{o}")
            a(f"v_and_b32 v{T+1}, s46, v{o}")
            a(f"v_add_f32 v{SUM+2*h}, v{SUM+2*h}, v{T}")
            a(f"v_add_f32 v{SUM+2*h+1}, v{SUM+2*h+1}, v{T+1}")
            a(f"v_fma_f32 v{SQ+2*h}, v{T}, v{T}, v{SQ+2*h}")
            a(f"v_fma_f32 v{SQ+2*h+1}, v{T+1}, v{T+1}, v{SQ+2*h+1}")
        a(f"buffer_store_dwordx2 {vr(OUT+2*nt,2)}, v3, s[28:31], s44 offen")
        if nt < 4: a("s_add_u32 s44, s44, 65536")
    for sh in (8, 4, 2, 1):
        a("s_nop 1")
        for r in range(8):
            a(f"v_add_f32_dpp v{SUM+r}, v{SUM+r}, v{SUM+r} row_ror:{sh} row_mask:0xf bank_mask:0xf")
    a("s_lshl_b32 s44, s42, 7")
    a(f"s_add_u32 s44, s44, {ST_OFF}")
    a("v_lshlrev_b32 v10, 5, v2")
    a("v_lshl_add_u32 v10, v1, 2, v10")
    a(f"v_mov_b32 v11, v{SUM}")
    for e in range(1, 8):
        src = (SQ if e & 1 else SUM) + (e >> 1)
        a(f"v_cmp_eq_u32 vcc, {e}, v1")
        a("s_nop 1")
        a(f"v_cndmask_b32 v11, v11, v{src}, vcc")
    a("v_cmp_gt_u32 vcc, 8, v1")
    a("s_and_saveexec_b64 s[46:47], vcc")
    a(f"buffer_atomic_add_f32 v11, v10, s[28:31], s44 offen")
    a.label(f"L_{name}_fin")
    S.stamp(); S.real(); S.flush()
    a(f"s_branch L_{name}_end")
    a.label(f"L_{name}_restart")
    a(f"v_mov_b32 v7, 0xff800000")
    a(f"s_mov_b32 s43, {KV_OFF}")
    a.label(f"L_{name}_mx")
    a(f"buffer_load_dwordx4 {vr(KB[0],4)}, v3, s[28:31], s43 offen")
    a(f"buffer_load_dword v{KB[0]+4}, v{K2OFF}, s[28:31], s43 offen")
    a("s_waitcnt vmcnt(0)")
    mfma32(a, S_[0], KB[0], QF1, "0")
    mfma32(a, S_[0], KB[0] + 4, QF2)
    a("s_nop 15")
    a("s_nop 3")
    for r in range(0, 16, 2): a(f"v_max3_f32 v7, v7, v{S_[0]+r}, v{S_[0]+r+1}")
    a(f"s_add_u32 s43, s43, {KVT}")
    a(f"s_cmp_lt_u32 s43, {KV_OFF + 64*KVT}")
    a(f"s_cbranch_scc1 L_{name}_mx")
    a("v_mov_b32 v4, v7")
    a("v_mov_b32 v5, v7")
    a("s_nop 1")
    a("v_permlane32_swap_b32 v4, v5")
    a("s_nop 1")
    a("v_max_f32 v7, v4, v5")
    a("v_sub_f32 v7, 0, v7")
    for r in range(16): a(f"v_mov_b32 v{NEGM+r}, v7")
    for r in range(16): a(f"v_mov_b32 v{O+r}, 0")
    a(f"s_mov_b32 s43, {KV_OFF}")
    a.label(f"L_{name}_sl")
    a(f"buffer_load_dwordx4 {vr(KB[0],4)}, v3, s[28:31], s43 offen")
    a(f"buffer_load_dword v{KB[0]+4}, v{K2OFF}, s[28:31], s43 offen")
    a(f"buffer_load_dwordx4 {vr(VB[0],4)}, v{VOFF}, s[28:31], s43 offen")
    a(f"buffer_load_dwordx4 {vr(VB[0]+4,4)}, v{VOFF}, s[28:31], s43 offen offset:{VCS}")
    a("s_waitcnt vmcnt(0)")
    mfma32(a, S_[0], KB[0], QF1, vr(NEGM, 16))
    mfma32(a, S_[0], KB[0] + 4, QF2)
    a("s_nop 15")
    a("s_nop 3")
    for r in range(16): a(f"v_exp_f32 v{S_[0]+r}, v{S_[0]+r}")
    a("s_nop 0")
    for r in range(8): a(f"v_cvt_pk_bf16_f32 v{P[0]+r}, v{S_[0]+2*r}, v{S_[0]+2*r+1}")
    a("s_nop 1")
    mfma32(a, O, VB[0], P[0])
    mfma32(a, O, VB[0] + 4, P[0] + 4)
    a("s_nop 15")
    a(f"s_add_u32 s43, s43, {KVT}")
    a(f"s_cmp_lt_u32 s43, {KV_OFF + 64*KVT}")
    a(f"s_cbranch_scc1 L_{name}_sl")
    a(f"s_branch L_{name}_check")
    a.label(f"L_{name}_end")
    a("s_endpgm")
    ll = lambda n: f"; @launch kernel={n} grid=(256,1,1) block=(512,1,1) lds={LDS}"
    return (name, a.text(), kd(name, NV) + kd("attn1_kernel", NV), ll(name)), ("attn1_kernel", "", "", ll("attn1_kernel"))

def gen_oproj(layer):
    name = f"oproj{layer}_kernel"
    a = Asm(); header(a, name)
    RES = 102400
    LDS = RES + 10240
    a(f"s_cmp_ge_u32 s2, 256")
    a(f"s_cbranch_scc1 L_{name}_end")
    S = Stamper(a, 2 + 5*layer, 4); S.real(); S.stamp()
    a(f"s_load_dwordx2 s[4:5], s[0:1], 0")
    a(f"s_load_dwordx2 s[6:7], s[0:1], 32")
    a(f"s_load_dwordx2 s[12:13], s[0:1], 96")
    a("v_lshrrev_b32 v1, 6, v0")
    a("v_and_b32 v0, 63, v0")
    a("v_readfirstlane_b32 s32, v1")
    a("s_and_b32 s33, s2, 7")
    a("s_lshr_b32 s34, s2, 3")
    a("s_and_b32 s34, s34, 3")
    a("s_lshl_b32 s34, s34, 3")
    a("s_add_u32 s33, s33, s34")
    a("s_lshr_b32 s34, s2, 5")
    a("s_waitcnt lgkmcnt(0)")
    if layer == 1:
        a(f"s_add_u32 s4, s12, {hex(X2_OFF)}")
        a(f"s_addc_u32 s5, s13, 0")
    srd(a, 16, 4, 5, XBYTES)
    srd(a, 20, 6, 7, 819200)
    srd(a, 28, 12, 13, WS_SIZE)
    a("v_and_b32 v1, 15, v0")
    a("v_lshrrev_b32 v2, 4, v0")
    a("s_mul_i32 s35, s32, 320")
    a("s_mul_i32 s36, s34, 160")
    a("s_mov_b32 s37, 6554")
    a("s_movk_i32 s38, 1280")
    for jj in range(5):
        a(f"v_add_u32 v10, s35, v0")
        if jj: a(f"v_add_u32 v10, {64*jj}, v10")
        a("v_mul_lo_u32 v11, v10, s37")
        a("v_lshrrev_b32 v11, 16, v11")
        a("v_mul_u32_u24 v12, 10, v11")
        a("v_sub_u32 v12, v10, v12")
        a("v_mul_lo_u32 v11, v11, s38")
        a("v_lshl_add_u32 v11, v12, 4, v11")
        a(f"v_add_u32 v{4+jj}, s36, v11")
    a("v_lshlrev_b32 v3, 4, v0")
    a("s_mul_i32 s40, s33, 81920")
    a("s_mul_i32 s41, s32, 5120")
    a("s_cmp_ge_u32 s32, 2")
    a(f"s_cbranch_scc1 L_{name}_nores")
    for jj in range(5):
        a(f"s_add_u32 s44, s41, {RES + jj*1024}")
        a("s_mov_b32 m0, s44")
        a("s_nop 0")
        a(f"buffer_load_dwordx4 v{4+jj}, s[16:19], s40 offen lds")
    a.label(f"L_{name}_nores")
    a("s_lshl_b32 s42, s33, 2")
    a("s_add_u32 s42, s42, s32")
    a("s_mul_i32 s43, s42, 20480")
    a(f"s_add_u32 s43, s43, {OF_OFF}")
    XF = 64
    def stage_ops(st):
        ops = []
        for jj in range(5):
            ops.append([f"s_add_u32 s44, s41, {st*20480 + jj*1024}", "s_mov_b32 m0, s44",
                        f"s_mov_b32 s45, {st*128*1280}", f"buffer_load_dwordx4 v{4+jj}, s[20:23], s45 offen lds"])
        for k4 in range(4):
            ops.append([f"s_add_u32 s45, s43, {st*4096}",
                        f"buffer_load_dwordx4 {vr(XF+4*(4*st+k4),4)}, v3, s[28:31], s45 offen offset:{1024*k4}"])
        return ops
    for st in range(2):
        for op in stage_ops(st):
            for x in op: a(x)
    S.stamp()
    a("v_lshrrev_b32 v10, 2, v1")
    a("v_lshl_add_u32 v10, v2, 2, v10")
    a("v_and_b32 v11, 3, v1")
    a("v_lshlrev_b32 v11, 3, v11")
    a("v_mul_u32_u24 v12, 160, v10")
    a("v_add_u32 v20, v12, v11")
    a(f"v_add_u32 v21, {51200}, v20")
    a("s_mul_i32 s48, s32, 2560")
    a(f"s_add_u32 s48, s48, {RES}")
    a("v_add_u32 v22, s48, v20")
    ACC = 24
    WF = 144
    for r in range(ACC, ACC + 20): a(f"v_mov_b32 v{r}, 0")
    def reads(ks, fs):
        b = WF + 20 * fs
        for nt in range(5):
            for half in range(2):
                off = (32 * ks + 16 * half) * 160 + 32 * nt
                va = 20
                if off >= 51200: off -= 51200; va = 21
                a(f"ds_read_b64_tr_b16 {vr(b+4*nt+2*half,2)}, v{va} offset:{off}")
    for st in range(5):
        a(f"s_waitcnt vmcnt({9 if st < 4 else 0})")
        a("s_barrier")
        if st == 0: S.stamp()
        pend = stage_ops(st + 2) if st + 2 < 5 else []
        reads(4 * st, 0)
        for k4 in range(4):
            a("s_waitcnt lgkmcnt(0)")
            if k4 < 3: reads(4 * st + k4 + 1, (k4 + 1) % 2)
            b = WF + 20 * (k4 % 2)
            for nt in range(5):
                mfma16(a, ACC + 4 * nt, XF + 4 * (4 * st + k4), b + 4 * nt)
                if nt % 2 == 0 and pend:
                    for x_ in pend.pop(0): a(x_)
        assert not pend
    S.stamp()
    RS = WF
    for nt in range(5): a(f"ds_read_b64_tr_b16 {vr(RS+2*nt,2)}, v22 offset:{32*nt}")
    SUM = 44; SQ = 48; T = 52
    for r in range(8): a(f"v_mov_b32 v{SUM+r}, 0")
    a("s_mul_i32 s44, s34, 327680")
    a("s_lshr_b32 s45, s42, 1")
    a("s_lshl_b32 s45, s45, 10")
    a("s_add_u32 s44, s44, s45")
    a("s_and_b32 s45, s42, 1")
    a("s_lshl_b32 s45, s45, 3")
    a("s_add_u32 s44, s44, s45")
    a(f"s_add_u32 s44, s44, {X1T_OFF}")
    a("s_mov_b32 s46, 0xffff0000")
    a("s_waitcnt lgkmcnt(0)")
    a("s_nop 7")
    OUT = WF + 12
    for nt in range(5):
        for h in range(2):
            a(f"v_lshlrev_b32 v{T}, 16, v{RS+2*nt+h}")
            a(f"v_and_b32 v{T+1}, s46, v{RS+2*nt+h}")
            a(f"v_add_f32 v{T}, v{T}, v{ACC+4*nt+2*h}")
            a(f"v_add_f32 v{T+1}, v{T+1}, v{ACC+4*nt+2*h+1}")
            o = OUT + 2 * nt + h
            a(f"v_cvt_pk_bf16_f32 v{o}, v{T}, v{T+1}")
            a(f"v_lshlrev_b32 v{T}, 16, v{o}")
            a(f"v_and_b32 v{T+1}, s46, v{o}")
            a(f"v_add_f32 v{SUM+2*h}, v{SUM+2*h}, v{T}")
            a(f"v_add_f32 v{SUM+2*h+1}, v{SUM+2*h+1}, v{T+1}")
            a(f"v_fma_f32 v{SQ+2*h}, v{T}, v{T}, v{SQ+2*h}")
            a(f"v_fma_f32 v{SQ+2*h+1}, v{T+1}, v{T+1}, v{SQ+2*h+1}")
        a(f"buffer_store_dwordx2 {vr(OUT+2*nt,2)}, v3, s[28:31], s44 offen")
        if nt < 4: a("s_add_u32 s44, s44, 65536")
    for sh in (8, 4, 2, 1):
        a("s_nop 1")
        for r in range(8):
            a(f"v_add_f32_dpp v{SUM+r}, v{SUM+r}, v{SUM+r} row_ror:{sh} row_mask:0xf bank_mask:0xf")
    a("s_lshl_b32 s44, s42, 7")
    a(f"s_add_u32 s44, s44, {ST_OFF}")
    a("v_lshlrev_b32 v10, 5, v2")
    a("v_cmp_eq_u32 vcc, 0, v1")
    a("s_and_saveexec_b64 s[46:47], vcc")
    for r in range(4):
        a(f"buffer_atomic_add_f32 v{SUM+r}, v10, s[28:31], s44 offen offset:{8*r}")
        a(f"buffer_atomic_add_f32 v{SQ+r}, v10, s[28:31], s44 offen offset:{8*r+4}")
    S.stamp(); S.real(); S.flush()
    a.label(f"L_{name}_end")
    a("s_endpgm")
    return name, a.text(), kd(name, 192), f"; @launch kernel={name} grid=(256,1,1) block=(256,1,1) lds={LDS}"

def mfma16a(a, d, x, y):
    a(f"v_mfma_f32_16x16x32_bf16 a[{d}:{d+3}], {vr(x,4)}, {vr(y,4)}, a[{d}:{d+3}]")

class VM:
    def __init__(self, a): self.a = a; self.ops = []
    def issue(self, tag): self.ops.append(tag)
    def wait(self, *tags, extra=""):
        idx = max([i for i, t in enumerate(self.ops) if t in tags], default=-1)
        n = len(self.ops) - 1 - idx
        self.a(f"s_waitcnt vmcnt({min(n, 63)}){extra}")

def gen_mlp(which, layer):
    name = f"mlp{which}_{layer}_kernel"
    a = Asm(); header(a, name)
    norm = which == 1
    assert norm
    V = VM(a)
    UW = int(os.environ.get("K4UW", "2"))
    NW = 8 if norm else int(os.environ.get("K5NW", "4"))
    U = 2 if norm else int(os.environ.get("K5U", "4"))
    RING = UW * 4096
    TAB = NW * RING
    NWG = 216 if norm else 256
    WSTR = 3456 if norm else 4096
    WBYTES = 2048 * 1728 * 2
    XDT = 65536 if norm else GDT
    XOFF = X1T_OFF if norm else GF_OFF
    if NW == 8: own_dts = lambda w: (0, 1, 2) if w < 4 else (3, 4)
    else: own_dts = lambda w: (0, 1, 2, 3, 4)
    MT = 3 if NW == 8 else 5
    NS = NW - 1
    own_base = []; off = 0
    for w in range(NW):
        own_base.append(off); off += NS * len(own_dts(w)) * 1024
    REDSZ = off
    TR = REDSZ + 1024
    LDS = max(TAB + NW * 2048, TR + 4 * 2560)
    a(f"s_cmp_ge_u32 s2, {NWG}")
    a(f"s_cbranch_scc1 L_{name}_end")
    S = Stamper(a, 2 + which + 5*layer, 8); S.real(); S.stamp()
    a(f"s_load_dwordx4 s[4:7], s[0:1], {48 if norm else 64}")
    a(f"s_load_dwordx2 s[12:13], s[0:1], 96")
    if not norm:
        a(f"s_load_dwordx2 s[8:9], s[0:1], 80")
    a("v_lshrrev_b32 v1, 6, v0")
    a("v_and_b32 v0, 63, v0")
    a("v_readfirstlane_b32 s32, v1")
    if norm:
        a("s_and_b32 s33, s2, 7")
        a(f"s_mul_i32 s33, s33, {NWG//8}")
        a("s_lshr_b32 s34, s2, 3")
        a("s_add_u32 s33, s33, s34")
        a("s_lshr_b32 s34, s33, 3")
        a("s_and_b32 s33, s33, 7")
        a(f"s_load_dwordx2 s[8:9], s[0:1], 64")
    else:
        a("s_and_b32 s34, s2, 7")
        a("s_lshr_b32 s33, s2, 3")
        a("s_and_b32 s33, s33, 3")
        a("s_lshl_b32 s33, s33, 3")
        a("s_add_u32 s34, s34, s33")
        a("s_lshr_b32 s33, s2, 5")
        a(f"s_load_dwordx2 s[10:11], s[0:1], 8")
    a("v_and_b32 v1, 15, v0")
    a("v_lshrrev_b32 v2, 4, v0")
    a("v_lshlrev_b32 v3, 4, v0")
    NST = 64 // NW if norm else 56 // NW
    a(f"s_mul_i32 s35, s32, {NST}")
    a("v_lshrrev_b32 v10, 3, v0")
    a("v_lshrrev_b32 v11, 1, v10")
    a("v_and_b32 v11, 3, v11")
    a("v_lshlrev_b32 v11, 1, v11")
    a("v_and_b32 v12, 7, v0")
    a("v_xor_b32 v12, v12, v11")
    a(f"s_movk_i32 s38, {WSTR}")
    a("v_mul_lo_u32 v5, v10, s38")
    a("v_lshl_add_u32 v44, v12, 4, v5")
    for jj in range(1, 4): a(f"v_add_u32 v{44+jj}, {jj*(8*WSTR-1024)}, v44")
    for dt in range(1, 5): a(f"v_add_u32 v{19+dt}, {dt*XDT}, v3")
    a(f"s_mul_i32 s40, s35, {32*WSTR}")
    a("s_lshl_b32 s41, s34, 7")
    a("s_add_u32 s40, s40, s41")
    a(f"s_mul_i32 s41, s33, {5*XDT}")
    a("s_lshl_b32 s42, s35, 10")
    a("s_add_u32 s41, s41, s42")
    a(f"s_add_u32 s41, s41, {XOFF}")
    a(f"s_mul_i32 s42, s32, {RING}")
    a("s_and_b32 s52, s32, 3")
    a("s_lshr_b32 s53, s32, 2")
    a("s_waitcnt lgkmcnt(0)")
    srd(a, 20, 4, 5, WBYTES)
    srd(a, 28, 12, 13, WS_SIZE)
    XR = 48
    XN = XR + 20 * U
    WF = XN + (40 if norm else 0)
    TT = WF + 32
    NV = max(TT + (16 if norm else 0), 176)
    TMP = 16
    TB = 36
    EB = 24
    if norm:
        a("s_lshl_b32 s37, s32, 11")
        a(f"s_add_u32 s37, s37, {ST_OFF}")
        a("v_lshlrev_b32 v4, 3, v0")
        for i2 in range(4):
            a(f"buffer_load_dwordx2 {vr(TB+2*i2,2)}, v4, s[28:31], s37 offen offset:{512*i2}"); V.issue("st")
    def w_ops(j):
        slot = j % UW
        ops = []
        for jj in range(4):
            op = [f"s_mov_b32 m0, s{64+slot}", "s_nop 0"] if jj == 0 else []
            op.append(f"buffer_load_dwordx4 v{44+jj}, s[20:23], s40 offen offset:{jj*1024} lds")
            ops.append((("W", j), op))
        ops[-1][1].append(f"s_add_u32 s40, s40, {32*WSTR}")
        return ops
    def x_ops(j):
        slot = j % U
        ops = []
        for dt in range(5):
            va = 3 if dt == 0 else 19 + dt
            ops.append((("X", j), [f"buffer_load_dwordx4 {vr(XR+20*slot+4*dt,4)}, v{va}, s[28:31], s41 offen"]))
        ops[-1][1].append("s_add_u32 s41, s41, 1024")
        return ops
    lab = [0]
    def emit_ops(ops):
        for tag, op in ops:
            for x in op: a(x)
            V.issue(tag)
    for u in range(UW): a(f"s_add_u32 s{64+u}, s42, {u*4096}")
    emit_ops(x_ops(0)); emit_ops(w_ops(0))
    srd(a, 24, 6, 7, 1728 * 2 if norm else 2048 * 2)
    if not norm:
        if layer == 0:
            a(f"s_add_u32 s8, s12, {hex(X2_OFF)}")
            a(f"s_addc_u32 s9, s13, 0")
        srd(a, 16, 8, 9, XBYTES)
    a("s_lshl_b32 s43, s34, 7")
    a("s_lshl_b32 s44, s52, 5")
    a("s_add_u32 s43, s43, s44")
    a("v_lshlrev_b32 v10, 3, v2")
    a(f"buffer_load_dwordx2 {vr(EB,2)}, v10, s[24:27], s43 offen"); V.issue("e")
    NE = 1
    if not norm:
        a("s_mul_i32 s43, s33, 327680")
        a("s_mul_i32 s44, s53, 196608")
        a("s_add_u32 s43, s43, s44")
        a("s_lshl_b32 s44, s34, 11")
        a("s_add_u32 s43, s43, s44")
        a("s_lshr_b32 s44, s52, 1")
        a("s_lshl_b32 s44, s44, 10")
        a("s_add_u32 s43, s43, s44")
        a("s_and_b32 s44, s52, 1")
        a("s_lshl_b32 s44, s44, 3")
        a("s_add_u32 s43, s43, s44")
        a(f"s_add_u32 s43, s43, {X1T_OFF}")
        for j in range(MT):
            a(f"buffer_load_dwordx2 {vr(EB+2+2*j,2)}, v3, s[28:31], s43 offen")
            if j < MT - 1: a("s_add_u32 s43, s43, 65536")
        NE = 1 + MT
    for u in range(1, max(U, UW)):
        if u < U: emit_ops(x_ops(u))
        if u < UW: emit_ops(w_ops(u))
    S.stamp()
    a("v_lshrrev_b32 v10, 2, v1")
    a("v_lshl_add_u32 v10, v2, 2, v10")
    a("v_lshrrev_b32 v11, 1, v10")
    a("v_and_b32 v11, 3, v11")
    a("v_and_b32 v12, 3, v1")
    a("v_lshlrev_b32 v12, 3, v12")
    a("v_lshl_add_u32 v12, v10, 7, v12")
    a("v_add_u32 v12, s42, v12")
    for nt in range(4):
        a(f"v_xor_b32 v13, {nt}, v11")
        a(f"v_lshl_add_u32 v{6+nt}, v13, 5, v12")
    for r in range(80): a(f"v_accvgpr_write_b32 a{r}, 0")
    a("s_mov_b32 s46, 0xffff0000")
    if norm:
        V.wait("st")
        a("s_lshl_b32 s43, s32, 11")
        a(f"s_add_u32 s43, s43, {TAB}")
        a("v_lshlrev_b32 v14, 2, v0")
        a("v_add_u32 v14, s43, v14")
        a("v_lshlrev_b32 v15, 4, v2")
        a("v_add_u32 v15, s43, v15")
        a(f"s_mov_b32 s47, {hex(f2u(1.0/640))}")
        a(f"s_mov_b32 s48, {hex(f2u(1e-5))}")
        for i2 in range(4):
            m = TB + 2 * i2; q = m + 1
            a(f"v_mul_f32 v{m}, s47, v{m}")
            a(f"v_mul_f32 v{q}, s47, v{q}")
            a(f"v_fma_f32 v{q}, -v{m}, v{m}, v{q}")
            a(f"v_max_f32 v{q}, 0, v{q}")
            a(f"v_add_f32 v{TMP}, s48, v{q}")
            a(f"v_rsq_f32 v{TMP}, v{TMP}")
            a("s_nop 0")
            a(f"v_mul_f32 v{q}, v{q}, v{TMP}")
            a(f"v_fma_f32 v{q}, v{q}, v{TMP}, s48")
            a(f"v_rsq_f32 v{q}, v{q}")
            a("s_nop 0")
            a(f"v_mul_f32 v{q}, v{q}, v{TMP}")
            a(f"v_mul_f32 v{m}, v{m}, v{q}")
            a(f"v_sub_f32 v{m}, 0, v{m}")
            a(f"ds_write_b32 v14, v{q} offset:{256*i2}")
            a(f"ds_write_b32 v14, v{m} offset:{1024+256*i2}")
        a("s_waitcnt lgkmcnt(0)")
    def wreads(slot, fs):
        for nt in range(4):
            for half in range(2):
                a(f"ds_read_b64_tr_b16 {vr(WF+16*fs+4*nt+2*half,2)}, v{6+nt} offset:{slot*4096+half*2048}")
    def treads():
        a(f"ds_read_b128 {vr(TT,4)}, v15")
        a(f"ds_read_b128 {vr(TT+4,4)}, v15 offset:64")
        a(f"ds_read_b128 {vr(TT+8,4)}, v15 offset:1024")
        a(f"ds_read_b128 {vr(TT+12,4)}, v15 offset:1088")
        a("v_add_u32 v15, 128, v15")
    def norm_ops(slot, fs):
        ops = []
        for dt in range(5):
            for dw in range(4):
                r = XR + 20 * slot + 4 * dt + dw
                e = (dw % 2) * 2 + (dw // 2) * 4
                t0 = TMP + 2 * (dw % 2); t1 = t0 + 1
                ops.append(f"v_lshlrev_b32 v{t0}, 16, v{r}")
                ops.append(f"v_and_b32 v{t1}, s46, v{r}")
                ops.append(f"v_fma_f32 v{t0}, v{t0}, v{TT+e}, v{TT+8+e}")
                ops.append(f"v_fma_f32 v{t1}, v{t1}, v{TT+e+1}, v{TT+8+e+1}")
                ops.append(f"v_cvt_pk_bf16_f32 v{XN+20*fs+4*dt+dw}, v{t0}, v{t1}")
        return ops
    def mfma_list(slot, fs):
        l = []
        for dt in range(5):
            x = (XN + 20 * fs + 4 * dt) if norm else (XR + 20 * slot + 4 * dt)
            for nt in range(4):
                w = WF + 16 * fs + 4 * nt
                t = 4 * (dt * 4 + nt)
                l.append(f"v_mfma_f32_16x16x32_bf16 a[{t}:{t+3}], {vr(w,4)}, {vr(x,4)}, a[{t}:{t+3}]")
        return l
    def norm_step(jn, ml):
        nu = jn % U; nfs = jn % 2
        treads()
        wreads(jn % UW, nfs)
        ops = norm_ops(nu, nfs)
        xo = x_ops(jn + U) if jn + U < NST else []; wo = w_ops(jn + UW) if jn + UW < NST else []
        ld = bool(wo)
        k = 0
        for m in ml[:3]: a(m); k += 1
        a("s_waitcnt lgkmcnt(8)")
        for idx, op in enumerate(ops):
            a(op)
            if idx % 6 == 5 and k < len(ml):
                a(ml[k]); k += 1
            if idx % 20 == 19 and xo:
                emit_ops([xo.pop(0)])
            if idx == 30 and ld: a("s_waitcnt lgkmcnt(0)")
            if idx in (40, 55, 70, 85) and wo:
                emit_ops([wo.pop(0)])
        while k < len(ml): a(ml[k]); k += 1
        assert not xo and not wo
    if NW == 8 and os.environ.get("K4PRIO", "1") != "0":
        a("s_cmp_lt_u32 s32, 4")
        a(f"s_cbranch_scc1 L_{name}_np")
        a("s_setprio 1")
        a.label(f"L_{name}_np")
    V.wait(("W", 0), ("X", 0))
    norm_step(0, [])
    S.stamp()
    for j in range(NST):
        u = j % U; fs = j % 2
        if j + 1 < NST:
            V.wait(("W", j + 1), ("X", j + 1), extra=" lgkmcnt(0)")
            norm_step(j + 1, mfma_list(u, fs))
        else:
            a("s_waitcnt lgkmcnt(0)")
            for m in mfma_list(u, fs): a(m)
        if j == NST - int(os.environ.get("K4OFF", "3")): a("s_setprio 0")
    a.label(f"L_{name}_done")
    S.stamp()
    a("s_waitcnt vmcnt(0) lgkmcnt(0)")
    if norm:
        a("s_cmp_lg_u32 s34, 26")
        a(f"s_cbranch_scc1 L_{name}_nozf")
        a("s_cmp_ge_u32 s32, 5")
        a(f"s_cbranch_scc1 L_{name}_nozf")
        a("s_mul_i32 s43, s33, 5")
        a("s_add_u32 s43, s43, s32")
        a(f"s_mul_i32 s43, s43, {GDT}")
        a(f"s_add_u32 s43, s43, {GF_OFF + 54*1024}")
        for r in range(4): a(f"v_mov_b32 v{16+r}, 0")
        a("buffer_store_dwordx4 v[16:19], v3, s[28:31], s43 offen")
        a("buffer_store_dwordx4 v[16:19], v3, s[28:31], s43 offen offset:1024")
        a.label(f"L_{name}_nozf")
        srd(a, 56, 8, 9, WBYTES)
        a("s_lshr_b32 s43, s2, 3")
        a("s_lshl_b32 s43, s43, 3")
        a("s_add_u32 s43, s43, s32")
        a(f"s_mul_i32 s43, s43, {8*4096}")
        a("s_and_b32 s44, s2, 7")
        a("s_lshl_b32 s44, s44, 7")
        a("s_add_u32 s43, s43, s44")
        a("v_lshrrev_b32 v10, 3, v0")
        a("v_lshlrev_b32 v10, 12, v10")
        a("v_and_b32 v11, 7, v0")
        a("v_lshl_add_u32 v10, v11, 4, v10")
        for j in range(4):
            a(f"buffer_load_dwordx4 v[20:23], v10, s[56:59], s43 offen offset:{1024*j}")
    elif layer == 0:
        srd(a, 56, 10, 11, 819200)
        per = 819200 // (32 * NW)
        a("s_lshr_b32 s43, s2, 3")
        a(f"s_mul_i32 s43, s43, {NW}")
        a("s_add_u32 s43, s43, s32")
        a(f"s_mul_i32 s43, s43, {per}")
        for j in range((per + 1023) // 1024):
            if j == 4: a("s_add_u32 s43, s43, 4096")
            a(f"buffer_load_dwordx4 v[20:23], v3, s[56:59], s43 offen offset:{min(1024*j, per-1024) - (4096 if j >= 4 else 0)}")
    code_prefetch(a, NW, 12, 20)
    a("s_barrier")
    OWN = 88
    for o in range(NW):
        dts = own_dts(o); nt = o % 4
        a(f"s_cmp_eq_u32 s32, {o}")
        a(f"s_cbranch_scc1 L_{name}_own{o}")
        a(f"s_sub_u32 s43, s32, {o+1}")
        a(f"s_and_b32 s43, s43, {NW-1}")
        a(f"s_mul_i32 s43, s43, {len(dts)*1024}")
        a(f"s_add_u32 s43, s43, {own_base[o]}")
        a("v_add_u32 v10, s43, v3")
        for j, dt in enumerate(dts):
            t = 4 * (dt * 4 + nt)
            a(f"ds_write_b128 v10, a[{t}:{t+3}] offset:{j*1024}")
        a(f"s_branch L_{name}_nx{o}")
        a.label(f"L_{name}_own{o}")
        for j, dt in enumerate(dts):
            for r in range(4):
                a(f"v_accvgpr_read_b32 v{OWN+4*j+r}, a{4*(dt*4+nt)+r}")
        for r in range(4 * len(dts), 4 * MT): a(f"v_mov_b32 v{OWN+r}, 0")
        a(f"s_mov_b32 s54, {own_base[o]}")
        a(f"s_mov_b32 s55, {len(dts)*1024}")
        a.label(f"L_{name}_nx{o}")
    a("s_waitcnt lgkmcnt(0)")
    a("s_barrier")
    a("v_add_u32 v10, s54, v3")
    BI = 40
    a(f"v_lshlrev_b32 v{BI}, 16, v{EB}")
    a(f"v_and_b32 v{BI+1}, s46, v{EB}")
    a(f"v_lshlrev_b32 v{BI+2}, 16, v{EB+1}")
    a(f"v_and_b32 v{BI+3}, s46, v{EB+1}")
    if NW == 8: PRS = [108, 120, 132, 144, 156, 48, 60]
    else: PRS = [108, 128, 148]
    issued = 0; done = 0
    for sidx in range(NS):
        for j in range(MT):
            a(f"ds_read_b128 {vr(PRS[sidx]+4*j,4)}, v10 offset:{j*1024}")
        issued += 1
        if sidx < NS - 1: a("v_add_u32 v10, s55, v10")
        if (issued - done) * MT >= 12 and sidx < NS - 1:
            a(f"s_waitcnt lgkmcnt({(issued-done-1)*MT})")
            for r in range(4 * MT): a(f"v_add_f32 v{OWN+r}, v{OWN+r}, v{PRS[done]+r}")
            done += 1
    while done < NS:
        a(f"s_waitcnt lgkmcnt({(NS-done-1)*MT})")
        for r in range(4 * MT): a(f"v_add_f32 v{OWN+r}, v{OWN+r}, v{PRS[done]+r}")
        done += 1
    S.stamp()
    E0 = 112
    if norm:
        c1 = -2.0 * math.log2(math.e) * 0.7978845608028654
        c2 = c1 * 0.044715
        a(f"s_mov_b32 s47, {hex(f2u(c1))}")
        a(f"s_mov_b32 s48, {hex(f2u(c2))}")
        a("v_mov_b32 v44, s47")
        a(f"s_mul_i32 s43, s33, {5*GDT}")
        a(f"s_mul_i32 s44, s53, {3*GDT}")
        a("s_add_u32 s43, s43, s44")
        a("s_lshl_b32 s44, s34, 11")
        a("s_add_u32 s43, s43, s44")
        a("s_lshr_b32 s44, s52, 1")
        a("s_lshl_b32 s44, s44, 10")
        a("s_add_u32 s43, s43, s44")
        a("s_and_b32 s44, s52, 1")
        a("s_lshl_b32 s44, s44, 3")
        a("s_add_u32 s43, s43, s44")
        a(f"s_add_u32 s43, s43, {GF_OFF}")
        for j in range(MT):
            if NW == 8 and j == 2:
                a("s_cmp_lg_u32 s53, 0")
                a(f"s_cbranch_scc1 L_{name}_fin")
            for r in range(4):
                u = OWN + 4 * j + r
                a(f"v_add_f32 v{u}, v{u}, v{BI+r}")
            for r in range(4):
                u = OWN + 4 * j + r; t = E0 + r
                a(f"v_mul_f32 v{t}, v{u}, v{u}")
            for r in range(4):
                t = E0 + r
                a(f"v_fma_f32 v{t}, v{t}, s48, v44")
            for r in range(4):
                u = OWN + 4 * j + r; t = E0 + r
                a(f"v_mul_f32 v{t}, v{t}, v{u}")
            for r in range(4): a(f"v_exp_f32 v{E0+r}, v{E0+r}")
            for r in range(4): a(f"v_add_f32 v{E0+r}, 1.0, v{E0+r}")
            for r in range(4): a(f"v_rcp_f32 v{E0+r}, v{E0+r}")
            for r in range(4):
                u = OWN + 4 * j + r
                a(f"v_mul_f32 v{u}, v{u}, v{E0+r}")
            o = E0 + 6 + 2 * j
            a(f"v_cvt_pk_bf16_f32 v{o}, v{OWN+4*j}, v{OWN+4*j+1}")
            a(f"v_cvt_pk_bf16_f32 v{o+1}, v{OWN+4*j+2}, v{OWN+4*j+3}")
            a(f"buffer_store_dwordx2 {vr(o,2)}, v3, s[28:31], s43 offen")
            if j < MT - 1: a(f"s_add_u32 s43, s43, {GDT}")
    else:
        a("s_mul_i32 s43, s52, 2560")
        a(f"s_add_u32 s43, s43, {TR}")
        a("s_mul_i32 s44, s53, 96")
        a("s_add_u32 s44, s44, s43")
        a("v_mul_u32_u24 v10, 640, v2")
        a("v_lshl_add_u32 v10, v1, 1, v10")
        a("v_add_u32 v10, s44, v10")
        for j in range(MT):
            if NW == 8 and j == 2:
                a("s_cmp_lg_u32 s53, 0")
                a(f"s_cbranch_scc1 L_{name}_tr")
            for h in range(2):
                rr = EB + 2 + 2 * j + h
                a(f"v_lshlrev_b32 v{E0}, 16, v{rr}")
                a(f"v_and_b32 v{E0+1}, s46, v{rr}")
                u = OWN + 4 * j + 2 * h
                a(f"v_add_f32 v{u}, v{u}, v{BI+2*h}")
                a(f"v_add_f32 v{u+1}, v{u+1}, v{BI+2*h+1}")
                a(f"v_add_f32 v{E0}, v{E0}, v{u}")
                a(f"v_add_f32 v{E0+1}, v{E0+1}, v{u+1}")
                a(f"v_cvt_pk_bf16_f32 v{E0+2+h}, v{E0}, v{E0+1}")
                a(f"ds_write_b16 v10, v{E0+2+h} offset:{(2*h)*160 + 32*j}")
                a(f"ds_write_b16_d16_hi v10, v{E0+2+h} offset:{(2*h+1)*160 + 32*j}")
        a.label(f"L_{name}_tr")
        NCH = 2 if NW == 8 else 3
        LASTN = 16 if NW == 8 else 32
        a("s_lshl_b32 s44, s34, 6")
        a("s_lshl_b32 s45, s52, 4")
        a("s_add_u32 s44, s44, s45")
        a("s_mul_i32 s44, s44, 1280")
        a("s_mul_i32 s45, s33, 160")
        a("s_add_u32 s44, s44, s45")
        a("s_mov_b32 s47, 6554")
        a("s_movk_i32 s48, 1280")
        a("s_mul_i32 s45, s53, 80")
        a("v_add_u32 v12, s45, v0")
        a("v_lshlrev_b32 v11, 4, v12")
        a("v_add_u32 v11, s43, v11")
        for j in range(NCH):
            if j: a("v_add_u32 v12, 64, v12")
            a("v_mul_lo_u32 v13, v12, s47")
            a("v_lshrrev_b32 v13, 16, v13")
            a("v_mul_u32_u24 v14, 10, v13")
            a("v_sub_u32 v14, v12, v14")
            a("v_mul_lo_u32 v13, v13, s48")
            a(f"v_lshl_add_u32 v{16+j}, v14, 4, v13")
        a("s_waitcnt lgkmcnt(0)")
        if NW == 8: a("s_barrier")
        for j in range(NCH):
            a(f"ds_read_b128 {vr(120+4*j,4)}, v11 offset:{1024*j}")
        a("s_waitcnt lgkmcnt(0)")
        for j in range(NCH):
            if j == NCH - 1:
                a(f"v_cmp_gt_u32 vcc, {LASTN}, v0")
                a("s_and_saveexec_b64 s[46:47], vcc")
            a(f"buffer_store_dwordx4 {vr(120+4*j,4)}, v{16+j}, s[16:19], s44 offen")
    a.label(f"L_{name}_fin")
    S.stamp(); S.real(); S.flush()
    a.label(f"L_{name}_end")
    a("s_endpgm")
    kdt = kd(name, NV + 80).replace(f".amdhsa_accum_offset {NV+80}", f".amdhsa_accum_offset {NV}")
    return name, a.text(), kdt, f"; @launch kernel={name} grid=({NWG},1,1) block=({64*NW},1,1) lds={LDS}"


def gen_mlpA(which):
    norm = which == 1
    name = "mlp1_kernel" if norm else "mlp2_0_kernel"
    a = Asm()
    if not norm:
        header(a, "mlp2_1_kernel")
        a("s_mov_b32 s99, 1")
        a("s_branch L_mlp2_body")
        header(a, name)
        a("s_mov_b32 s99, 0")
        a.label("L_mlp2_body")
    else:
        header(a, name)
    D = 8
    NH = 32 if norm else 28
    NS = NH // 2
    DX = int(os.environ.get('K5DX', '4'))
    RINGH = D * 8192
    TAB = 2 * RINGH
    RED = 0
    TR = 32768
    LDS = TAB + (16384 if norm else 0)
    NWG = 216 if norm else 256
    WSTR = 3456 if norm else 4096
    WBYTES = 2048 * 1728 * 2
    XDT = 65536 if norm else GDT
    XOFF = X1T_OFF if norm else GF_OFF
    a(f"s_cmp_ge_u32 s2, {NWG}")
    a(f"s_cbranch_scc1 L_{name}_end")
    S = Stamper(a, 2 + which, 16); S.real(); S.stamp()
    a(f"s_load_dwordx4 s[4:7], s[0:1], {48 if norm else 64}")
    a(f"s_load_dwordx2 s[12:13], s[0:1], 96")
    if norm:
        a(f"s_load_dwordx2 s[8:9], s[0:1], 64")
    else:
        a(f"s_load_dwordx2 s[8:9], s[0:1], 80")
        a(f"s_load_dwordx2 s[10:11], s[0:1], 8")
    a("v_mov_b32 v40, v0")
    a("v_lshrrev_b32 v1, 6, v0")
    a("v_and_b32 v0, 63, v0")
    a("v_readfirstlane_b32 s32, v1")
    if norm:
        a("s_and_b32 s33, s2, 7")
        a(f"s_mul_i32 s33, s33, {NWG//8}")
        a("s_lshr_b32 s34, s2, 3")
        a("s_add_u32 s33, s33, s34")
        a("s_lshr_b32 s34, s33, 3")
        a("s_and_b32 s33, s33, 7")
    else:
        a("s_and_b32 s34, s2, 7")
        a("s_lshr_b32 s33, s2, 3")
        a("s_and_b32 s33, s33, 3")
        a("s_lshl_b32 s33, s33, 3")
        a("s_add_u32 s34, s34, s33")
        a("s_lshr_b32 s33, s2, 5")
    a("v_and_b32 v1, 15, v0")
    a("v_lshrrev_b32 v2, 4, v0")
    a("v_lshlrev_b32 v3, 4, v0")
    a("s_cmp_ge_u32 s32, 10")
    a(f"s_cbranch_scc1 L_{name}_prod")
    a("s_cmp_ge_u32 s32, 5")
    a("s_cselect_b32 s53, 1, 0")
    a("s_mul_i32 s52, s53, 5")
    a("s_sub_u32 s52, s32, s52")
    a("s_mul_i32 s41, s33, 5")
    a("s_add_u32 s41, s41, s52")
    a(f"s_mul_i32 s41, s41, {XDT}")
    a(f"s_mul_i32 s42, s53, {NH*1024}")
    a("s_add_u32 s41, s41, s42")
    a(f"s_add_u32 s41, s41, {XOFF}")
    a("s_waitcnt lgkmcnt(0)")
    srd(a, 28, 12, 13, WS_SIZE)
    XR = 48
    XN = 80
    WF = 96
    ACC = 24
    EB = 16
    NV = 168
    TBL = 104
    TR0 = 96
    def table_compute():
        a("v_lshlrev_b32 v4, 3, v40")
        a(f"s_mov_b32 s43, {ST_OFF}")
        for i2 in range(4):
            if i2 == 3:
                a("v_cmp_gt_u32 vcc, 128, v40")
                a("s_and_saveexec_b64 s[50:51], vcc")
            a(f"buffer_load_dwordx2 {vr(TR0+2*i2,2)}, v4, s[28:31], s43 offen")
            if i2 < 3: a(f"s_add_u32 s43, s43, {640*8}")
        a("s_mov_b64 exec, -1")
    def table_finish(nyounger):
        a(f"s_waitcnt vmcnt({nyounger})")
        a("v_lshlrev_b32 v4, 2, v40")
        a(f"v_add_u32 v4, {TAB}, v4")
        a(f"s_mov_b32 s47, {hex(f2u(1.0/640))}")
        a(f"s_mov_b32 s48, {hex(f2u(1e-5))}")
        for i2 in range(4):
            m = TR0 + 2 * i2; q = m + 1; T_ = 110
            a(f"v_mul_f32 v{m}, s47, v{m}")
            a(f"v_mul_f32 v{q}, s47, v{q}")
            a(f"v_fma_f32 v{q}, -v{m}, v{m}, v{q}")
            a(f"v_max_f32 v{q}, 0, v{q}")
            a(f"v_add_f32 v{T_}, s48, v{q}")
            a(f"v_rsq_f32 v{T_}, v{T_}")
            a("s_nop 0")
            a(f"v_mul_f32 v{q}, v{q}, v{T_}")
            a(f"v_fma_f32 v{q}, v{q}, v{T_}, s48")
            a(f"v_rsq_f32 v{q}, v{q}")
            a("s_nop 0")
            a(f"v_mul_f32 v{q}, v{q}, v{T_}")
            a(f"v_mul_f32 v{m}, v{m}, v{q}")
            a(f"v_sub_f32 v{m}, 0, v{m}")
            if i2 == 3:
                a("v_cmp_gt_u32 vcc, 128, v40")
                a("s_and_saveexec_b64 s[50:51], vcc")
            a(f"ds_write_b32 v4, v{q} offset:{2560*i2}")
            a(f"ds_write_b32 v4, v{m} offset:{8192+2560*i2}")
        a("s_mov_b64 exec, -1")
        a("s_waitcnt lgkmcnt(0)")
    if norm: table_compute()
    def x_load(st):
        sl = st % DX
        a(f"buffer_load_dwordx4 {vr(XR+8*sl,4)}, v3, s[28:31], s41 offen")
        a(f"buffer_load_dwordx4 {vr(XR+8*sl+4,4)}, v3, s[28:31], s41 offen offset:1024")
        a("s_add_u32 s41, s41, 2048")
    x_load(0)
    srd(a, 24, 6, 7, 1728 * 2 if norm else 2048 * 2)
    a("s_lshl_b32 s43, s34, 7")
    a("s_lshl_b32 s44, s53, 6")
    a("s_add_u32 s43, s43, s44")
    a("v_lshlrev_b32 v10, 3, v2")
    a(f"buffer_load_dwordx2 {vr(EB,2)}, v10, s[24:27], s43 offen")
    a(f"buffer_load_dwordx2 {vr(EB+2,2)}, v10, s[24:27], s43 offen offset:32")
    NE = 2
    if not norm:
        a("s_mul_i32 s43, s33, 5")
        a("s_add_u32 s43, s43, s52")
        a("s_lshl_b32 s43, s43, 16")
        a("s_lshl_b32 s44, s34, 11")
        a("s_add_u32 s43, s43, s44")
        a("s_lshl_b32 s44, s53, 10")
        a("s_add_u32 s43, s43, s44")
        a(f"s_add_u32 s43, s43, {X1T_OFF}")
        a(f"buffer_load_dwordx4 {vr(EB+4,4)}, v3, s[28:31], s43 offen")
        NE = 3
    for st in range(1, DX): x_load(st)
    a("v_lshrrev_b32 v10, 2, v1")
    a("v_lshl_add_u32 v10, v2, 2, v10")
    a("v_lshrrev_b32 v11, 1, v10")
    a("v_and_b32 v11, 3, v11")
    a("v_and_b32 v12, 3, v1")
    a("v_lshlrev_b32 v12, 3, v12")
    a("v_lshl_add_u32 v12, v10, 7, v12")
    a(f"s_mul_i32 s42, s53, {RINGH}")
    a("v_add_u32 v12, s42, v12")
    for nt in range(4):
        a(f"v_xor_b32 v13, {nt}, v11")
        a(f"v_lshl_add_u32 v{6+nt}, v13, 5, v12")
    for r in range(16): a(f"v_mov_b32 v{ACC+r}, 0")
    a("s_mov_b32 s46, 0xffff0000")
    if norm:
        table_finish(2 * DX + NE)
        a("v_lshlrev_b32 v15, 4, v2")
        a(f"s_mul_i32 s43, s53, {NH*128}")
        a(f"s_add_u32 s43, s43, {TAB}")
        a("v_add_u32 v15, s43, v15")
    TT = 160
    def wreads(st, k2s=(0, 1)):
        ring = st % D; wb = WF + 32 * (st % 2)
        for k2 in k2s:
            for nt in range(4):
                for half in range(2):
                    a(f"ds_read_b64_tr_b16 {vr(wb+16*k2+4*nt+2*half,2)}, v{6+nt} offset:{ring*8192+k2*4096+half*2048}")
    def norm_pieces(st):
        sl = st % DX; xn = XN + 8 * (st % 2)
        out = []
        for k2 in range(2):
            for hh in range(2):
                off = (2 * st + k2) * 128 + 64 * hh
                rd = [f"ds_read_b128 {vr(TT,4)}, v15 offset:{off}", f"ds_read_b128 {vr(TT+4,4)}, v15 offset:{off+8192}"]
                ops = []
                for d2 in range(2):
                    dw = 2 * hh + d2
                    r = XR + 8 * sl + 4 * k2 + dw
                    t0 = 42 + 2 * d2; t1 = t0 + 1
                    ops += [f"v_lshlrev_b32 v{t0}, 16, v{r}", f"v_and_b32 v{t1}, s46, v{r}",
                            f"v_fma_f32 v{t0}, v{t0}, v{TT+2*d2}, v{TT+4+2*d2}",
                            f"v_fma_f32 v{t1}, v{t1}, v{TT+2*d2+1}, v{TT+4+2*d2+1}",
                            f"v_cvt_pk_bf16_f32 v{xn+4*k2+dw}, v{t0}, v{t1}"]
                out.append((rd, ops))
        return out
    def xwait(st):
        issued = min(st + DX - 1 - (1 if True else 0) + 0, NS - 1)
        return issued
    a("s_barrier")
    S.stamp()
    wreads(0)
    a(f"s_waitcnt vmcnt({2*(DX-1)+NE})")
    if norm:
        for rd, ops in norm_pieces(0):
            for x in rd: a(x)
            a("s_waitcnt lgkmcnt(0)")
            for x in ops: a(x)
        if DX < NS: x_load(DX)
    hi = DX if (norm and DX < NS) else DX - 1
    for st in range(NS):
        sl = st % DX; wb = WF + 32 * (st % 2)
        nxt = st + 1 < NS
        a("s_waitcnt lgkmcnt(0)")
        if nxt:
            a("s_barrier")
        ml = []
        for k2 in range(2):
            x = (XN + 8 * (st % 2) + 4 * k2) if norm else (XR + 8 * sl + 4 * k2)
            for nt in range(4): ml.append((ACC + 4 * nt, wb + 16 * k2 + 4 * nt, x))
        if norm:
            if nxt:
                a(f"s_waitcnt vmcnt({2*(hi-(st+1))})")
                pcs = norm_pieces(st + 1)
                for pi, (rd, ops) in enumerate(pcs):
                    for x in rd: a(x)
                    if pi < 2: wreads(st + 1, (pi,))
                    for m in ml[2*pi:2*pi+2]: mfma16(a, *m)
                    a(f"s_waitcnt lgkmcnt({8 if pi < 2 else 0})")
                    for x in ops: a(x)
                if st + 1 + DX < NS:
                    x_load(st + 1 + DX); hi = st + 1 + DX
            else:
                for m in ml: mfma16(a, *m)
        else:
            if st > 0: a(f"s_waitcnt vmcnt({2*(hi-st)})")
            rl = []
            if nxt:
                ring = (st + 1) % D; wb2 = WF + 32 * ((st + 1) % 2)
                rl = [f"ds_read_b64_tr_b16 {vr(wb2+16*k2+4*nt+2*half,2)}, v{6+nt} offset:{ring*8192+k2*4096+half*2048}" for k2 in range(2) for nt in range(4) for half in range(2)]
            for m in ml:
                mfma16(a, *m)
                for _ in range(2):
                    if rl: a(rl.pop(0))
            if st + DX < NS:
                x_load(st + DX); hi = st + DX
    S.stamp()
    a("s_nop 7")
    a("s_barrier")
    a("s_lshl_b32 s43, s32, 11")
    a("v_add_u32 v10, s43, v3")
    a("s_cmp_eq_u32 s53, 0")
    a(f"s_cbranch_scc1 L_{name}_x0")
    a(f"ds_write_b128 v10, {vr(ACC,4)}")
    a(f"ds_write_b128 v10, {vr(ACC+4,4)} offset:1024")
    for r in range(8): a(f"v_mov_b32 v{ACC+r}, v{ACC+8+r}")
    a(f"s_sub_u32 s43, s43, {5*2048}")
    a(f"s_branch L_{name}_x1")
    a.label(f"L_{name}_x0")
    a(f"ds_write_b128 v10, {vr(ACC+8,4)}")
    a(f"ds_write_b128 v10, {vr(ACC+12,4)} offset:1024")
    a(f"s_add_u32 s43, s43, {5*2048}")
    a.label(f"L_{name}_x1")
    a("v_add_u32 v10, s43, v3")
    a("s_waitcnt lgkmcnt(0)")
    a("s_barrier")
    a(f"ds_read_b128 {vr(48,4)}, v10")
    a(f"ds_read_b128 {vr(52,4)}, v10 offset:1024")
    BI = 56
    for j in range(2):
        a(f"v_lshlrev_b32 v{BI+4*j}, 16, v{EB+2*j}")
        a(f"v_and_b32 v{BI+4*j+1}, s46, v{EB+2*j}")
        a(f"v_lshlrev_b32 v{BI+4*j+2}, 16, v{EB+2*j+1}")
        a(f"v_and_b32 v{BI+4*j+3}, s46, v{EB+2*j+1}")
    a("s_waitcnt lgkmcnt(0)")
    for r in range(8):
        a(f"v_add_f32 v{ACC+r}, v{ACC+r}, v{48+r}")
        a(f"v_add_f32 v{ACC+r}, v{ACC+r}, v{BI+r}")
    E0 = 64
    if norm:
        c1 = -2.0 * math.log2(math.e) * 0.7978845608028654
        c2 = c1 * 0.044715
        a(f"s_mov_b32 s47, {hex(f2u(c1))}")
        a(f"s_mov_b32 s48, {hex(f2u(c2))}")
        a("v_mov_b32 v44, s47")
        for r in range(8): a(f"v_mul_f32 v{E0+r}, v{ACC+r}, v{ACC+r}")
        for r in range(8): a(f"v_fma_f32 v{E0+r}, v{E0+r}, s48, v44")
        for r in range(8): a(f"v_mul_f32 v{E0+r}, v{E0+r}, v{ACC+r}")
        for r in range(8): a(f"v_exp_f32 v{E0+r}, v{E0+r}")
        for r in range(8): a(f"v_add_f32 v{E0+r}, 1.0, v{E0+r}")
        for r in range(8): a(f"v_rcp_f32 v{E0+r}, v{E0+r}")
        for r in range(8): a(f"v_mul_f32 v{ACC+r}, v{ACC+r}, v{E0+r}")
        for r in range(4): a(f"v_cvt_pk_bf16_f32 v{E0+8+r}, v{ACC+2*r}, v{ACC+2*r+1}")
        a("s_mul_i32 s43, s33, 5")
        a("s_add_u32 s43, s43, s52")
        a(f"s_mul_i32 s43, s43, {GDT}")
        a("s_lshl_b32 s44, s34, 11")
        a("s_add_u32 s45, s43, s44")
        a("s_lshl_b32 s44, s53, 10")
        a("s_add_u32 s45, s45, s44")
        a(f"s_add_u32 s45, s45, {GF_OFF}")
        a(f"buffer_store_dwordx4 {vr(E0+8,4)}, v3, s[28:31], s45 offen")
        a("s_cmp_lg_u32 s34, 26")
        a(f"s_cbranch_scc1 L_{name}_fin")
        a("s_add_u32 s45, s45, 2048")
        for r in range(4): a(f"v_mov_b32 v{E0+r}, 0")
        a(f"buffer_store_dwordx4 {vr(E0,4)}, v3, s[28:31], s45 offen")
    else:
        a(f"s_mul_i32 s43, s53, {32*160}")
        a("s_lshl_b32 s44, s52, 5")
        a("s_add_u32 s43, s43, s44")
        a(f"s_add_u32 s43, s43, {TR}")
        a("v_mul_u32_u24 v10, 640, v2")
        a("v_lshl_add_u32 v10, v1, 1, v10")
        a("v_add_u32 v10, s43, v10")
        for j in range(2):
            for h in range(2):
                rr = EB + 4 + 2 * j + h
                u = ACC + 4 * j + 2 * h
                a(f"v_lshlrev_b32 v{E0}, 16, v{rr}")
                a(f"v_and_b32 v{E0+1}, s46, v{rr}")
                a(f"v_add_f32 v{E0}, v{E0}, v{u}")
                a(f"v_add_f32 v{E0+1}, v{E0+1}, v{u+1}")
                a(f"v_cvt_pk_bf16_f32 v{E0+2+h}, v{E0}, v{E0+1}")
                a(f"ds_write_b16 v10, v{E0+2+h} offset:{(16*j+2*h)*160}")
                a(f"ds_write_b16_d16_hi v10, v{E0+2+h} offset:{(16*j+2*h+1)*160}")
        a(f"s_add_u32 s14, s12, {hex(X2_OFF)}")
        a("s_addc_u32 s15, s13, 0")
        a("s_cmp_eq_u32 s99, 0")
        a("s_cselect_b32 s8, s14, s8")
        a("s_cselect_b32 s9, s15, s9")
        srd(a, 16, 8, 9, XBYTES)
        a("s_mul_i32 s44, s34, 81920")
        a("s_mul_i32 s45, s33, 160")
        a("s_add_u32 s44, s44, s45")
        a("s_mov_b32 s47, 6554")
        a("s_movk_i32 s48, 1280")
        a("v_mul_lo_u32 v13, v40, s47")
        a("v_lshrrev_b32 v13, 16, v13")
        a("v_mul_u32_u24 v14, 10, v13")
        a("v_sub_u32 v14, v40, v14")
        a("v_mul_lo_u32 v13, v13, s48")
        a("v_lshl_add_u32 v13, v14, 4, v13")
        a("v_lshlrev_b32 v11, 4, v40")
        a("s_waitcnt lgkmcnt(0)")
        a("s_barrier")
        a(f"ds_read_b128 {vr(72,4)}, v11 offset:{TR}")
        a("s_waitcnt lgkmcnt(0)")
        a(f"buffer_store_dwordx4 {vr(72,4)}, v13, s[16:19], s44 offen")
    a(f"s_branch L_{name}_fin")
    a.label(f"L_{name}_prod")
    a("s_sub_u32 s53, s32, 10")
    a("v_lshrrev_b32 v10, 3, v0")
    a("v_lshrrev_b32 v11, 1, v10")
    a("v_and_b32 v11, 3, v11")
    a("v_lshlrev_b32 v11, 1, v11")
    a("v_and_b32 v12, 7, v0")
    a("v_xor_b32 v12, v12, v11")
    a(f"s_movk_i32 s38, {WSTR}")
    a("v_mul_lo_u32 v5, v10, s38")
    a("v_lshl_add_u32 v44, v12, 4, v5")
    for jj in range(1, 4): a(f"v_add_u32 v{44+jj}, {jj*(8*WSTR-1024)}, v44")
    a(f"s_mul_i32 s40, s53, {NH*32*WSTR}")
    a("s_lshl_b32 s41, s34, 7")
    a("s_add_u32 s40, s40, s41")
    a(f"s_mul_i32 s42, s53, {RINGH}")
    a("s_waitcnt lgkmcnt(0)")
    srd(a, 20, 4, 5, WBYTES)
    srd(a, 28, 12, 13, WS_SIZE)
    def w_stage(st):
        ring = st % D
        for k2 in range(2):
            a(f"s_add_u32 s44, s42, {ring*8192 + k2*4096}")
            a("s_mov_b32 m0, s44")
            a("s_nop 0")
            for jj in range(4):
                a(f"buffer_load_dwordx4 v{44+jj}, s[20:23], s40 offen offset:{jj*1024} lds")
            a(f"s_add_u32 s40, s40, {32*WSTR}")
    w_stage(0); w_stage(1); w_stage(2)
    hiw = 2
    a(f"s_waitcnt vmcnt({8*hiw})")
    a("s_barrier")
    for k in range(2):
        w_stage(hiw + 1); hiw += 1
    for st in range(NS - 1):
        a(f"s_waitcnt vmcnt({8*(hiw-(st+1))})")
        a("s_barrier")
        for k in range(2):
            if hiw + 1 < NS and hiw + 1 <= st + D:
                w_stage(hiw + 1); hiw += 1
    a("s_lshr_b32 s43, s2, 3")
    a("s_lshl_b32 s43, s43, 1")
    a("s_add_u32 s43, s43, s53")
    if norm:
        srd(a, 56, 8, 9, WBYTES)
        a(f"s_mul_i32 s43, s43, {32*4096}")
        a("s_and_b32 s44, s2, 7")
        a("s_lshl_b32 s44, s44, 7")
        a("s_add_u32 s43, s43, s44")
        a("v_lshrrev_b32 v10, 3, v0")
        a("v_lshlrev_b32 v10, 12, v10")
        a("v_and_b32 v11, 7, v0")
        a("v_lshl_add_u32 v10, v11, 4, v10")
        for rg in range(4):
            for j in range(4):
                a(f"buffer_load_dwordx4 v[20:23], v10, s[56:59], s43 offen offset:{1024*j}")
            a(f"s_add_u32 s43, s43, {8*4096}")
    else:
        a("s_cmp_lg_u32 s99, 0")
        a(f"s_cbranch_scc1 L_{name}_nopf")
        srd(a, 56, 10, 11, 819200)
        a("s_mul_i32 s43, s43, 12800")
        for j in range(13):
            a(f"buffer_load_dwordx4 v[20:23], v3, s[56:59], s43 offen")
            a("s_add_u32 s43, s43, 1024")
        a.label(f"L_{name}_nopf")
    a("s_mov_b32 s32, s53")
    for k in range(2):
        code_prefetch(a, 4, 12, 20)
        a("s_add_u32 s32, s32, 2")
    a("s_barrier"); a("s_barrier")
    if not norm: a("s_barrier")
    a(f"s_branch L_{name}_end")
    a.label(f"L_{name}_fin")
    S.stamp(); S.real(); S.flush()
    a.label(f"L_{name}_end")
    a("s_endpgm")
    ll = lambda n: f"; @launch kernel={n} grid=({NWG},1,1) block=(768,1,1) lds={LDS}"
    if norm:
        k = (name, a.text(), kd(name, NV), ll(name))
        return k, k
    return (name, a.text(), kd(name, NV) + kd("mlp2_1_kernel", NV), ll(name)), ("mlp2_1_kernel", "", "", ll("mlp2_1_kernel"))

if "--stamps" in sys.argv:
    STAMPS = True; sys.argv.remove("--stamps")
KERNELS = []
QKV = gen_qkv()
ATT = gen_attn()
m = gen_mlp(1, 0); M1 = (m, m)
M2 = gen_mlpA(2)
for L in range(2):
    KERNELS += [QKV[L], ATT[L], M1[L], M2[L]]

def emit(kernels, path, order=None):
    launches = [k[3] for k in kernels] if order is None else order
    hdr = open("interleave_layers__grouped_kv_mqa__mixer_token_mlp__prompt.s.ref").read().split("; Override")[0]
    out = hdr + "\n".join(launches) + "\n"
    out += '.amdgcn_target "amdgcn-amd-amdhsa--gfx950"\n.text\n.p2align 8\nL_text_start:\n'
    seen = set()
    for k in kernels:
        if k[0] in seen: continue
        seen.add(k[0]); out += k[1]
    out += 'L_text_end:\n'
    out += '.section .rodata,"a"\n'
    seen = set()
    for k in kernels:
        if k[0] in seen: continue
        seen.add(k[0]); out += k[2]
    open(path, "w").write(out)

if __name__ == "__main__":
    emit(KERNELS, sys.argv[1] if len(sys.argv) > 1 else "k.s")
```
